```python
import torch

def _softmax(x, axis=-1):
    return torch.softmax(x, dim=axis)
def _gelu(x):
    return torch.nn.functional.gelu(x, approximate="tanh")
def _silu(x):
    return torch.nn.functional.silu(x)
def _sigmoid(x):
    return torch.sigmoid(x)
def _layernorm(x, axis=-1, eps=1e-5):
    m = x.mean(dim=axis, keepdim=True)
    v = x.var(dim=axis, keepdim=True, unbiased=False)
    return (x - m) / torch.sqrt(v + eps)
def _scatter_add(tgt, idx, src, axis=0):
    return tgt.clone().index_add_(axis, idx, src)
def _segment_sum(src, seg, n):
    out = torch.zeros((n,) + src.shape[1:], dtype=src.dtype)
    return out.index_add_(0, seg, src)
def _pad(x, pw):
    flat = tuple(v for pair in reversed(pw) for v in pair)
    return torch.nn.functional.pad(x, flat)

kernel_name = 'gated_mix__ssm_conv_h3__compressed_kv_cla__prompt'

def setup_inputs():

    _w = (lambda a: (lambda t: t.to(torch.bfloat16) if t.is_floating_point() else t)(torch.as_tensor(a)))
    def _A_setup():
        B, S, D = 1, 2048, 448
        ks = 4
        return {
            "q": _w((lambda *s: torch.randn(*s, dtype=torch.bfloat16) * 0.05)(B, S, D)),
            "k": _w((lambda *s: torch.randn(*s, dtype=torch.bfloat16) * 0.4)(B, S, D)),
            "v": _w((lambda *s: torch.randn(*s, dtype=torch.bfloat16) * 0.4)(B, S, D)),
            "shift_k": _w((lambda *s: torch.randn(*s, dtype=torch.bfloat16) * 0.4)(D, ks) * 0.5),
            "ssm_k": _w((lambda *s: torch.randn(*s, dtype=torch.bfloat16) * 0.8)(D, S) * (1.0 / S ** 0.5)),
            "ssm_D": _w((lambda *s: torch.randn(*s, dtype=torch.bfloat16) * 0.4)(D)),
        }
    _A_in = _A_setup()

    def _B_setup():
        B, H, Sq, Sk, D, M = 1, 16, 2048, 2048, 256, 448
        Dc = 4 * D
        return {
            "x": _w((lambda *s: torch.randn(*s, dtype=torch.bfloat16) * 0.05)(B, Sq, M)),
            "c_kv": _w((lambda *s: torch.randn(*s, dtype=torch.bfloat16) * 0.4)(B, Sk, Dc)),
            "w_q": _w((lambda *s: torch.randn(*s, dtype=torch.bfloat16) * 6.4)(M, H, D) * (M ** -0.5)),
            "w_uk": _w((lambda *s: torch.randn(*s, dtype=torch.bfloat16) * 6.4)(Dc, H, D) * (Dc ** -0.5)),
            "w_uv": _w((lambda *s: torch.randn(*s, dtype=torch.bfloat16) * 0.4)(Dc, H, D) * (Dc ** -0.5)),
            "w_o": _w((lambda *s: torch.randn(*s, dtype=torch.bfloat16) * 0.4)(H, D, M) * ((H * D) ** -0.5)),
        }
    _B_in = _B_setup()

    return {
        "A_q": _A_in["q"],
        "A_k": _A_in["k"],
        "A_v": _A_in["v"],
        "A_shift_k": _A_in["shift_k"],
        "A_ssm_k": _A_in["ssm_k"],
        "A_ssm_D": _A_in["ssm_D"],
        "B_x": _B_in["x"],
        "B_c_kv": _B_in["c_kv"],
        "B_w_q": _B_in["w_q"],
        "B_w_uk": _B_in["w_uk"],
        "B_w_uv": _B_in["w_uv"],
        "B_w_o": _B_in["w_o"],
        "gate_w": _w((lambda *s: torch.randn(*s, dtype=torch.bfloat16) * 0.05)(448) * 16.0),
    }

def reference(A_q, A_k, A_v, A_shift_k, A_ssm_k, A_ssm_D, B_x, B_c_kv, B_w_q, B_w_uk, B_w_uv, B_w_o, gate_w):
    def _A_ref(q, k, v, shift_k, ssm_k, ssm_D):
        B, S, D = q.shape
        ks = shift_k.shape[-1]
        k_pad = _pad(k, ((0, 0), (ks - 1, 0), (0, 0)))
        k_shift = torch.zeros_like(k)
        for t in range(ks):
            k_shift = k_shift + k_pad[:, t:t + S, :] * shift_k[:, ks - 1 - t][None, None, :]
        kv = k_shift * v
        L = 2 * S
        kv_pad = _pad(kv, ((0, 0), (0, S), (0, 0)))
        kf_pad = _pad(ssm_k, ((0, 0), (0, S)))
        kv_f = (lambda x, axes=(-2,-1): torch.fft.rfft2(x.float(), dim=axes))(kv_pad[:, None, :, :], axes=(1, 2))
        kf_f = (lambda x, axes=(-2,-1): torch.fft.rfft2(x.float(), dim=axes))(kf_pad[:, None, :], axes=(1, 2))
        kf_f = (lambda x, *d: x.permute(*d))(kf_f, 1, 2, 0)
        y_f = kv_f * kf_f[None, :, :, :]
        y = (lambda x, s, axes=(-2,-1): torch.fft.irfft2(x, s=s, dim=axes).to(torch.bfloat16))(y_f, (1, L), axes=(1, 2))[:, 0, :S, :]
        y = y + kv * ssm_D[None, None, :]
        return q * y

    def _B_ref(x, c_kv, w_q, w_uk, w_uv, w_o):
        B, Sq, M = x.shape[0], x.shape[1], x.shape[2]
        Sk = c_kv.shape[1]
        H, D = w_q.shape[1], w_q.shape[2]
        q = torch.einsum("bqm,mhd->bhqd", x, w_q)
        k = torch.einsum("bkc,chd->bhkd", c_kv, w_uk)
        v = torch.einsum("bkc,chd->bhkd", c_kv, w_uv)
        scores = torch.einsum("bhqd,bhkd->bhqk", q, k) * (D ** -0.5)
        off = Sk - Sq
        qi = torch.arange(Sq)[:, None]
        kj = torch.arange(Sk)[None, :]
        cmask = kj <= (qi + off)
        scores = torch.where(cmask[None, None], scores, -1e9)
        p = _softmax(scores, axis=-1)
        ctx = torch.einsum("bhqk,bhkd->bhqd", p, v)
        return torch.einsum("bhqd,hdm->bqm", ctx, w_o)

    x = A_q
    g = _sigmoid((x * gate_w).sum(-1, keepdims=True))
    a = _A_ref(x, A_k, A_v, A_shift_k, A_ssm_k, A_ssm_D)
    b = _B_ref(x, B_c_kv, B_w_q, B_w_uk, B_w_uv, B_w_o)
    return g * a + (1 - g) * b
```

```python
import sys, os

OUT = os.environ.get("GEN_OUT", "gated_mix__ssm_conv_h3__compressed_kv_cla__prompt.s")

KA = dict(A_q=0, A_k=8, A_v=16, shift_k=24, ssm_k=32, ssm_D=40, B_x=48, c_kv=56, w_q=64,
          w_uk=72, w_uv=80, w_o=88, gate_w=96, out=104, dbg=112, ws=120)
MB = 1 << 20
WS_Q = 0
WS_K = 16 * MB
WS_VT = 32 * MB
WS_PART = 48 * MB
PART_SZ = 2048 * 448 * 4
WS_A = 160 * MB
WS_ML = 170 * MB


class Asm:
    def __init__(self):
        self.lines = []
        self.n = 0

    def __call__(self, s):
        self.lines.append("    " + s)

    def label(self, l):
        self.lines.append(l + ":")

    def c(self, s):
        self.lines.append("    ; " + s)

    def raw(self, s):
        self.lines.append(s)

    def text(self):
        return "\n".join(self.lines) + "\n"


def vr(b, n):
    return "v[%d:%d]" % (b, b + n - 1)


def ar(b, n):
    return "a[%d:%d]" % (b, b + n - 1)


def sr(b, n):
    return "s[%d:%d]" % (b, b + n - 1)


def kernel_begin(a, name):
    a.raw(".text")
    a.raw(".globl %s" % name)
    a.raw(".p2align 8")
    a.raw(".type %s,@function" % name)
    a.label(name)


def kernel_desc(name, vgpr, accum, sgpr=102):
    return """.section .rodata,"a"
.p2align 6
.amdhsa_kernel %s
  .amdhsa_next_free_vgpr %d
  .amdhsa_next_free_sgpr %d
  .amdhsa_accum_offset %d
  .amdhsa_group_segment_fixed_size 0
  .amdhsa_kernarg_size 128
  .amdhsa_user_sgpr_count 2
  .amdhsa_user_sgpr_kernarg_segment_ptr 1
  .amdhsa_system_sgpr_workgroup_id_x 1
.end_amdhsa_kernel
""" % (name, vgpr, sgpr, accum)


def make_srd(a, d, lo, hi, nbytes):
    a("s_mov_b32 s%d, s%d" % (d, lo))
    a("s_and_b32 s%d, s%d, 0xffff" % (d + 1, hi))
    a("s_mov_b32 s%d, 0x%x" % (d + 2, nbytes))
    a("s_mov_b32 s%d, 0x00020000" % (d + 3))


def interleave(main, fill, start=0, per=1):
    out = []
    fi = 0
    for i, m in enumerate(main):
        out.append(m)
        if i >= start:
            for _ in range(per):
                if fi < len(fill):
                    out.append(fill[fi])
                    fi += 1
    out.extend(fill[fi:])
    return out


def gen_proj(a):
    name = "proj_kernel"
    kernel_begin(a, name)
    SA, SB, SO = 4, 8, 12
    sW, sM0, sKA, sKB, sCnt, sMode = 16, 17, 18, 19, 20, 21
    sMb, sNb, sLda, sT0, sT1 = 22, 23, 24, 25, 26
    P = 32
    a("s_cmp_ge_u32 s2, 384")
    a("s_cbranch_scc1 L_proj_end")
    a("s_load_dwordx2 s[32:33], s[0:1], %d" % KA['A_q'])
    a("s_load_dwordx2 s[34:35], s[0:1], %d" % KA['c_kv'])
    a("s_load_dwordx2 s[36:37], s[0:1], %d" % KA['w_q'])
    a("s_load_dwordx2 s[38:39], s[0:1], %d" % KA['w_uk'])
    a("s_load_dwordx2 s[40:41], s[0:1], %d" % KA['w_uv'])
    a("s_load_dwordx2 s[42:43], s[0:1], %d" % KA['ws'])
    a("v_lshrrev_b32 v1, 6, v0")
    a("v_and_b32 v0, 63, v0")
    a("s_nop 0")
    a("v_readfirstlane_b32 s%d, v1" % sW)
    a("s_waitcnt lgkmcnt(0)")
    a("s_cmp_ge_u32 s2, 256")
    a("s_cbranch_scc1 L_proj_q")
    a("s_and_b32 s%d, s2, 7" % sT0)
    a("s_lshr_b32 s%d, s2, 3" % sT1)
    a("s_and_b32 s%d, s%d, 7" % (sMb, sT1))
    a("s_lshr_b32 s%d, s%d, 3" % (sT1, sT1))
    a("s_lshl_b32 s%d, s%d, 2" % (sT0, sT0))
    a("s_add_u32 s%d, s%d, s%d" % (sNb, sT0, sT1))
    make_srd(a, SA, 34, 35, 2048 * 2048)
    a("s_mov_b32 s%d, 2048" % sLda)
    a("s_mov_b32 s%d, 14" % sCnt)
    a("s_cmp_ge_u32 s%d, 16" % sNb)
    a("s_cbranch_scc1 L_proj_v")
    make_srd(a, SB, 38, 39, 1024 * 8192)
    a("s_add_u32 s42, s42, 0x%x" % WS_K)
    a("s_addc_u32 s43, s43, 0")
    a("s_mov_b32 s%d, 0" % sMode)
    a("s_branch L_proj_common")
    a.label("L_proj_v")
    make_srd(a, SB, 40, 41, 1024 * 8192)
    a("s_sub_u32 s%d, s%d, 16" % (sNb, sNb))
    a("s_add_u32 s42, s42, 0x%x" % WS_VT)
    a("s_addc_u32 s43, s43, 0")
    a("s_mov_b32 s%d, 1" % sMode)
    a("s_branch L_proj_common")
    a.label("L_proj_q")
    a("s_sub_u32 s%d, s2, 256" % sT1)
    a("s_and_b32 s%d, s%d, 7" % (sT0, sT1))
    a("s_lshr_b32 s%d, s%d, 3" % (sT1, sT1))
    a("s_and_b32 s%d, s%d, 7" % (sMb, sT1))
    a("s_lshr_b32 s%d, s%d, 3" % (sT1, sT1))
    a("s_lshl_b32 s%d, s%d, 1" % (sT0, sT0))
    a("s_add_u32 s%d, s%d, s%d" % (sNb, sT0, sT1))
    make_srd(a, SA, 32, 33, 2048 * 896)
    make_srd(a, SB, 36, 37, 448 * 8192)
    a("s_mov_b32 s%d, 896" % sLda)
    a("s_mov_b32 s%d, 5" % sCnt)
    a("s_mov_b32 s%d, 0" % sMode)
    a.label("L_proj_common")
    make_srd(a, SO, 42, 43, 16 * MB)
    a("s_lshl_b32 s%d, s%d, 8" % (sMb, sMb))
    a("s_lshl_b32 s%d, s%d, 8" % (sNb, sNb))
    a("s_lshl_b32 s%d, s%d, 13" % (sM0, sW))
    a("s_mov_b32 s%d, 0" % sKA)
    a("s_mov_b32 s%d, 0" % sKB)

    FA = [0, 32]
    FB = [16, 48]
    vLane = 64
    vOA = 66
    vOB = 74
    vRA = 82
    vRB = 86
    vT = 90
    vHi, vL31 = 100, 101
    a("v_mov_b32 v%d, v0" % vLane)
    a("v_lshrrev_b32 v%d, 5, v0" % vHi)
    a("v_and_b32 v%d, 31, v0" % vL31)
    a("v_lshrrev_b32 v%d, 3, v0" % (vT))
    a("s_lshl_b32 s%d, s%d, 6" % (sT0, sW))
    a("s_add_u32 s%d, s%d, s%d" % (sT0, sT0, sMb))
    a("v_add_u32 v%d, s%d, v%d" % (vT, sT0, vT))
    a("v_mul_lo_u32 v%d, v%d, s%d" % (vT, vT, sLda))
    a("v_and_b32 v%d, 7, v0" % (vT + 1))
    a("v_lshrrev_b32 v%d, 4, v0" % (vT + 2))
    a("v_xor_b32 v%d, v%d, v%d" % (vT + 3, vT + 1, vT + 2))
    a("v_xor_b32 v%d, 4, v%d" % (vT + 4, vT + 3))
    a("v_lshlrev_b32 v%d, 4, v%d" % (vT + 3, vT + 3))
    a("v_lshlrev_b32 v%d, 4, v%d" % (vT + 4, vT + 4))
    a("s_lshl_b32 s%d, s%d, 3" % (sT1, sLda))
    for n in range(8):
        a("v_add_u32 v%d, v%d, v%d" % (vOA + n, vT, vT + 3 + (n & 1)))
        if n < 7:
            a("v_add_u32 v%d, s%d, v%d" % (vT, sT1, vT))
    a("s_lshl_b32 s%d, s%d, 4" % (sT0, sW))
    a("v_add_u32 v%d, s%d, v%d" % (vT, sT0, vHi))
    a("v_lshlrev_b32 v%d, 13, v%d" % (vT, vT))
    a("s_lshl_b32 s%d, s%d, 1" % (sT0, sNb))
    a("v_add_u32 v%d, s%d, v%d" % (vT, sT0, vT))
    a("v_lshlrev_b32 v%d, 2, v%d" % (vT + 1, vHi))
    a("v_xor_b32 v%d, v%d, v%d" % (vT + 3, vL31, vT + 1))
    a("v_xor_b32 v%d, 8, v%d" % (vT + 4, vT + 3))
    a("v_lshlrev_b32 v%d, 4, v%d" % (vT + 3, vT + 3))
    a("v_lshlrev_b32 v%d, 4, v%d" % (vT + 4, vT + 4))
    for n in range(8):
        a("v_add_u32 v%d, v%d, v%d" % (vOB + n, vT, vT + 3 + (n & 1)))
        if n < 7:
            a("v_add_u32 v%d, 0x4000, v%d" % (vT, vT))
    a("s_and_b32 s%d, s%d, 1" % (sT0, sW))
    a("s_lshr_b32 s%d, s%d, 1" % (sT1, sW))
    a("s_lshl_b32 s%d, s%d, 14" % (sT0, sT0))
    a("v_lshlrev_b32 v%d, 7, v%d" % (vT, vL31))
    a("v_add_u32 v%d, s%d, v%d" % (vT, sT0, vT))
    a("v_bfe_u32 v%d, v0, 1, 3" % (vT + 1))
    a("v_xor_b32 v%d, v%d, v%d" % (vT + 1, vT + 1, vHi))
    for ks in range(4):
        a("v_xor_b32 v%d, %d, v%d" % (vT + 2, 2 * ks, vT + 1))
        a("v_lshl_add_u32 v%d, v%d, 4, v%d" % (vRA + ks, vT + 2, vT))
    a("v_bfe_u32 v%d, v0, 2, 2" % (vT))
    a("v_lshl_add_u32 v%d, v%d, 3, v%d" % (vT + 1, vHi, vT))
    a("v_lshlrev_b32 v%d, 9, v%d" % (vT + 1, vT + 1))
    a("s_lshl_b32 s%d, s%d, 8" % (sT1, sT1))
    a("s_add_u32 s%d, s%d, 32768" % (sT1, sT1))
    a("v_add_u32 v%d, s%d, v%d" % (vT + 1, sT1, vT + 1))
    a("v_bfe_u32 v%d, v0, 4, 1" % (vT + 2))
    a("v_lshl_add_u32 v%d, v%d, 5, v%d" % (vT + 1, vT + 2, vT + 1))
    a("v_bfe_u32 v%d, v0, 1, 1" % (vT + 2))
    a("v_lshl_add_u32 v%d, v%d, 4, v%d" % (vT + 1, vT + 2, vT + 1))
    a("v_and_b32 v%d, 1, v0" % (vT + 2))
    a("v_lshl_add_u32 v%d, v%d, 3, v%d" % (vT + 1, vT + 2, vT + 1))
    for nt in range(4):
        a("v_xor_b32 v%d, %d, v%d" % (vT + 2, nt, vT))
        a("v_lshl_add_u32 v%d, v%d, 6, v%d" % (vRB + nt, vT + 2, vT + 1))

    def dma_tile(force=False):
        l = []
        if os.environ.get("EXP_NODMA") and not force:
            return l
        for n in range(8):
            l.append("s_add_u32 m0, s%d, %d" % (sM0, n * 1024))
            l.append("buffer_load_dwordx4 v%d, %s, s%d offen lds" % (vOA + n, sr(SA, 4), sKA))
        for n in range(8):
            l.append("s_add_u32 m0, s%d, %d" % (sM0, 32768 + n * 1024))
            l.append("buffer_load_dwordx4 v%d, %s, s%d offen lds" % (vOB + n, sr(SB, 4), sKB))
        l.append("s_add_u32 s%d, s%d, 128" % (sKA, sKA))
        l.append("s_add_u32 s%d, s%d, 0x80000" % (sKB, sKB))
        l.append("s_xor_b32 s%d, s%d, 0x10000" % (sM0, sM0))
        return l

    def frag_reads(st, ks):
        l = []
        for mt in range(4):
            l.append("ds_read_b128 %s, v%d offset:%d" % (vr(FA[st] + 4 * mt, 4), vRA + ks, mt * 4096))
        for nt in range(4):
            for j in range(2):
                l.append("ds_read_b64_tr_b16 %s, v%d offset:%d" % (vr(FB[st] + 4 * nt + 2 * j, 2), vRB + nt, ks * 8192 + j * 2048))
        return [l[0], l[4], l[5], l[6], l[7], l[1], l[8], l[9], l[10], l[11], l[2], l[3]]

    def mfmas(st, mode):
        l = []
        if os.environ.get("EXP_NOMFMA"):
            return ["s_nop 0"] * 16
        for mt in range(4):
            for nt in range(4):
                acc = ar((mt * 4 + nt) * 16, 16)
                A = vr(FA[st] + 4 * mt, 4)
                B = vr(FB[st] + 4 * nt, 4)
                if mode == 0:
                    l.append("v_mfma_f32_32x32x16_bf16 %s, %s, %s, %s" % (acc, B, A, acc))
                else:
                    l.append("v_mfma_f32_32x32x16_bf16 %s, %s, %s, %s" % (acc, A, B, acc))
        return l

    def toggle():
        return ["v_xor_b32 v%d, 0x10000, v%d" % (r, r) for r in list(range(vRA, vRA + 4)) + list(range(vRB, vRB + 4))]

    def body(mode, dma, nxt):
        for ks in range(3):
            a("s_waitcnt lgkmcnt(0)")
            for x in interleave(mfmas(ks & 1, mode), frag_reads((ks + 1) & 1, ks + 1)):
                a(x)
        a("s_waitcnt lgkmcnt(0)")
        fill = []
        if nxt:
            a("s_waitcnt vmcnt(0)")
            a("s_barrier")
            fill += toggle()
            fill += frag_reads(0, 0)
            if dma:
                fill += dma_tile()
        for x in interleave(mfmas(1, mode), fill, per=4 if dma else 2):
            a(x)

    for i in range(256):
        a("v_accvgpr_write_b32 a%d, 0" % i)
    for x in dma_tile(True):
        a(x)
    for x in dma_tile(True):
        a(x)
    a("s_waitcnt vmcnt(16)")
    a("s_barrier")
    for x in frag_reads(0, 0):
        a(x)
    a("s_cmp_eq_u32 s%d, 1" % sMode)
    a("s_cbranch_scc1 L_proj_loop1")
    for mode in range(2):
        a.label("L_proj_loop%d" % mode)
        body(mode, True, True)
        a("s_sub_u32 s%d, s%d, 1" % (sCnt, sCnt))
        a("s_cmp_lg_u32 s%d, 0" % sCnt)
        a("s_cbranch_scc1 L_proj_loop%d" % mode)
        body(mode, False, True)
        body(mode, False, False)
        a("s_barrier")
        a("s_and_b32 s%d, s%d, 1" % (sT0, sW))
        a("s_lshr_b32 s%d, s%d, 1" % (sT1, sW))
        a("s_lshl_b32 s%d, s%d, 7" % (sT0, sT0))
        a("s_lshl_b32 s%d, s%d, 7" % (sT1, sT1))
        a("s_add_u32 s%d, s%d, s%d" % (sT0, sT0, sMb))
        a("s_add_u32 s%d, s%d, s%d" % (sT1, sT1, sNb))
        a("s_mul_i32 s%d, s%d, %d" % (sM0, sW, 128 * 272))
        vw, vrd, vo = vT, vT + 1, vT + 2
        a("v_mul_u32_u24 v%d, 272, v%d" % (vw, vL31))
        a("v_lshl_add_u32 v%d, v%d, %d, v%d" % (vw, vHi, 3 if mode == 0 else 4, vw))
        a("v_add_u32 v%d, s%d, v%d" % (vw, sM0, vw))
        a("v_lshrrev_b32 v%d, 4, v%d" % (vrd, vLane))
        a("v_mul_u32_u24 v%d, 272, v%d" % (vrd, vrd))
        a("v_and_b32 v%d, 15, v%d" % (vo, vLane))
        a("v_lshl_add_u32 v%d, v%d, 4, v%d" % (vrd, vo, vrd))
        a("v_add_u32 v%d, s%d, v%d" % (vrd, sM0, vrd))
        rs = 13 if mode == 0 else 12
        r0, c0 = (sT0, sT1) if mode == 0 else (sT1, sT0)
        a("v_lshrrev_b32 v%d, 4, v%d" % (vo + 1, vLane))
        a("v_add_u32 v%d, s%d, v%d" % (vo + 1, r0, vo + 1))
        a("v_lshlrev_b32 v%d, %d, v%d" % (vo + 1, rs, vo + 1))
        a("v_lshl_add_u32 v%d, v%d, 4, v%d" % (vo, vo, vo + 1))
        a("s_lshl_b32 s%d, s%d, 1" % (c0, c0))
        a("v_add_u32 v%d, s%d, v%d" % (vo, c0, vo))
        k = 0
        for mt in range(4):
            for nt in range(4):
                for g in range(4):
                    t = 0 + (k % 8) * 6
                    k += 1
                    base = (mt * 4 + nt) * 16 + 4 * g
                    for e in range(4):
                        a("v_accvgpr_read_b32 v%d, a%d" % (t + e, base + e))
                    a("v_cvt_pk_bf16_f32 v%d, v%d, v%d" % (t + 4, t, t + 1))
                    a("v_cvt_pk_bf16_f32 v%d, v%d, v%d" % (t + 5, t + 2, t + 3))
                    if mode == 0:
                        off = mt * 32 * 272 + 64 * nt + 16 * g
                    else:
                        off = nt * 32 * 272 + 64 * mt + 32 * (g >> 1) + 8 * (g & 1)
                    a("ds_write_b64 v%d, %s offset:%d" % (vw, vr(t + 4, 2), off))
        a("s_waitcnt lgkmcnt(0)")
        for i in range(32):
            a("ds_read_b128 %s, v%d offset:%d" % (vr(4 * (i % 16), 4), vrd, i * 4 * 272))
            if i >= 8:
                j = i - 8
                a("s_waitcnt lgkmcnt(8)")
                a("s_mov_b32 s%d, %d" % (sT0, j * 4 << rs))
                if not os.environ.get("EXP_NOSTORE"):
                    a("buffer_store_dwordx4 %s, v%d, %s, s%d offen" % (vr(4 * (j % 16), 4), vo, sr(SO, 4), sT0))
        for j in range(24, 32):
            a("s_waitcnt lgkmcnt(%d)" % (31 - j))
            a("s_mov_b32 s%d, %d" % (sT0, j * 4 << rs))
            if not os.environ.get("EXP_NOSTORE"):
                a("buffer_store_dwordx4 %s, v%d, %s, s%d offen" % (vr(4 * (j % 16), 4), vo, sr(SO, 4), sT0))
        a("s_endpgm")
    a.label("L_proj_end")
    a("s_endpgm")
    return kernel_desc(name, 512, 256)


LOG2E = 1.4426950408889634

def gen_attn(a):
    name = "attn_kernel"
    kernel_begin(a, name)
    SQ, SK, SV, SWO, SP = 4, 8, 12, 16, 20
    sW, sH, sQb, sCnt, sKo, sVo, sT0, sT1, sMK, sMV, sC = 24, 25, 26, 27, 28, 29, 30, 31, 32, 33, 34
    sCmp = 40
    a("s_cmp_ge_u32 s2, 256")
    a("s_cbranch_scc1 L_attn_end")
    a("s_load_dwordx2 s[50:51], s[0:1], %d" % KA['ws'])
    a("s_load_dwordx2 s[52:53], s[0:1], %d" % KA['w_o'])
    a("v_lshrrev_b32 v1, 6, v0")
    a("v_and_b32 v0, 63, v0")
    a("s_nop 0")
    a("v_readfirstlane_b32 s%d, v1" % sW)
    a("s_and_b32 s%d, s2, 7" % sT0)
    a("s_lshl_b32 s%d, s%d, 1" % (sT0, sT0))
    a("s_bfe_u32 s%d, s2, 0x10003" % sT1)
    a("s_add_u32 s%d, s%d, s%d" % (sH, sT0, sT1))
    a("s_lshr_b32 s%d, s2, 4" % sQb)
    a("s_waitcnt lgkmcnt(0)")
    make_srd(a, SQ, 50, 51, 16 * MB)
    a("s_add_u32 s54, s50, 0x%x" % WS_K)
    a("s_addc_u32 s55, s51, 0")
    make_srd(a, SK, 54, 55, 16 * MB)
    a("s_add_u32 s54, s50, 0x%x" % WS_VT)
    a("s_addc_u32 s55, s51, 0")
    make_srd(a, SV, 54, 55, 16 * MB)
    make_srd(a, SWO, 52, 53, 16 * 256 * 448 * 2)
    a("s_add_u32 s54, s50, 0x%x" % WS_PART)
    a("s_addc_u32 s55, s51, 0")
    make_srd(a, SP, 54, 55, 16 * PART_SZ)
    a("s_mov_b32 s%d, 0x%08x" % (sC, f32bits(LOG2E / 16.0)))

    O, S0, S1, P, T = 0, 128, 160, 192, 208
    vm, vl, vq, vNeg = 220, 221, 222, 223
    vKR, vVR, vOK, vOV = 224, 232, 236, 244
    vLane, vHi, vL31 = 252, 253, 254
    QA, RING = 0, 64
    Sx = [S0, S1]
    a("v_mov_b32 v%d, v0" % vLane)
    a("v_lshrrev_b32 v%d, 5, v0" % vHi)
    a("v_and_b32 v%d, 31, v0" % vL31)
    t = T
    a("s_lshl_b32 s%d, s%d, 7" % (sT0, sQb))
    a("s_lshl_b32 s%d, s%d, 5" % (sT1, sW))
    a("s_add_u32 s%d, s%d, s%d" % (sT0, sT0, sT1))
    a("v_add_u32 v%d, s%d, v%d" % (t, sT0, vL31))
    a("v_lshlrev_b32 v%d, 13, v%d" % (t, t))
    a("v_lshl_add_u32 v%d, v%d, 4, v%d" % (t, vHi, t))
    a("s_lshl_b32 s%d, s%d, 9" % (sT1, sH))
    for j in range(16):
        a("buffer_load_dwordx4 %s, v%d, %s, s%d offen offset:%d" % (ar(QA + 4 * j, 4), t, sr(SQ, 4), sT1, 32 * j))
    a("s_lshl_b32 s%d, s%d, 5" % (sT0, sW))
    a("v_add_u32 v%d, s%d, v%d" % (vq, sT0, vL31))
    a("v_lshlrev_b32 v%d, 2, v%d" % (t + 1, vHi))
    a("v_sub_u32 v%d, v%d, v%d" % (vq, vq, t + 1))
    a("v_mov_b32 v%d, 0x%08x" % (vNeg, f32bits(-1.6e10)))
    a("v_mov_b32 v%d, 0x%08x" % (vm, f32bits(-1e30)))
    a("v_mov_b32 v%d, 0" % vl)
    a("s_lshl_b32 s%d, s%d, 4" % (sT0, sW))
    a("s_lshl_b32 s%d, s%d, 9" % (sT1, sH))
    for n in range(8):
        a("v_add_u32 v%d, %d, v%d" % (t, 2 * n, vHi))
        a("v_xor_b32 v%d, v%d, v%d" % (t + 1, t, vL31))
        a("v_add_u32 v%d, s%d, v%d" % (t, sT0, t))
        a("v_lshlrev_b32 v%d, 13, v%d" % (t, t))
        a("v_lshl_add_u32 v%d, v%d, 4, v%d" % (t, t + 1, t))
        a("v_add_u32 v%d, s%d, v%d" % (vOK + n, sT1, t))
    a("s_lshl_b32 s%d, s%d, 8" % (sT0, sH))
    a("s_lshl_b32 s%d, s%d, 6" % (sT1, sW))
    a("s_add_u32 s%d, s%d, s%d" % (sT0, sT0, sT1))
    a("v_lshrrev_b32 v%d, 3, v%d" % (t, vLane))
    a("v_add_u32 v%d, s%d, v%d" % (t, sT0, t))
    a("v_lshlrev_b32 v%d, 12, v%d" % (t, t))
    a("v_and_b32 v%d, 7, v%d" % (t + 1, vLane))
    a("v_lshrrev_b32 v%d, 4, v%d" % (t + 2, vLane))
    a("v_xor_b32 v%d, v%d, v%d" % (t + 1, t + 1, t + 2))
    a("v_xor_b32 v%d, 4, v%d" % (t + 2, t + 1))
    a("v_lshlrev_b32 v%d, 4, v%d" % (t + 1, t + 1))
    a("v_lshlrev_b32 v%d, 4, v%d" % (t + 2, t + 2))
    for n in range(8):
        a("v_add_u32 v%d, v%d, v%d" % (vOV + n, t, t + 1 + (n & 1)))
        if n < 7:
            a("v_add_u32 v%d, 0x8000, v%d" % (t, t))
    a("v_and_b32 v%d, 15, v%d" % (t, vLane))
    a("v_xor_b32 v%d, v%d, v%d" % (t, t, vHi))
    a("v_lshlrev_b32 v%d, 9, v%d" % (t + 1, vL31))
    for j in range(8):
        a("v_xor_b32 v%d, %d, v%d" % (t + 2, 2 * j, t))
        a("v_lshl_add_u32 v%d, v%d, 4, v%d" % (vKR + j, t + 2, t + 1))
    a("v_bfe_u32 v%d, v%d, 1, 3" % (t, vLane))
    a("v_xor_b32 v%d, v%d, v%d" % (t, t, vHi))
    a("v_lshlrev_b32 v%d, 7, v%d" % (t + 1, vL31))
    a("v_add_u32 v%d, 0x10000, v%d" % (t + 1, t + 1))
    for kk in range(4):
        a("v_xor_b32 v%d, %d, v%d" % (t + 2, 2 * kk, t))
        a("v_lshl_add_u32 v%d, v%d, 4, v%d" % (vVR + kk, t + 2, t + 1))
    for i in range(128):
        a("v_mov_b32 v%d, 0" % (O + i))
    a("s_lshl_b32 s%d, s%d, 13" % (sMK, sW))
    a("s_mov_b32 s%d, 0" % sKo)
    a("s_mov_b32 s%d, 0" % sVo)

    def dmaK(buf):
        l = []
        for n in range(8):
            l.append("s_add_u32 m0, s%d, %d" % (sMK, buf * 32768 + n * 1024))
            l.append("buffer_load_dwordx4 v%d, %s, s%d offen lds" % (vOK + n, sr(SK, 4), sKo))
        l.append("s_add_u32 s%d, s%d, 0x80000" % (sKo, sKo))
        return l

    def dmaV(buf):
        l = []
        for n in range(8):
            l.append("s_add_u32 m0, s%d, %d" % (sMK, 65536 + buf * 32768 + n * 1024))
            l.append("buffer_load_dwordx4 v%d, %s, s%d offen lds" % (vOV + n, sr(SV, 4), sVo))
        l.append("s_add_u32 s%d, s%d, 128" % (sVo, sVo))
        return l

    def qk_items(buf, sset):
        it = []
        for jd in range(16):
            for kt in range(2):
                rd = "ds_read_b128 %%s, v%d offset:%d" % (vKR + (jd & 7), buf * 32768 + kt * 16384 + (jd >> 3) * 256)
                acc = vr(Sx[sset] + 16 * kt, 16)
                mf = "v_mfma_f32_32x32x16_bf16 %s, %%s, %s, %s" % (acc, ar(QA + 4 * jd, 4), "0" if jd == 0 else acc)
                it.append((rd, mf))
        return it

    def pv_items(buf):
        it = []
        for kk in range(4):
            for dt in range(8):
                rd = "ds_read_b128 %%s, v%d offset:%d" % (vVR + kk, buf * 32768 + dt * 4096)
                acc = vr(O + 16 * dt, 16)
                mf = "v_mfma_f32_32x32x16_bf16 %s, %%s, %s, %s" % (acc, vr(P + 4 * kk, 4), acc)
                it.append((rd, mf))
        return it

    D = 6

    def stream(items, fills):
        n = len(items)
        for i in range(min(D, n)):
            a(items[i][0] % ar(RING + 4 * (i % 8), 4))
        for i in range(n):
            for x in fills.get(('pre', i), []):
                a(x)
            a("s_waitcnt lgkmcnt(%d)" % min(D - 1, n - 1 - i))
            a(items[i][1] % ar(RING + 4 * (i % 8), 4))
            if i + D < n:
                a(items[i + D][0] % ar(RING + 4 * ((i + D) % 8), 4))
            for x in fills.get(i, []):
                a(x)

    def softmax(sset, masked, tblk):
        S = Sx[sset]
        l = []
        if masked:
            idx = []
            for kt in range(2):
                for g in range(4):
                    for e in range(4):
                        idx.append((S + 16 * kt + 4 * g + e, 32 * kt + 8 * g + e + 64 * tblk))
            for i, (r, cst) in enumerate(idx):
                l.append("v_cmp_gt_i32 %s, %d, v%d" % (sr(sCmp + 2 * (i % 4), 2), cst, vq) if cst <= 64 else
                         "v_cmp_lt_i32 %s, v%d, s%d" % (sr(sCmp + 2 * (i % 4), 2), vq, 0))
                if cst > 64:
                    l.pop()
                    l.append("s_mov_b32 s%d, %d" % (sT0, cst))
                    l.append("v_cmp_gt_i32 %s, s%d, v%d" % (sr(sCmp + 2 * (i % 4), 2), sT0, vq))
                if i >= 3:
                    r2 = idx[i - 3][0]
                    l.append("v_cndmask_b32 v%d, v%d, v%d, %s" % (r2, r2, vNeg, sr(sCmp + 2 * ((i - 3) % 4), 2)))
            l.append("s_nop 1")
            for i in range(len(idx) - 3, len(idx)):
                r2 = idx[i][0]
                l.append("v_cndmask_b32 v%d, v%d, v%d, %s" % (r2, r2, vNeg, sr(sCmp + 2 * (i % 4), 2)))
        for c in range(4):
            b = S + 8 * c
            l.append("v_max3_f32 v%d, v%d, v%d, v%d" % (T + c, b, b + 1, b + 2))
        for c in range(4):
            b = S + 8 * c
            l.append("v_max3_f32 v%d, v%d, v%d, v%d" % (T + c, T + c, b + 3, b + 4))
        for c in range(4):
            b = S + 8 * c
            l.append("v_max3_f32 v%d, v%d, v%d, v%d" % (T + c, T + c, b + 5, b + 6))
        l.append("v_max3_f32 v%d, v%d, v%d, v%d" % (T, T, S + 7, S + 15))
        l.append("v_max3_f32 v%d, v%d, v%d, v%d" % (T + 2, T + 2, S + 23, S + 31))
        l.append("v_max3_f32 v%d, v%d, v%d, v%d" % (T, T, T + 1, T + 3))
        l.append("v_max_f32 v%d, v%d, v%d" % (T, T, T + 2))
        l.append("v_mov_b32 v%d, v%d" % (T + 1, T))
        l.append("s_nop 1")
        l.append("v_permlane32_swap_b32 v%d, v%d" % (T, T + 1))
        l.append("v_max3_f32 v%d, v%d, v%d, v%d" % (T, T, T + 1, vm))
        l.append("v_sub_f32 v%d, v%d, v%d" % (T + 1, vm, T))
        l.append("v_mul_f32 v%d, s%d, v%d" % (T + 1, sC, T + 1))
        l.append("v_exp_f32 v%d, v%d" % (T + 4, T + 1))
        l.append("v_mov_b32 v%d, v%d" % (vm, T))
        l.append("v_mul_f32 v%d, s%d, v%d" % (T + 2, sC, T))
        for i in range(32):
            l.append("v_fma_f32 v%d, v%d, s%d, -v%d" % (S + i, S + i, sC, T + 2))
            l.append("v_exp_f32 v%d, v%d" % (S + i, S + i))
        l.append("v_mul_f32 v%d, v%d, v%d" % (vl, vl, T + 4))
        l.append("v_add_f32 v%d, v%d, v%d" % (T + 5, S, S + 1))
        for i in range(2, 32, 2):
            l.append("v_add_f32 v%d, v%d, v%d" % (vl, vl, S + i))
            l.append("v_add_f32 v%d, v%d, v%d" % (T + 5, T + 5, S + i + 1))
        l.append("v_add_f32 v%d, v%d, v%d" % (vl, vl, T + 5))
        for i in range(16):
            l.append("v_cvt_pk_bf16_f32 v%d, v%d, v%d" % (P + i, S + 2 * i, S + 2 * i + 1))
        return l

    uid = [0]

    def rescale():
        uid[0] += 1
        lab = "L_attn_nors%d" % uid[0]
        l = ["v_cmp_neq_f32 vcc, 1.0, v%d" % (T + 4), "s_nop 4", "s_cbranch_vccz %s" % lab]
        for i in range(128):
            l.append("v_mul_f32 v%d, v%d, v%d" % (O + i, O + i, T + 4))
        l.append("LABEL " + lab)
        l.append("s_nop 1")
        return l

    def emit_list(l):
        for x in l:
            if x.startswith("LABEL "):
                a.label(x[6:])
            else:
                a(x)

    def iteration(par, masked, tblk, dK, dV, doqk):
        a("s_waitcnt vmcnt(0)")
        a("s_barrier")
        dma = (dmaK(par) if dK else []) + (dmaV(par ^ 1) if dV else [])
        sm = softmax(par, masked, tblk)
        items = (qk_items(par ^ 1, par ^ 1) if doqk else []) + pv_items(par)
        nq = 32 if doqk else 0
        fills = {}
        if doqk:
            allf = dma + sm
            per = (len(allf) + 31) // 32
            for i in range(32):
                fills[i] = allf[i * per:(i + 1) * per]
        else:
            emit_list(dma + sm)
        n = len(items)
        for i in range(min(D, n)):
            a(items[i][0] % ar(RING + 4 * (i % 8), 4))
        for i in range(n):
            if i == nq:
                emit_list(rescale())
            a("s_waitcnt lgkmcnt(%d)" % min(D - 1, n - 1 - i))
            a(items[i][1] % ar(RING + 4 * (i % 8), 4))
            if i + D < n:
                a(items[i + D][0] % ar(RING + 4 * ((i + D) % 8), 4))
            for x in fills.get(i, []):
                a(x)

    for x in dmaK(0) + dmaV(0) + dmaK(1):
        a(x)
    a("s_waitcnt vmcnt(16)")
    a("s_barrier")
    stream(qk_items(0, 0), {})
    a("s_nop 15")
    a("s_mov_b32 s%d, s%d" % (sCnt, sQb))
    a("s_cmp_eq_u32 s%d, 0" % sCnt)
    a("s_cbranch_scc1 L_attn_tail")
    a.label("L_attn_loop")
    iteration(0, False, 0, True, True, True)
    iteration(1, False, 0, True, True, True)
    a("s_sub_u32 s%d, s%d, 1" % (sCnt, sCnt))
    a("s_cmp_lg_u32 s%d, 0" % sCnt)
    a("s_cbranch_scc1 L_attn_loop")
    a.label("L_attn_tail")
    iteration(0, True, 0, False, True, True)
    iteration(1, True, 1, False, False, False)

    C = 128
    a("s_nop 15")
    a("v_mov_b32 v%d, v%d" % (T, vl))
    a("s_nop 1")
    a("v_permlane32_swap_b32 v%d, v%d" % (T, vl))
    a("v_add_f32 v%d, v%d, v%d" % (T, T, vl))
    a("v_rcp_f32 v%d, v%d" % (T, T))
    a("s_nop 0")
    for i in range(0, 128, 2):
        a("v_mul_f32 v%d, v%d, v%d" % (O + i, O + i, T))
        a("v_mul_f32 v%d, v%d, v%d" % (O + i + 1, O + i + 1, T))
        a("v_cvt_pk_bf16_f32 v%d, v%d, v%d" % (C + i // 2, O + i, O + i + 1))
    WR = 192
    vWo, vWr0, vWr1, vPo = 0, 1, 2, 3
    a("s_barrier")
    a("s_mul_i32 s%d, s%d, 14336" % (sT0, sW))
    a("v_lshlrev_b32 v%d, 4, v%d" % (vWo, vLane))
    a("v_add_u32 v%d, s%d, v%d" % (vWo, sT0, vWo))
    a("s_mov_b32 s%d, s%d" % (sMK, sT0))
    a("s_mul_i32 s%d, s%d, 229376" % (sKo, sH))
    a("v_bfe_u32 v%d, v%d, 2, 2" % (4, vLane))
    a("v_lshl_add_u32 v%d, v%d, 2, v%d" % (4, vHi, 4))
    a("v_mul_u32_u24 v%d, 896, v%d" % (4, 4))
    a("v_bfe_u32 v%d, v%d, 4, 1" % (5, vLane))
    a("v_lshl_add_u32 v%d, v%d, 5, v%d" % (4, 5, 4))
    a("v_and_b32 v%d, 3, v%d" % (5, vLane))
    a("v_lshl_add_u32 v%d, v%d, 3, v%d" % (vWr0, 5, 4))
    a("v_add_u32 v%d, 0x10000, v%d" % (vWr1, vWr0))
    a("s_lshl_b32 s%d, s%d, 7" % (sT0, sQb))
    a("s_lshl_b32 s%d, s%d, 5" % (sT1, sW))
    a("s_add_u32 s%d, s%d, s%d" % (sT0, sT0, sT1))
    a("v_add_u32 v%d, s%d, v%d" % (vPo, sT0, vL31))
    a("v_mul_u32_u24 v%d, 1792, v%d" % (vPo, vPo))
    a("v_lshl_add_u32 v%d, v%d, 4, v%d" % (vPo, vHi, vPo))
    a("s_mul_i32 s%d, s%d, %d" % (sVo, sH, PART_SZ))

    def dmaW(buf):
        l = []
        for n in range(14):
            l.append("s_add_u32 m0, s%d, %d" % (sMK, buf * 65536 + n * 1024))
            l.append("s_add_u32 s%d, s%d, %d" % (sT0, sKo, n * 1024))
            l.append("buffer_load_dwordx4 v%d, %s, s%d offen lds" % (vWo, sr(SWO, 4), sT0))
        l.append("s_add_u32 s%d, s%d, 57344" % (sKo, sKo))
        return l

    for x in dmaW(0):
        a(x)
    for p in range(4):
        a("s_waitcnt vmcnt(0)")
        a("s_barrier")
        dm = dmaW((p + 1) & 1) if p < 3 else []
        items = []
        for dd in range(4):
            for mt in range(14):
                rb = vWr1 if (p & 1) else vWr0
                rds = ["ds_read_b64_tr_b16 %%s, v%d offset:%d" % (rb, (16 * dd + 8 * j) * 896 + 64 * mt) for j in range(2)]
                acc = ar(16 * mt, 16)
                gdd = 4 * p + dd
                mf = "v_mfma_f32_32x32x16_bf16 %s, %%s, %s, %s" % (acc, vr(C + 4 * gdd, 4), "0" if gdd == 0 else acc)
                items.append((rds, mf))
        n = len(items)
        DD = 6
        def rd(i):
            for j in range(2):
                a(items[i][0][j] % vr(WR + 4 * (i % 8) + 2 * j, 2))
        for i in range(DD):
            rd(i)
        for i in range(n):
            a("s_waitcnt lgkmcnt(%d)" % (2 * min(DD - 1, n - 1 - i)))
            a(items[i][1] % vr(WR + 4 * (i % 8), 4))
            if i + DD < n:
                rd(i + DD)
            if dm:
                a(dm.pop(0))
        for x in dm:
            a(x)
    a("s_nop 15")
    for mt in range(14):
        for g in range(4):
            a("buffer_store_dwordx4 %s, v%d, %s, s%d offen offset:%d" % (ar(16 * mt + 4 * g, 4), vPo, sr(SP, 4), sVo, 128 * mt + 32 * g))
    a.label("L_attn_end")
    a("s_endpgm")
    return kernel_desc(name, 512, 256)


def gen_conv(a):
    name = "conv_kernel"
    kernel_begin(a, name)
    RS = 5952
    WSZ = 8 * RS
    HOFF = WSZ
    UOFF = WSZ + 4640
    YOFF = UOFF + 4096
    CST = 60672
    SKk, SVv, SH, SY = 4, 8, 12, 16
    sW, sD0, sT0, sT1 = 20, 21, 22, 23
    sSK = 24
    sDD = 32
    a("s_cmp_ge_u32 s2, 224")
    a("s_cbranch_scc1 L_conv_end")
    a("s_load_dwordx2 s[40:41], s[0:1], %d" % KA['A_k'])
    a("s_load_dwordx2 s[42:43], s[0:1], %d" % KA['A_v'])
    a("s_load_dwordx2 s[44:45], s[0:1], %d" % KA['shift_k'])
    a("s_load_dwordx2 s[46:47], s[0:1], %d" % KA['ssm_k'])
    a("s_load_dwordx2 s[48:49], s[0:1], %d" % KA['ssm_D'])
    a("s_load_dwordx2 s[50:51], s[0:1], %d" % KA['ws'])
    a("v_lshrrev_b32 v1, 6, v0")
    a("s_nop 0")
    a("v_readfirstlane_b32 s%d, v1" % sW)
    a("s_lshl_b32 s%d, s2, 1" % sD0)
    a("s_waitcnt lgkmcnt(0)")
    make_srd(a, SKk, 40, 41, 2048 * 896)
    make_srd(a, SVv, 42, 43, 2048 * 896)
    make_srd(a, SH, 46, 47, 448 * 4096)
    a("s_add_u32 s50, s50, 0x%x" % WS_A)
    a("s_addc_u32 s51, s51, 0")
    make_srd(a, SY, 50, 51, 448 * 4096)
    a("s_lshl_b32 s%d, s2, 4" % sT0)
    a("s_load_dwordx4 s[52:55], s[44:45], s%d" % sT0)
    a("s_lshl_b32 s%d, s2, 2" % sT0)
    a("s_load_dword s56, s[48:49], s%d" % sT0)
    vTid = 0
    vK = 2
    vV = 13
    vH = 24
    vt = 32
    a("v_lshlrev_b32 v%d, 3, v%d" % (vt, vTid))
    a("v_mul_u32_u24 v%d, 896, v%d" % (vt + 1, vt))
    a("v_add_u32 v%d, s%d, v%d" % (vt + 1, sT0, vt + 1))
    a("v_subrev_u32 v%d, %d, v%d" % (vt + 2, 3 * 896, vt + 1))
    for i in range(3):
        a("buffer_load_dword v%d, v%d, %s, 0 offen offset:%d" % (vK + i, vt + 2, sr(SKk, 4), i * 896))
    for i in range(4):
        a("buffer_load_dword v%d, v%d, %s, 0 offen offset:%d" % (vK + 3 + i, vt + 1, sr(SKk, 4), i * 896))
    a("v_add_u32 v%d, %d, v%d" % (vt + 3, 4 * 896, vt + 1))
    for i in range(4):
        a("buffer_load_dword v%d, v%d, %s, 0 offen offset:%d" % (vK + 7 + i, vt + 3, sr(SKk, 4), i * 896))
    for i in range(4):
        a("buffer_load_dword v%d, v%d, %s, 0 offen offset:%d" % (vV + i, vt + 1, sr(SVv, 4), i * 896))
    for i in range(4):
        a("buffer_load_dword v%d, v%d, %s, 0 offen offset:%d" % (vV + 4 + i, vt + 3, sr(SVv, 4), i * 896))
    a("v_lshlrev_b32 v%d, 4, v%d" % (vt + 4, vTid))
    a("s_lshl_b32 s%d, s%d, 12" % (sT1, sD0))
    a("buffer_load_dwordx4 %s, v%d, %s, s%d offen" % (vr(vH, 4), vt + 4, sr(SH, 4), sT1))
    a("s_add_u32 s%d, s%d, 4096" % (sT1, sT1))
    a("buffer_load_dwordx4 %s, v%d, %s, s%d offen" % (vr(vH + 4, 4), vt + 4, sr(SH, 4), sT1))
    for i in range(4):
        a("v_mov_b32 v%d, 0" % (40 + i))
    for i in range(30):
        a("ds_write_b128 v%d, v[40:43] offset:%d" % (vt + 4, (i % 15) * 4096))
        if i == 14:
            a("v_add_u32 v%d, %d, v%d" % (vt + 4, 15 * 4096, vt + 4))
    a("v_subrev_u32 v%d, %d, v%d" % (vt + 4, 15 * 4096, vt + 4))
    a("s_waitcnt lgkmcnt(0)")
    for c in range(2):
        a("s_lshl_b32 s%d, s%d, 16" % (sSK + 4 * c + 0, 52 + 2 * c))
        a("s_and_b32 s%d, s%d, 0xffff0000" % (sSK + 4 * c + 1, 52 + 2 * c))
        a("s_lshl_b32 s%d, s%d, 16" % (sSK + 4 * c + 2, 53 + 2 * c))
        a("s_and_b32 s%d, s%d, 0xffff0000" % (sSK + 4 * c + 3, 53 + 2 * c))
    a("s_lshl_b32 s%d, s56, 16" % sDD)
    a("s_and_b32 s%d, s56, 0xffff0000" % (sDD + 1))
    a("s_barrier")
    a("s_waitcnt vmcnt(0)")
    a("ds_write_b128 v%d, %s offset:%d" % (vt + 4, vr(vH, 4), HOFF + 512))
    a("v_add_u32 v%d, %d, v%d" % (vt + 5, CST, vt + 4))
    a("ds_write_b128 v%d, %s offset:%d" % (vt + 5, vr(vH + 4, 4), HOFF + 512))
    KL, KH = 64, 80
    for i in range(11):
        a("v_lshlrev_b32 v%d, 16, v%d" % (KL + i, vK + i))
        a("v_and_b32 v%d, 0xffff0000, v%d" % (KH + i, vK + i))
    U = 96
    x0, x1, p = 104, 105, 106

    def rnd():
        a("v_cvt_pk_bf16_f32 v%d, v%d, v%d" % (p, x0, x1))
        a("v_lshlrev_b32 v%d, 16, v%d" % (x0, p))
        a("v_and_b32 v%d, 0xffff0000, v%d" % (x1, p))
    y0, y1 = 107, 108
    for i in range(8):
        a("v_mul_f32 v%d, s%d, v%d" % (x0, sSK + 3, KL + i))
        a("v_mul_f32 v%d, s%d, v%d" % (x1, sSK + 7, KH + i))
        rnd()
        for j in range(1, 4):
            a("v_mov_b32 v%d, v%d" % (y0, x0))
            a("v_mov_b32 v%d, v%d" % (y1, x1))
            a("v_mul_f32 v%d, s%d, v%d" % (x0, sSK + 3 - j, KL + i + j))
            a("v_mul_f32 v%d, s%d, v%d" % (x1, sSK + 7 - j, KH + i + j))
            rnd()
            a("v_add_f32 v%d, v%d, v%d" % (x0, y0, x0))
            a("v_add_f32 v%d, v%d, v%d" % (x1, y1, x1))
            rnd()
        a("v_lshlrev_b32 v%d, 16, v%d" % (y0, vV + i))
        a("v_and_b32 v%d, 0xffff0000, v%d" % (y1, vV + i))
        a("v_mul_f32 v%d, v%d, v%d" % (x0, x0, y0))
        a("v_mul_f32 v%d, v%d, v%d" % (x1, x1, y1))
        a("v_cvt_pk_bf16_f32 v%d, v%d, v%d" % (U + i, x0, x1))
    for i in range(8):
        a("ds_write_b16 v%d, v%d offset:%d" % (vt + 4, U + i, UOFF + 2 * i))
        a("ds_write_b16_d16_hi v%d, v%d offset:%d" % (vt + 5, U + i, UOFF + 2 * i))
    for dlt in range(-7, 8):
        a("v_sub_u32 v%d, %d, v%d" % (x0, 2048 + dlt, vt))
        a("v_lshrrev_b32 v%d, 8, v%d" % (x1, x0))
        a("v_lshlrev_b32 v%d, 1, v%d" % (x0, x0))
        a("v_lshl_add_u32 v%d, v%d, 4, v%d" % (x0, x1, x0))
        a("v_add_u32 v%d, %d, v%d" % (x1, CST, x0))
        for r in range(8):
            i = r - dlt
            if 0 <= i < 8:
                a("ds_write_b16 v%d, v%d offset:%d" % (x0, U + i, r * RS))
                a("ds_write_b16_d16_hi v%d, v%d offset:%d" % (x1, U + i, r * RS))
    a("s_waitcnt lgkmcnt(0)")
    a("s_barrier")
    vLane, vHi, vL31, vA, vB = 110, 111, 112, 113, 114
    a("v_and_b32 v%d, 63, v%d" % (vLane, vTid))
    a("v_lshrrev_b32 v%d, 5, v%d" % (vHi, vLane))
    a("v_and_b32 v%d, 31, v%d" % (vL31, vLane))
    a("s_lshr_b32 s%d, s%d, 1" % (sT0, sW))
    a("s_mul_i32 s%d, s%d, %d" % (sT0, sT0, CST))
    a("s_and_b32 s%d, s%d, 1" % (sT1, sW))
    a("v_add_u32 v%d, v%d, v%d" % (vA, vL31, vHi))
    a("v_lshlrev_b32 v%d, 4, v%d" % (vA, vA))
    a("v_add_u32 v%d, s%d, v%d" % (vA, sT0, vA))
    a("v_lshrrev_b32 v%d, 2, v%d" % (vB, vL31))
    a("v_mul_u32_u24 v%d, %d, v%d" % (vB, RS, vB))
    a("v_and_b32 v%d, 3, v%d" % (x0, vL31))
    a("s_lshl_b32 s%d, s%d, 2" % (34, sT1))
    a("v_add_u32 v%d, s34, v%d" % (x0, x0))
    a("v_mul_u32_u24 v%d, 528, v%d" % (x1, x0))
    a("v_sub_u32 v%d, v%d, v%d" % (vB, vB, x1))
    a("v_lshl_add_u32 v%d, v%d, 4, v%d" % (vB, vHi, vB))
    a("s_add_u32 s35, s%d, %d" % (sT0, 3584 + 112))
    a("v_add_u32 v%d, s35, v%d" % (vB, vB))
    vY = 115
    a("v_lshlrev_b32 v%d, 8, v%d" % (vY, x0))
    a("v_lshl_add_u32 v%d, v%d, 5, v%d" % (vY, vHi, vY))
    a("v_lshrrev_b32 v%d, 2, v%d" % (x1, vL31))
    a("v_add_u32 v%d, v%d, v%d" % (vY, vY, x1))
    a("v_lshlrev_b32 v%d, 1, v%d" % (vY, vY))
    a("v_add_u32 v%d, s%d, v%d" % (vY, sT0, vY))
    ACC, RA, RB = 128, 144, 176
    DD = 6

    def loop(nsteps):
        def rd(n):
            a("ds_read_b128 %s, v%d offset:%d" % (vr(RA + 4 * (n % 8), 4), vA, HOFF + 32 * n))
            a("ds_read_b128 %s, v%d offset:%d" % (vr(RB + 4 * (n % 8), 4), vB, 32 * n + 16 * (n >> 4)))
        for n in range(DD):
            rd(n)
        for n in range(nsteps):
            a("s_waitcnt lgkmcnt(%d)" % (2 * min(DD - 1, nsteps - 1 - n)))
            acc = vr(ACC, 16)
            a("v_mfma_f32_32x32x16_bf16 %s, %s, %s, %s" % (acc, vr(RA + 4 * (n % 8), 4), vr(RB + 4 * (n % 8), 4), "0" if n == 0 else acc))
            if n + DD < nsteps:
                rd(n + DD)
    a("s_cmp_eq_u32 s%d, 1" % sT1)
    a("s_cbranch_scc1 L_conv_nt1")
    loop(65)
    a("s_branch L_conv_join")
    a.label("L_conv_nt1")
    loop(129)
    a.label("L_conv_join")
    a("s_nop 15")
    for g in range(4):
        for e in range(0, 4, 2):
            r = ACC + 4 * g + e
            a("v_cvt_pk_bf16_f32 v%d, v%d, v%d" % (p, r, r + 1))
            a("ds_write_b16 v%d, v%d offset:%d" % (vY, p, YOFF + 16 * (8 * g + e)))
            a("ds_write_b16_d16_hi v%d, v%d offset:%d" % (vY, p, YOFF + 16 * (8 * g + e + 1)))
    a("s_waitcnt lgkmcnt(0)")
    a("s_barrier")
    a("v_lshlrev_b32 v%d, 4, v%d" % (vt + 4, vTid))
    a("v_add_u32 v%d, %d, v%d" % (vt + 5, CST, vt + 4))
    a("ds_read_b128 v[64:67], v%d offset:%d" % (vt + 4, YOFF))
    a("ds_read_b128 v[68:71], v%d offset:%d" % (vt + 4, UOFF))
    a("ds_read_b128 v[72:75], v%d offset:%d" % (vt + 5, YOFF))
    a("ds_read_b128 v[76:79], v%d offset:%d" % (vt + 5, UOFF))
    a("s_waitcnt lgkmcnt(0)")
    for c in range(2):
        Y, Uu = 64 + 8 * c, 68 + 8 * c
        for i in range(4):
            a("v_lshlrev_b32 v%d, 16, v%d" % (x0, Uu + i))
            a("v_and_b32 v%d, 0xffff0000, v%d" % (x1, Uu + i))
            a("v_mul_f32 v%d, s%d, v%d" % (x0, sDD + c, x0))
            a("v_mul_f32 v%d, s%d, v%d" % (x1, sDD + c, x1))
            rnd()
            a("v_lshlrev_b32 v%d, 16, v%d" % (y0, Y + i))
            a("v_and_b32 v%d, 0xffff0000, v%d" % (y1, Y + i))
            a("v_add_f32 v%d, v%d, v%d" % (x0, x0, y0))
            a("v_add_f32 v%d, v%d, v%d" % (x1, x1, y1))
            a("v_cvt_pk_bf16_f32 v%d, v%d, v%d" % (Y + i, x0, x1))
        a("s_add_u32 s%d, s%d, %d" % (sT0, sD0, c))
        a("s_lshl_b32 s%d, s%d, 12" % (sT0, sT0))
        a("buffer_store_dwordx4 %s, v%d, %s, s%d offen" % (vr(Y, 4), vt + 4, sr(SY, 4), sT0))
    a.label("L_conv_end")
    a("s_endpgm")
    return kernel_desc(name, 208, 208)


def gen_final(a):
    name = "final_kernel"
    kernel_begin(a, name)
    SX, SG, SP, SY, SO = 4, 8, 12, 16, 20
    sW, sRow, sT0 = 24, 25, 26
    a("s_cmp_ge_u32 s2, 512")
    a("s_cbranch_scc1 L_fin_end")
    a("s_load_dwordx2 s[40:41], s[0:1], %d" % KA['A_q'])
    a("s_load_dwordx2 s[42:43], s[0:1], %d" % KA['gate_w'])
    a("s_load_dwordx2 s[44:45], s[0:1], %d" % KA['ws'])
    a("s_load_dwordx2 s[46:47], s[0:1], %d" % KA['out'])
    a("v_lshrrev_b32 v1, 6, v0")
    a("v_and_b32 v0, 63, v0")
    a("s_nop 0")
    a("v_readfirstlane_b32 s%d, v1" % sW)
    a("s_lshl_b32 s%d, s2, 2" % sRow)
    a("s_add_u32 s%d, s%d, s%d" % (sRow, sRow, sW))
    a("s_waitcnt lgkmcnt(0)")
    make_srd(a, SX, 40, 41, 2048 * 896)
    make_srd(a, SG, 42, 43, 896)
    a("s_add_u32 s48, s44, 0x%x" % WS_PART)
    a("s_addc_u32 s49, s45, 0")
    make_srd(a, SP, 48, 49, 16 * PART_SZ)
    a("s_add_u32 s48, s44, 0x%x" % WS_A)
    a("s_addc_u32 s49, s45, 0")
    make_srd(a, SY, 48, 49, 448 * 4096)
    make_srd(a, SO, 46, 47, 2048 * 896)
    a("v_cmp_gt_u32 vcc, 56, v0")
    a("s_and_saveexec_b64 s[30:31], vcc")
    vX, vG, vYy, vPp = 4, 8, 12, 32
    a("v_lshlrev_b32 v1, 4, v0")
    a("s_mul_i32 s%d, s%d, 896" % (sT0, sRow))
    a("buffer_load_dwordx4 %s, v1, %s, s%d offen" % (vr(vX, 4), sr(SX, 4), sT0))
    a("buffer_load_dwordx4 %s, v1, %s, 0 offen" % (vr(vG, 4), sr(SG, 4)))
    a("v_lshlrev_b32 v2, 15, v0")
    a("s_lshl_b32 s%d, s%d, 1" % (sT0, sRow))
    for i in range(8):
        a("s_add_u32 s27, s%d, %d" % (sT0, i * 4096))
        a("buffer_load_ushort v%d, v2, %s, s27 offen" % (vYy + i, sr(SY, 4)))
    a("v_lshlrev_b32 v3, 5, v0")
    a("s_mul_i32 s%d, s%d, 1792" % (sT0, sRow))
    for h in range(16):
        a("buffer_load_dwordx4 %s, v3, %s, s%d offen" % (vr(vPp + 8 * h, 4), sr(SP, 4), sT0))
        a("buffer_load_dwordx4 %s, v3, %s, s%d offen offset:16" % (vr(vPp + 8 * h + 4, 4), sr(SP, 4), sT0))
        a("s_add_u32 s%d, s%d, %d" % (sT0, sT0, PART_SZ))
    a("s_waitcnt vmcnt(40)")
    XF = 160
    x0, x1, p, z = 20, 21, 22, 23
    a("v_mov_b32 v%d, 0" % z)
    for i in range(4):
        a("v_lshlrev_b32 v%d, 16, v%d" % (XF + 2 * i, vX + i))
        a("v_and_b32 v%d, 0xffff0000, v%d" % (XF + 2 * i + 1, vX + i))
        a("v_lshlrev_b32 v%d, 16, v%d" % (x0, vG + i))
        a("v_and_b32 v%d, 0xffff0000, v%d" % (x1, vG + i))
        a("v_mul_f32 v%d, v%d, v%d" % (x0, x0, XF + 2 * i))
        a("v_mul_f32 v%d, v%d, v%d" % (x1, x1, XF + 2 * i + 1))
        a("v_cvt_pk_bf16_f32 v%d, v%d, v%d" % (p, x0, x1))
        a("v_lshlrev_b32 v%d, 16, v%d" % (x0, p))
        a("v_and_b32 v%d, 0xffff0000, v%d" % (x1, p))
        a("v_add_f32 v%d, v%d, v%d" % (z, z, x0))
        a("v_add_f32 v%d, v%d, v%d" % (z, z, x1))
    a("s_mov_b64 exec, s[30:31]")
    a("v_cmp_gt_u32 vcc, 56, v0")
    a("s_nop 1")
    a("v_cndmask_b32 v%d, 0, v%d, vcc" % (z, z))
    for off in (0x041F, 0x081F, 0x101F, 0x201F, 0x401F):
        a("ds_swizzle_b32 v%d, v%d offset:0x%x" % (x0, z, off))
        a("s_waitcnt lgkmcnt(0)")
        a("v_add_f32 v%d, v%d, v%d" % (z, z, x0))
    a("v_mov_b32 v%d, v%d" % (x0, z))
    a("s_nop 1")
    a("v_permlane32_swap_b32 v%d, v%d" % (x0, z))
    a("v_add_f32 v%d, v%d, v%d" % (z, z, x0))
    a("s_and_saveexec_b64 s[30:31], vcc")
    g, omg = 24, 25
    a("v_cvt_pk_bf16_f32 v%d, v%d, v%d" % (p, z, z))
    a("v_lshlrev_b32 v%d, 16, v%d" % (z, p))
    a("v_mul_f32 v%d, 0x%08x, v%d" % (z, f32bits(-LOG2E), z))
    a("v_exp_f32 v%d, v%d" % (z, z))
    a("s_nop 0")
    a("v_add_f32 v%d, 1.0, v%d" % (z, z))
    a("v_rcp_f32 v%d, v%d" % (z, z))
    a("s_nop 0")
    a("v_cvt_pk_bf16_f32 v%d, v%d, v%d" % (p, z, z))
    a("v_lshlrev_b32 v%d, 16, v%d" % (g, p))
    a("v_sub_f32 v%d, 1.0, v%d" % (z, g))
    a("v_cvt_pk_bf16_f32 v%d, v%d, v%d" % (p, z, z))
    a("v_lshlrev_b32 v%d, 16, v%d" % (omg, p))
    a("s_waitcnt vmcnt(32)")
    GA = 168
    for i in range(0, 8, 2):
        a("v_lshlrev_b32 v%d, 16, v%d" % (x0, vYy + i))
        a("v_lshlrev_b32 v%d, 16, v%d" % (x1, vYy + i + 1))
        a("v_mul_f32 v%d, v%d, v%d" % (x0, x0, XF + i))
        a("v_mul_f32 v%d, v%d, v%d" % (x1, x1, XF + i + 1))
        a("v_cvt_pk_bf16_f32 v%d, v%d, v%d" % (p, x0, x1))
        a("v_lshlrev_b32 v%d, 16, v%d" % (x0, p))
        a("v_and_b32 v%d, 0xffff0000, v%d" % (x1, p))
        a("v_mul_f32 v%d, v%d, v%d" % (x0, x0, g))
        a("v_mul_f32 v%d, v%d, v%d" % (x1, x1, g))
        a("v_cvt_pk_bf16_f32 v%d, v%d, v%d" % (p, x0, x1))
        a("v_lshlrev_b32 v%d, 16, v%d" % (GA + i, p))
        a("v_and_b32 v%d, 0xffff0000, v%d" % (GA + i + 1, p))
    for h in range(1, 16):
        a("s_waitcnt vmcnt(%d)" % (30 - 2 * h))
        for i in range(8):
            a("v_add_f32 v%d, v%d, v%d" % (vPp + i, vPp + i, vPp + 8 * h + i))
    OUTR = 176
    for i in range(0, 8, 2):
        a("v_cvt_pk_bf16_f32 v%d, v%d, v%d" % (p, vPp + i, vPp + i + 1))
        a("v_lshlrev_b32 v%d, 16, v%d" % (x0, p))
        a("v_and_b32 v%d, 0xffff0000, v%d" % (x1, p))
        a("v_mul_f32 v%d, v%d, v%d" % (x0, x0, omg))
        a("v_mul_f32 v%d, v%d, v%d" % (x1, x1, omg))
        a("v_cvt_pk_bf16_f32 v%d, v%d, v%d" % (p, x0, x1))
        a("v_lshlrev_b32 v%d, 16, v%d" % (x0, p))
        a("v_and_b32 v%d, 0xffff0000, v%d" % (x1, p))
        a("v_add_f32 v%d, v%d, v%d" % (x0, x0, GA + i))
        a("v_add_f32 v%d, v%d, v%d" % (x1, x1, GA + i + 1))
        a("v_cvt_pk_bf16_f32 v%d, v%d, v%d" % (OUTR + i // 2, x0, x1))
    a("s_mul_i32 s%d, s%d, 896" % (sT0, sRow))
    a("buffer_store_dwordx4 %s, v1, %s, s%d offen" % (vr(OUTR, 4), sr(SO, 4), sT0))
    a.label("L_fin_end")
    a("s_endpgm")
    return kernel_desc(name, 184, 184)


def f32bits(x):
    import struct
    return struct.unpack("<I", struct.pack("<f", x))[0]


def main():
    a = Asm()
    launches = []
    descs = []
    launches.append("; @launch kernel=proj_kernel grid=(384,1,1) block=(256,1,1) lds=139264")
    body = Asm()
    descs.append(gen_proj(body))
    launches.append("; @launch kernel=attn_kernel grid=(256,1,1) block=(256,1,1) lds=131072")
    descs.append(gen_attn(body))
    launches.append("; @launch kernel=conv_kernel grid=(224,1,1) block=(256,1,1) lds=122880")
    descs.append(gen_conv(body))
    launches.append("; @launch kernel=final_kernel grid=(512,1,1) block=(256,1,1) lds=0")
    descs.append(gen_final(body))
    hdr = "\n".join(launches) + "\n" + '.amdgcn_target "amdgcn-amd-amdhsa--gfx950"\n'
    with open(OUT, "w") as f:
        f.write(hdr + body.text() + "".join(descs))
    print("wrote", OUT, len(body.lines), "lines")


if __name__ == "__main__":
    main()
```

```python
import sys, os

OUT = os.environ.get("GEN_OUT", "gated_mix__ssm_conv_h3__compressed_kv_cla__prompt.s")

KA = dict(A_q=0, A_k=8, A_v=16, shift_k=24, ssm_k=32, ssm_D=40, B_x=48, c_kv=56, w_q=64,
          w_uk=72, w_uv=80, w_o=88, gate_w=96, out=104, dbg=112, ws=120)
MB = 1 << 20
WS_Q = 0
WS_K = 16 * MB
WS_VT = 32 * MB
WS_PART = 48 * MB
PART_SZ = 2048 * 448 * 4
WS_A = 160 * MB
WS_ML = 170 * MB
WS_UT = 174 * MB
WS_GT = 172 * MB


class Asm:
    def __init__(self):
        self.lines = []
        self.n = 0

    def __call__(self, s):
        self.lines.append("    " + s)

    def label(self, l):
        self.lines.append(l + ":")

    def c(self, s):
        self.lines.append("    ; " + s)

    def raw(self, s):
        self.lines.append(s)

    def text(self):
        return "\n".join(self.lines) + "\n"


def vr(b, n):
    return "v[%d:%d]" % (b, b + n - 1)


def ar(b, n):
    return "a[%d:%d]" % (b, b + n - 1)


def sr(b, n):
    return "s[%d:%d]" % (b, b + n - 1)


def kernel_begin(a, name):
    a.raw(".text")
    a.raw(".globl %s" % name)
    a.raw(".p2align 8")
    a.raw(".type %s,@function" % name)
    a.label(name)


def kernel_desc(name, vgpr, accum, sgpr=102):
    return """.section .rodata,"a"
.p2align 6
.amdhsa_kernel %s
  .amdhsa_next_free_vgpr %d
  .amdhsa_next_free_sgpr %d
  .amdhsa_accum_offset %d
  .amdhsa_group_segment_fixed_size 0
  .amdhsa_kernarg_size 128
  .amdhsa_user_sgpr_count 2
  .amdhsa_user_sgpr_kernarg_segment_ptr 1
  .amdhsa_system_sgpr_workgroup_id_x 1
.end_amdhsa_kernel
""" % (name, vgpr, sgpr, accum)


def make_srd(a, d, lo, hi, nbytes):
    a("s_mov_b32 s%d, s%d" % (d, lo))
    a("s_and_b32 s%d, s%d, 0xffff" % (d + 1, hi))
    a("s_mov_b32 s%d, 0x%x" % (d + 2, nbytes))
    a("s_mov_b32 s%d, 0x00020000" % (d + 3))


def interleave(main, fill, start=0, per=1):
    out = []
    fi = 0
    for i, m in enumerate(main):
        out.append(m)
        if i >= start:
            for _ in range(per):
                if fi < len(fill):
                    out.append(fill[fi])
                    fi += 1
    out.extend(fill[fi:])
    return out


def gen_ujob(a, sW, sT0, sT1):
    SK, SV, SS, SU = 60, 64, 68, 72
    a("s_load_dwordx2 s[76:77], s[0:1], %d" % KA['A_k'])
    a("s_load_dwordx2 s[78:79], s[0:1], %d" % KA['A_v'])
    a("s_load_dwordx2 s[80:81], s[0:1], %d" % KA['shift_k'])
    a("s_load_dwordx2 s[82:83], s[0:1], %d" % KA['ws'])
    a("s_waitcnt lgkmcnt(0)")
    make_srd(a, SK, 76, 77, 2048 * 896)
    make_srd(a, SV, 78, 79, 2048 * 896)
    make_srd(a, SS, 80, 81, 448 * 8)
    a("s_add_u32 s82, s82, 0x%x" % WS_UT)
    a("s_addc_u32 s83, s83, 0")
    make_srd(a, SU, 82, 83, 448 * 4096)
    vL, vo, vs = 106, 107, 108
    KR, VR, SR = 110, 130, 138
    KF, VF, SF = 154, 194, 210
    x0, x1, y0, y1, p = 242, 243, 244, 245, 246
    OUT = 248
    a("v_mbcnt_lo_u32_b32 v%d, -1, 0" % vL)
    a("v_mbcnt_hi_u32_b32 v%d, -1, v%d" % (vL, vL))
    a("v_cmp_gt_u32 vcc, 56, v%d" % vL)
    a("s_and_saveexec_b64 s[84:85], vcc")
    a("s_lshl_b32 s%d, s2, 3" % sT0)
    a("s_lshl_b32 s%d, s%d, 1" % (sT1, sW))
    a("s_add_u32 s86, s%d, s%d" % (sT0, sT1))
    a("v_lshlrev_b32 v%d, 4, v%d" % (vo, vL))
    for i in range(3):
        a("s_sub_u32 s%d, s86, %d" % (sT0, 3 - i))
        a("s_mul_i32 s%d, s%d, 896" % (sT0, sT0))
        a("v_add_u32 v%d, s%d, v%d" % (vs, sT0, vo))
        a("buffer_load_dwordx4 %s, v%d, %s, 0 offen" % (vr(KR + 4 * i, 4), vs, sr(SK, 4)))
    a("s_mul_i32 s%d, s86, 896" % sT0)
    a("buffer_load_dwordx4 %s, v%d, %s, s%d offen" % (vr(KR + 12, 4), vo, sr(SK, 4), sT0))
    a("buffer_load_dwordx4 %s, v%d, %s, s%d offen offset:896" % (vr(KR + 16, 4), vo, sr(SK, 4), sT0))
    a("buffer_load_dwordx4 %s, v%d, %s, s%d offen" % (vr(VR, 4), vo, sr(SV, 4), sT0))
    a("buffer_load_dwordx4 %s, v%d, %s, s%d offen offset:896" % (vr(VR + 4, 4), vo, sr(SV, 4), sT0))
    a("v_lshlrev_b32 v%d, 6, v%d" % (vs, vL))
    for i in range(4):
        a("buffer_load_dwordx4 %s, v%d, %s, 0 offen offset:%d" % (vr(SR + 4 * i, 4), vs, sr(SS, 4), 16 * i))
    a("s_waitcnt vmcnt(0)")
    for i in range(20):
        a("v_lshlrev_b32 v%d, 16, v%d" % (KF + 2 * i, KR + i))
        a("v_and_b32 v%d, 0xffff0000, v%d" % (KF + 2 * i + 1, KR + i))
    for i in range(8):
        a("v_lshlrev_b32 v%d, 16, v%d" % (VF + 2 * i, VR + i))
        a("v_and_b32 v%d, 0xffff0000, v%d" % (VF + 2 * i + 1, VR + i))
    for i in range(16):
        a("v_lshlrev_b32 v%d, 16, v%d" % (SF + 2 * i, SR + i))
        a("v_and_b32 v%d, 0xffff0000, v%d" % (SF + 2 * i + 1, SR + i))

    def rnd():
        a("v_cvt_pk_bf16_f32 v%d, v%d, v%d" % (p, x0, x1))
        a("v_lshlrev_b32 v%d, 16, v%d" % (x0, p))
        a("v_and_b32 v%d, 0xffff0000, v%d" % (x1, p))
    for c in range(8):
        kf = lambda row: KF + 8 * row + c
        sk = lambda j: SF + 4 * c + j
        a("v_mul_f32 v%d, v%d, v%d" % (x0, kf(0), sk(3)))
        a("v_mul_f32 v%d, v%d, v%d" % (x1, kf(1), sk(3)))
        rnd()
        for j in range(1, 4):
            a("v_mov_b32 v%d, v%d" % (y0, x0))
            a("v_mov_b32 v%d, v%d" % (y1, x1))
            a("v_mul_f32 v%d, v%d, v%d" % (x0, kf(j), sk(3 - j)))
            a("v_mul_f32 v%d, v%d, v%d" % (x1, kf(j + 1), sk(3 - j)))
            rnd()
            a("v_add_f32 v%d, v%d, v%d" % (x0, y0, x0))
            a("v_add_f32 v%d, v%d, v%d" % (x1, y1, x1))
            rnd()
        a("v_mul_f32 v%d, v%d, v%d" % (x0, x0, VF + c))
        a("v_mul_f32 v%d, v%d, v%d" % (x1, x1, VF + 8 + c))
        a("v_cvt_pk_bf16_f32 v%d, v%d, v%d" % (OUT + c, x0, x1))
    a("v_lshlrev_b32 v%d, 15, v%d" % (vs, vL))
    a("s_lshl_b32 s%d, s86, 1" % sT0)
    for c in range(8):
        a("s_add_u32 s%d, s%d, %d" % (sT1, sT0, c * 4096))
        a("buffer_store_dword v%d, v%d, %s, s%d offen" % (OUT + c, vs, sr(SU, 4), sT1))
    a("s_mov_b64 exec, s[84:85]")


def gen_proj(a):
    name = "proj_kernel"
    kernel_begin(a, name)
    SA, SB, SO = 4, 8, 12
    SA2, SB2, SO2 = 48, 52, 56
    sW, sM0, sKA, sKB, sCnt, sMode = 16, 17, 18, 19, 20, 21
    sMb, sNb, sNq, sT0, sT1, sNt, sMq, sKA2, sKB2, sSt = 22, 23, 24, 25, 26, 27, 28, 29, 30, 31
    a("s_cmp_ge_u32 s2, 256")
    a("s_cbranch_scc1 L_proj_end")
    a("s_load_dwordx2 s[32:33], s[0:1], %d" % KA['A_q'])
    a("s_load_dwordx2 s[34:35], s[0:1], %d" % KA['c_kv'])
    a("s_load_dwordx2 s[36:37], s[0:1], %d" % KA['w_q'])
    a("s_load_dwordx2 s[38:39], s[0:1], %d" % KA['w_uk'])
    a("s_load_dwordx2 s[40:41], s[0:1], %d" % KA['w_uv'])
    a("s_load_dwordx2 s[42:43], s[0:1], %d" % KA['ws'])
    a("v_lshrrev_b32 v1, 6, v0")
    a("v_and_b32 v0, 63, v0")
    a("s_nop 0")
    a("v_readfirstlane_b32 s%d, v1" % sW)
    a("s_and_b32 s%d, s2, 7" % sT0)
    a("s_lshr_b32 s%d, s2, 3" % sT1)
    a("s_and_b32 s%d, s%d, 7" % (sMb, sT1))
    a("s_lshr_b32 s%d, s%d, 3" % (sT1, sT1))
    a("s_lshl_b32 s%d, s%d, 2" % (sT0, sT0))
    a("s_add_u32 s%d, s%d, s%d" % (sNt, sT0, sT1))
    a("s_lshl_b32 s%d, s%d, 8" % (sMb, sMb))
    a("s_waitcnt lgkmcnt(0)")
    make_srd(a, SA, 34, 35, 2048 * 2048)
    a("s_cmp_ge_u32 s%d, 16" % sNt)
    a("s_cselect_b32 s44, s40, s38")
    a("s_cselect_b32 s45, s41, s39")
    a("s_cselect_b32 s%d, 1, 0" % sMode)
    make_srd(a, SB, 44, 45, 1024 * 8192)
    a("s_and_b32 s%d, s%d, 15" % (sNb, sNt))
    a("s_lshl_b32 s%d, s%d, 8" % (sNb, sNb))
    a("s_lshl_b32 s%d, s%d, 24" % (sT0, sMode))
    a("s_add_u32 s%d, s%d, 0x%x" % (sT0, sT0, WS_K))
    a("s_add_u32 s46, s42, s%d" % sT0)
    a("s_addc_u32 s47, s43, 0")
    make_srd(a, SO, 46, 47, 16 * MB)
    make_srd(a, SA2, 32, 33, 2048 * 896)
    make_srd(a, SB2, 36, 37, 448 * 8192)
    make_srd(a, SO2, 42, 43, 16 * MB)
    a("s_lshl_b32 s%d, s%d, 7" % (sNq, sNt))
    a("s_lshl_b32 s%d, s%d, 12" % (sMq, sW))
    a("s_lshl_b32 s%d, s%d, 13" % (sM0, sW))
    for r in (sKA, sKB, sKA2, sKB2):
        a("s_mov_b32 s%d, 0" % r)

    FA = [0, 32]
    FB = [16, 48]
    vLane, vHi, vL31 = 64, 65, 66
    vOA, vOB, vRA, vRB = 68, 76, 84, 88
    vOA2, vOB2, vRB2 = 92, 100, 104
    vT = 106
    QACC = 128
    a("v_mov_b32 v%d, v0" % vLane)
    a("v_lshrrev_b32 v%d, 5, v0" % vHi)
    a("v_and_b32 v%d, 31, v0" % vL31)

    def setupA(dst, lda):
        a("v_lshrrev_b32 v%d, 3, v%d" % (vT, vLane))
        a("s_lshl_b32 s%d, s%d, 6" % (sT0, sW))
        a("s_add_u32 s%d, s%d, s%d" % (sT0, sT0, sMb))
        a("v_add_u32 v%d, s%d, v%d" % (vT, sT0, vT))
        a("v_mul_u32_u24 v%d, %d, v%d" % (vT, lda, vT))
        a("v_and_b32 v%d, 7, v%d" % (vT + 1, vLane))
        a("v_lshrrev_b32 v%d, 4, v%d" % (vT + 2, vLane))
        a("v_xor_b32 v%d, v%d, v%d" % (vT + 3, vT + 1, vT + 2))
        a("v_xor_b32 v%d, 4, v%d" % (vT + 4, vT + 3))
        a("v_lshlrev_b32 v%d, 4, v%d" % (vT + 3, vT + 3))
        a("v_lshlrev_b32 v%d, 4, v%d" % (vT + 4, vT + 4))
        for n in range(8):
            a("v_add_u32 v%d, v%d, v%d" % (dst + n, vT, vT + 3 + (n & 1)))
            if n < 7:
                a("v_add_u32 v%d, %d, v%d" % (vT, 8 * lda, vT))
    setupA(vOA, 2048)
    a("s_lshl_b32 s%d, s%d, 4" % (sT0, sW))
    a("v_add_u32 v%d, s%d, v%d" % (vT, sT0, vHi))
    a("v_lshlrev_b32 v%d, 13, v%d" % (vT, vT))
    a("s_lshl_b32 s%d, s%d, 1" % (sT0, sNb))
    a("v_add_u32 v%d, s%d, v%d" % (vT, sT0, vT))
    a("v_lshlrev_b32 v%d, 2, v%d" % (vT + 1, vHi))
    a("v_xor_b32 v%d, v%d, v%d" % (vT + 3, vL31, vT + 1))
    a("v_xor_b32 v%d, 8, v%d" % (vT + 4, vT + 3))
    a("v_lshlrev_b32 v%d, 4, v%d" % (vT + 3, vT + 3))
    a("v_lshlrev_b32 v%d, 4, v%d" % (vT + 4, vT + 4))
    for n in range(8):
        a("v_add_u32 v%d, v%d, v%d" % (vOB + n, vT, vT + 3 + (n & 1)))
        if n < 7:
            a("v_add_u32 v%d, 0x4000, v%d" % (vT, vT))

    def dmaA(q):
        l = []
        for n in range(8):
            l.append(["s_add_u32 m0, s%d, %d" % (sM0, n * 1024),
                      "buffer_load_dwordx4 v%d, %s, s%d offen lds" % ((vOA2 if q else vOA) + n, sr(SA2 if q else SA, 4), sKA2 if q else sKA)])
        l.append(["s_add_u32 s%d, s%d, 128" % ((sKA2, sKA2) if q else (sKA, sKA))])
        return l

    def dmaB(q):
        l = []
        if q:
            for n in range(4):
                l.append(["s_add_u32 m0, s%d, %d" % (sMq, 32768 + n * 1024),
                          "buffer_load_dwordx4 v%d, %s, s%d offen lds" % (vOB2 + n, sr(SB2, 4), sKB2)])
            l.append(["s_add_u32 s%d, s%d, 0x80000" % (sKB2, sKB2), "s_xor_b32 s%d, s%d, 0x10000" % (sM0, sM0), "s_xor_b32 s%d, s%d, 0x10000" % (sMq, sMq)])
        else:
            for n in range(8):
                l.append(["s_add_u32 m0, s%d, %d" % (sM0, 32768 + n * 1024),
                          "buffer_load_dwordx4 v%d, %s, s%d offen lds" % (vOB + n, sr(SB, 4), sKB)])
            l.append(["s_add_u32 s%d, s%d, 0x80000" % (sKB, sKB), "s_xor_b32 s%d, s%d, 0x10000" % (sM0, sM0)])
        return l

    def flat(l):
        o = []
        for x in l:
            o.extend(x)
        return o
    for x in flat(dmaA(False) + dmaB(False) + dmaA(False)):
        a(x)
    setupA(vOA2, 896)
    a("v_lshrrev_b32 v%d, 4, v%d" % (vT + 1, vLane))
    a("s_lshl_b32 s%d, s%d, 4" % (sT0, sW))
    a("v_add_u32 v%d, s%d, v%d" % (vT, sT0, vT + 1))
    a("v_lshlrev_b32 v%d, 13, v%d" % (vT, vT))
    a("s_lshl_b32 s%d, s%d, 1" % (sT0, sNq))
    a("v_add_u32 v%d, s%d, v%d" % (vT, sT0, vT))
    a("v_lshlrev_b32 v%d, 2, v%d" % (vT + 1, vT + 1))
    a("v_and_b32 v%d, 15, v%d" % (vT + 2, vLane))
    a("v_xor_b32 v%d, v%d, v%d" % (vT + 1, vT + 1, vT + 2))
    a("v_lshl_add_u32 v%d, v%d, 4, v%d" % (vT, vT + 1, vT))
    for n in range(4):
        a("v_add_u32 v%d, %d, v%d" % (vOB2 + n, n * 0x8000, vT))
    a("s_and_b32 s%d, s%d, 1" % (sT0, sW))
    a("s_lshr_b32 s%d, s%d, 1" % (sT1, sW))
    a("s_lshl_b32 s%d, s%d, 14" % (sT0, sT0))
    a("v_lshlrev_b32 v%d, 7, v%d" % (vT, vL31))
    a("v_add_u32 v%d, s%d, v%d" % (vT, sT0, vT))
    a("v_bfe_u32 v%d, v%d, 1, 3" % (vT + 1, vLane))
    a("v_xor_b32 v%d, v%d, v%d" % (vT + 1, vT + 1, vHi))
    for ks in range(4):
        a("v_xor_b32 v%d, %d, v%d" % (vT + 2, 2 * ks, vT + 1))
        a("v_lshl_add_u32 v%d, v%d, 4, v%d" % (vRA + ks, vT + 2, vT))
    a("v_bfe_u32 v%d, v%d, 2, 2" % (vT, vLane))
    a("v_lshl_add_u32 v%d, v%d, 3, v%d" % (vT + 1, vHi, vT))
    a("v_bfe_u32 v%d, v%d, 4, 1" % (vT + 2, vLane))
    a("v_lshlrev_b32 v%d, 5, v%d" % (vT + 3, vT + 2))
    a("v_bfe_u32 v%d, v%d, 1, 1" % (vT + 2, vLane))
    a("v_lshl_add_u32 v%d, v%d, 4, v%d" % (vT + 3, vT + 2, vT + 3))
    a("v_and_b32 v%d, 1, v%d" % (vT + 2, vLane))
    a("v_lshl_add_u32 v%d, v%d, 3, v%d" % (vT + 3, vT + 2, vT + 3))
    a("v_add_u32 v%d, 0x8000, v%d" % (vT + 3, vT + 3))
    a("v_lshl_add_u32 v%d, v%d, 9, v%d" % (vT + 4, vT + 1, vT + 3))
    a("s_lshl_b32 s%d, s%d, 8" % (sT0, sT1))
    a("v_add_u32 v%d, s%d, v%d" % (vT + 4, sT0, vT + 4))
    for nt in range(4):
        a("v_xor_b32 v%d, %d, v%d" % (vT + 2, nt, vT))
        a("v_lshl_add_u32 v%d, v%d, 6, v%d" % (vRB + nt, vT + 2, vT + 4))
    a("v_lshl_add_u32 v%d, v%d, 8, v%d" % (vT + 4, vT + 1, vT + 3))
    a("s_lshl_b32 s%d, s%d, 1" % (sT1, sT1))
    for nt in range(2):
        a("v_mov_b32 v%d, s%d" % (vT + 5, sT1))
        a("v_add_u32 v%d, %d, v%d" % (vT + 5, nt, vT + 5))
        a("v_xor_b32 v%d, v%d, v%d" % (vT + 2, vT + 5, vT))
        a("v_lshl_add_u32 v%d, v%d, 6, v%d" % (vRB2 + nt, vT + 2, vT + 4))

    def frag_reads(st, ks, q):
        A = ["ds_read_b128 %s, v%d offset:%d" % (vr(FA[st] + 4 * mt, 4), vRA + ks, mt * 4096) for mt in range(4)]
        B = []
        pitch = 256 if q else 512
        for nt in range(2 if q else 4):
            for j in range(2):
                B.append("ds_read_b64_tr_b16 %s, v%d offset:%d" % (vr(FB[st] + 4 * nt + 2 * j, 2), (vRB2 if q else vRB) + nt, (ks * 16 + j * 4) * pitch))
        if q:
            return [A[0], B[0], B[1], B[2], B[3], A[1], A[2], A[3]]
        return [A[0], B[0], B[1], B[2], B[3], A[1], B[4], B[5], B[6], B[7], A[2], A[3]]

    def mfmas(st, mode, q, first):
        l = []
        nn = 2 if q else 4
        for mt in range(4):
            for nt in range(nn):
                acc = vr(QACC + (mt * nn + nt) * 16, 16) if q else ar((mt * nn + nt) * 16, 16)
                A = vr(FA[st] + 4 * mt, 4)
                B = vr(FB[st] + 4 * nt, 4)
                c = "0" if first else acc
                if q or mode == 0:
                    l.append("v_mfma_f32_32x32x16_bf16 %s, %s, %s, %s" % (acc, B, A, c))
                else:
                    l.append("v_mfma_f32_32x32x16_bf16 %s, %s, %s, %s" % (acc, A, B, c))
        return l

    def tog(regs):
        return ["v_xor_b32 v%d, 0x10000, v%d" % (r, r) for r in regs]

    def weave(mf, reads, groups, extra=()):
        n = len(mf)
        slots = [[] for _ in range(n)]
        for i, r in enumerate(reads):
            slots[min(n - 1, i * n // len(reads) if len(reads) > n else i)].append(r)
        for i, g in enumerate(groups):
            slots[min(n - 1, (i * n) // max(1, len(groups)))].extend(g)
        for i, g in enumerate(extra):
            slots[min(n - 1, (i * n) // max(1, len(extra)))].append(g)
        out = []
        for i in range(n):
            out.append(mf[i])
            out.extend(slots[i])
        return out

    def body(out, mode, q, h2, h1, nxt, first=False, nextq=None, extras=None):
        if nextq is None:
            nextq = q
        ex = extras or [[], [], [], []]
        for ks in range(3):
            out.append("s_waitcnt lgkmcnt(0)")
            out.extend(weave(mfmas(ks & 1, mode, q, first and ks == 0), frag_reads((ks + 1) & 1, ks + 1, q), h2 if ks == 0 else [], ex[ks]))
        out.append("s_waitcnt lgkmcnt(0)")
        rd = []
        if nxt:
            out.append("VMWAIT")
            out.append("s_barrier")
            regs = list(range(vRA, vRA + 4))
            if nextq == q:
                regs += list(range(vRB2, vRB2 + 2)) if q else list(range(vRB, vRB + 4))
            rd = tog(regs) + frag_reads(0, 0, nextq)
        out.extend(weave(mfmas(1, mode, q, False), rd, h1, ex[3]))

    def flush(out):
        cnt = 0
        for x in out:
            if x == "VMWAIT":
                a("s_waitcnt vmcnt(%d)" % cnt)
                continue
            if x.startswith("buffer_load") and x.endswith("lds"):
                cnt = 0
            elif x.startswith("buffer_"):
                cnt += 1
            a(x)

    def kv_epilogue_stream(mode):
        TB, RB = 68, 88
        return None

    def stamp(i):
        if os.environ.get("EXP_STAMP"):
            a("s_memtime s[%d:%d]" % (88 + 2 * i, 89 + 2 * i) if i < 7 else "s_memrealtime s[60:61]")
    stamp(0)
    if os.environ.get("EXP_STAMP"):
        a("s_memrealtime s[100:101]")
    gen_ujob(a, sW, sT0, sT1)
    a("s_waitcnt vmcnt(16)")
    a("s_barrier")
    stamp(1)
    for x in frag_reads(0, 0, False):
        a(x)
    a("s_cmp_eq_u32 s%d, 1" % sMode)
    a("s_cbranch_scc1 L_proj_m1")
    for mode in range(2):
        if mode:
            a.label("L_proj_m1")
        o = []
        body(o, mode, False, dmaB(False), dmaA(False), True, first=True)
        flush(o)
        a("s_mov_b32 s%d, 13" % sCnt)
        a.label("L_proj_loop%d" % mode)
        o = []
        body(o, mode, False, dmaB(False), dmaA(False), True)
        flush(o)
        a("s_sub_u32 s%d, s%d, 1" % (sCnt, sCnt))
        a("s_cmp_lg_u32 s%d, 0" % sCnt)
        a("s_cbranch_scc1 L_proj_loop%d" % mode)
        o = []
        body(o, mode, False, dmaB(False), dmaA(True), True)
        body(o, mode, False, dmaB(True), dmaA(True), True, nextq=True)
        flush(o)
        stamp(2)
        TBS = [68, 74, 122]
        vw, vrd, vo, vx = 88, 89, 90, 91
        RB = 106
        pre = []
        pre.append("s_and_b32 s%d, s%d, 1" % (sT0, sW))
        pre.append("s_lshr_b32 s%d, s%d, 1" % (sT1, sW))
        pre.append("s_lshl_b32 s%d, s%d, 7" % (sT0, sT0))
        pre.append("s_lshl_b32 s%d, s%d, 7" % (sT1, sT1))
        pre.append("s_add_u32 s%d, s%d, s%d" % (sT0, sT0, sMb))
        pre.append("s_add_u32 s%d, s%d, s%d" % (sT1, sT1, sNb))
        pre.append("s_lshl_b32 s%d, s%d, 13" % (sSt, sW))
        pre.append("s_add_u32 s%d, s%d, 0x20000" % (sSt, sSt))
        pre.append("v_and_b32 v%d, 15, v%d" % (vw, vL31))
        if mode == 1:
            pre.append("v_xor_b32 v%d, v%d, v%d" % (vw, vw, vHi))
        pre.append("v_lshlrev_b32 v%d, 4, v%d" % (vw, vw))
        pre.append("v_lshl_add_u32 v%d, v%d, 8, v%d" % (vw, vL31, vw))
        if mode == 0:
            pre.append("v_lshl_add_u32 v%d, v%d, 3, v%d" % (vw, vHi, vw))
        pre.append("v_add_u32 v%d, s%d, v%d" % (vw, sSt, vw))
        pre.append("v_lshrrev_b32 v%d, 4, v%d" % (vrd, vLane))
        pre.append("v_and_b32 v%d, 15, v%d" % (vo, vLane))
        pre.append("v_xor_b32 v%d, v%d, v%d" % (vx, vrd, vo))
        pre.append("v_lshlrev_b32 v%d, 4, v%d" % (vx, vx))
        pre.append("v_lshl_add_u32 v%d, v%d, 8, v%d" % (vx, vrd, vx))
        rs = 13 if mode == 0 else 12
        r0, c0 = (sT0, sT1) if mode == 0 else (sT1, sT0)
        pre.append("v_add_u32 v%d, s%d, v%d" % (vrd, r0, vrd))
        pre.append("v_lshlrev_b32 v%d, %d, v%d" % (vrd, rs, vrd))
        pre.append("v_lshl_add_u32 v%d, v%d, 4, v%d" % (vo, vo, vrd))
        pre.append("s_lshl_b32 s%d, s%d, 1" % (c0, c0))
        pre.append("v_add_u32 v%d, s%d, v%d" % (vo, c0, vo))
        pre.append("v_add_u32 v%d, s%d, v%d" % (vrd, sSt, vx))
        segs = [[] for _ in range(28)]
        segs[0].extend(pre)
        k = 0
        for r in range(4):
            wr = []
            for u in range(16):
                o2, g = u // 4, u % 4
                mt, nt = (r, o2) if mode == 0 else (o2, r)
                t = TBS[k % 3]
                k += 1
                base = (mt * 4 + nt) * 16 + 4 * g
                for e in range(4):
                    wr.append("v_accvgpr_read_b32 v%d, a%d" % (t + e, base + e))
                wr.append("v_cvt_pk_bf16_f32 v%d, v%d, v%d" % (t + 4, t, t + 1))
                wr.append("v_cvt_pk_bf16_f32 v%d, v%d, v%d" % (t + 5, t + 2, t + 3))
                if mode == 0:
                    wr.append("v_xor_b32 v%d, %d, v%d" % (t, 16 * (4 * nt + g), vw))
                    wr.append("ds_write_b64 v%d, %s" % (t, vr(t + 4, 2)))
                else:
                    wr.append("v_xor_b32 v%d, %d, v%d" % (t, 16 * (4 * mt + 2 * (g >> 1)), vw))
                    wr.append("ds_write_b64 v%d, %s offset:%d" % (t, vr(t + 4, 2), 8 * (g & 1)))
            s0 = 1 + 6 * r
            for i, x in enumerate(wr):
                segs[s0 + i * 4 // len(wr)].append(x)
            for hf in range(2):
                rd, st = [], []
                for i in range(4):
                    ii = 4 * hf + i
                    rd.append("v_xor_b32 v%d, %d, v%d" % (vx, 16 * ((4 * ii) & 15), vrd))
                    rd.append("ds_read_b128 %s, v%d offset:%d" % (vr(RB + 4 * i, 4), vx, ii * 1024))
                    st.append("s_mov_b32 s%d, %d" % (sCnt, (32 * r + 4 * ii) << rs))
                    st.append("buffer_store_dwordx4 %s, v%d, %s, s%d offen" % (vr(RB + 4 * i, 4), vo, sr(SO, 4), sCnt))
                segs[s0 + 4 + hf].extend(rd)
                segs[s0 + 5 + hf] = st + segs[s0 + 5 + hf]
        o = []
        for tl in range(7):
            body(o, mode, True, dmaB(True) if tl + 1 < 7 else [], dmaA(True) if tl + 2 < 7 else [], tl + 1 < 7,
                 first=(tl == 0), extras=segs[4 * tl:4 * tl + 4])
        flush(o)
        stamp(3)
        stamp(4)
        a("s_barrier")
        a("s_nop 7")
        a("s_and_b32 s%d, s%d, 1" % (sT0, sW))
        a("s_lshr_b32 s%d, s%d, 1" % (sT1, sW))
        a("s_lshl_b32 s%d, s%d, 7" % (sT0, sT0))
        a("s_lshl_b32 s%d, s%d, 6" % (sT1, sT1))
        a("s_add_u32 s%d, s%d, s%d" % (sT0, sT0, sMb))
        a("s_add_u32 s%d, s%d, s%d" % (sT1, sT1, sNq))
        a("s_mul_i32 s%d, s%d, %d" % (sSt, sW, 128 * 144))
        a("v_mul_u32_u24 v%d, 144, v%d" % (vw, vL31))
        a("v_lshl_add_u32 v%d, v%d, 3, v%d" % (vw, vHi, vw))
        a("v_add_u32 v%d, s%d, v%d" % (vw, sSt, vw))
        a("v_lshrrev_b32 v%d, 3, v%d" % (vrd, vLane))
        a("v_mul_u32_u24 v%d, 144, v%d" % (vrd, vrd))
        a("v_and_b32 v%d, 7, v%d" % (vo, vLane))
        a("v_lshl_add_u32 v%d, v%d, 4, v%d" % (vrd, vo, vrd))
        a("v_add_u32 v%d, s%d, v%d" % (vrd, sSt, vrd))
        a("v_lshrrev_b32 v%d, 3, v%d" % (vx, vLane))
        a("v_add_u32 v%d, s%d, v%d" % (vx, sT0, vx))
        a("v_lshlrev_b32 v%d, 13, v%d" % (vx, vx))
        a("v_lshl_add_u32 v%d, v%d, 4, v%d" % (vo, vo, vx))
        a("s_lshl_b32 s%d, s%d, 1" % (sT1, sT1))
        a("v_add_u32 v%d, s%d, v%d" % (vo, sT1, vo))
        k = 0
        for mt in range(4):
            for nt in range(2):
                for g in range(4):
                    t = 2 * (k % 16)
                    k += 1
                    base = QACC + (mt * 2 + nt) * 16 + 4 * g
                    a("v_cvt_pk_bf16_f32 v%d, v%d, v%d" % (t, base, base + 1))
                    a("v_cvt_pk_bf16_f32 v%d, v%d, v%d" % (t + 1, base + 2, base + 3))
                    a("ds_write_b64 v%d, %s offset:%d" % (vw, vr(t, 2), mt * 32 * 144 + 64 * nt + 16 * g))
        a("s_waitcnt lgkmcnt(0)")
        for i in range(16):
            a("ds_read_b128 %s, v%d offset:%d" % (vr(QACC + 4 * i, 4), vrd, i * 8 * 144))
        for j in range(16):
            a("s_waitcnt lgkmcnt(%d)" % (15 - j))
            a("s_mov_b32 s%d, %d" % (sT0, (j * 8) << 13))
            a("buffer_store_dwordx4 %s, v%d, %s, s%d offen" % (vr(QACC + 4 * j, 4), vo, sr(SO2, 4), sT0))
        stamp(5)
        if os.environ.get("EXP_STAMP"):
            a("s_waitcnt vmcnt(0)")
            stamp(6)
            stamp(7)
            a("s_waitcnt lgkmcnt(0)")
            a("s_mov_b32 s62, s100")
            a("s_mov_b32 s63, s101")
            a("s_add_u32 s64, s42, 0x%x" % (200 * MB))
            a("s_addc_u32 s65, s43, 0")
            make_srd(a, 68, 64, 65, MB)
            for i in range(14):
                a("v_mov_b32 v%d, s%d" % (8 + i, 88 + i))
            for i in range(4):
                a("v_mov_b32 v%d, s%d" % (24 + i, 60 + i))
            a("s_lshl_b32 s66, s2, 7")
            a("v_mov_b32 v40, 0")
            a("s_nop 4")
            for i in range(5):
                a("buffer_store_dwordx4 v[%d:%d], v40, s[68:71], s66 offen offset:%d" % (8 + 4 * i, 11 + 4 * i, 16 * i))
        a("s_endpgm")
    a.label("L_proj_end")
    a("s_endpgm")
    return kernel_desc(name, 512, 256)


LOG2E = 1.4426950408889634
PART2_ROWS = 768
WS_PART2 = WS_PART + 16 * PART_SZ
PART_TOTAL = 16 * PART_SZ + 16 * PART2_ROWS * 1792
RESC_T = 8.0


def cost(x):
    if x.startswith("v_exp") or x.startswith("v_rcp"):
        return 8
    if x.startswith("buffer_load"):
        return 12
    if x.startswith("s_nop"):
        return 4 * (int(x.split()[1]) + 1)
    return 4


def spread(fills, nslots, budget):
    out = {}
    slot = 0
    acc = 0
    for x in fills:
        if isinstance(x, list):
            c = sum(cost(y) for y in x)
        else:
            c = cost(x)
        if acc + c > budget and acc > 0 and slot < nslots - 1:
            slot += 1
            acc = 0
        out.setdefault(slot, []).extend(x if isinstance(x, list) else [x])
        acc += c
    return out


def gen_attn(a):
    name = "attn_kernel"
    kernel_begin(a, name)
    SQ, SK, SV, SWO, SP, SML = 4, 8, 12, 16, 20, 56
    sW, sH, sQb, sCnt, sKo, sVo, sT0, sT1, sMK, sC = 24, 25, 26, 27, 28, 29, 30, 31, 32, 34
    sStart, sNp, sPart, sItem2, sPoff, sWoff, sThr = 35, 36, 37, 38, 39, 48, 49
    sCmp = 40
    a("s_cmp_ge_u32 s2, 256")
    a("s_cbranch_scc1 L_attn_end")
    a("s_load_dwordx2 s[50:51], s[0:1], %d" % KA['ws'])
    a("s_load_dwordx2 s[52:53], s[0:1], %d" % KA['w_o'])
    a("v_lshrrev_b32 v1, 6, v0")
    a("v_and_b32 v0, 63, v0")
    a("s_nop 0")
    a("v_readfirstlane_b32 s%d, v1" % sW)
    a("s_and_b32 s%d, s2, 7" % sT0)
    a("s_lshl_b32 s%d, s%d, 1" % (sT0, sT0))
    a("s_bfe_u32 s%d, s2, 0x10003" % sT1)
    a("s_add_u32 s%d, s%d, s%d" % (sH, sT0, sT1))
    a("s_lshr_b32 s%d, s2, 4" % sT0)
    a("s_waitcnt lgkmcnt(0)")
    make_srd(a, SQ, 50, 51, 16 * MB)
    a("s_add_u32 s54, s50, 0x%x" % WS_K)
    a("s_addc_u32 s55, s51, 0")
    make_srd(a, SK, 54, 55, 16 * MB)
    a("s_add_u32 s54, s50, 0x%x" % WS_VT)
    a("s_addc_u32 s55, s51, 0")
    make_srd(a, SV, 54, 55, 16 * MB)
    make_srd(a, SWO, 52, 53, 16 * 256 * 448 * 2)
    a("s_add_u32 s54, s50, 0x%x" % WS_PART)
    a("s_addc_u32 s55, s51, 0")
    make_srd(a, SP, 54, 55, 32 * MB)
    a("s_add_u32 s54, s50, 0x%x" % WS_ML)
    a("s_addc_u32 s55, s51, 0")
    make_srd(a, SML, 54, 55, 2 * 16 * 2048 * 8)
    a("s_mov_b32 s%d, 0x%08x" % (sC, f32bits(LOG2E / 16.0)))
    a("s_mov_b32 s%d, 0x%08x" % (sThr, f32bits(RESC_T * 16.0 / LOG2E)))
    a("s_mov_b32 s%d, -1" % sItem2)
    a("s_mov_b32 s%d, 0" % sStart)
    a("s_mov_b32 s%d, 0" % sPart)
    a("s_cmp_ge_u32 s%d, 6" % sT0)
    a("s_cbranch_scc1 L_attn_r6")
    a("s_sub_u32 s%d, 15, s%d" % (sQb, sT0))
    a("s_mov_b32 s%d, 9" % sNp)
    a("s_branch L_attn_item")
    a.label("L_attn_r6")
    a("s_cmp_ge_u32 s%d, 12" % sT0)
    a("s_cbranch_scc1 L_attn_r12")
    a("s_sub_u32 s%d, s%d, 6" % (sItem2, sT0))
    a("s_sub_u32 s%d, 15, s%d" % (sQb, sItem2))
    a("s_mov_b32 s%d, 20" % sStart)
    a("s_sub_u32 s%d, 5, s%d" % (sNp, sItem2))
    a("s_mov_b32 s%d, 1" % sPart)
    a("s_branch L_attn_item")
    a.label("L_attn_r12")
    a("s_sub_u32 s%d, 21, s%d" % (sQb, sT0))
    a("s_cmp_lt_u32 s%d, 14" % sT0)
    a("s_cbranch_scc1 L_attn_r12b")
    a("s_sub_u32 s%d, s%d, 8" % (sQb, sT0))
    a.label("L_attn_r12b")
    a("s_mov_b32 s%d, s%d" % (sNp, sQb))

    O, S0, S1, P, T = 0, 128, 160, 192, 208
    vm, vl, vq, vNeg = 220, 221, 222, 223
    vKR, vVR, vOK, vOV = 224, 232, 236, 244
    vLane, vHi, vL31, vmc = 252, 253, 254, 255
    QA, RING = 0, 64
    Sx = [S0, S1]
    t = T
    a.label("L_attn_item")
    def stamp(i):
        if os.environ.get("EXP_STAMP2"):
            a("s_memtime s[%d:%d]" % (64 + 2 * i, 65 + 2 * i))
    stamp(0)
    a("v_mbcnt_lo_u32_b32 v%d, -1, 0" % vLane)
    a("v_mbcnt_hi_u32_b32 v%d, -1, v%d" % (vLane, vLane))
    a("v_lshrrev_b32 v%d, 5, v%d" % (vHi, vLane))
    a("v_and_b32 v%d, 31, v%d" % (vL31, vLane))
    a("s_lshl_b32 s%d, s%d, 7" % (sT0, sQb))
    a("s_lshl_b32 s%d, s%d, 5" % (sT1, sW))
    a("s_add_u32 s%d, s%d, s%d" % (sT0, sT0, sT1))
    a("v_add_u32 v%d, s%d, v%d" % (t, sT0, vL31))
    a("v_lshlrev_b32 v%d, 13, v%d" % (t, t))
    a("v_lshl_add_u32 v%d, v%d, 4, v%d" % (t, vHi, t))
    a("s_lshl_b32 s%d, s%d, 9" % (sT1, sH))
    for j in range(16):
        a("buffer_load_dwordx4 %s, v%d, %s, s%d offen offset:%d" % (ar(QA + 4 * j, 4), t, sr(SQ, 4), sT1, 32 * j))
    a("s_lshl_b32 s%d, s%d, 1" % (sT0, sNp))
    a("s_add_u32 s%d, s%d, s%d" % (sT0, sT0, sStart))
    a("s_lshl_b32 s%d, s%d, 1" % (sT1, sQb))
    a("s_sub_u32 s%d, s%d, s%d" % (sT0, sT1, sT0))
    a("s_lshl_b32 s%d, s%d, 6" % (sT0, sT0))
    a("s_lshl_b32 s%d, s%d, 5" % (sT1, sW))
    a("s_add_u32 s%d, s%d, s%d" % (sT0, sT0, sT1))
    a("v_add_u32 v%d, s%d, v%d" % (vq, sT0, vL31))
    a("v_lshlrev_b32 v%d, 2, v%d" % (t + 1, vHi))
    a("v_sub_u32 v%d, v%d, v%d" % (vq, vq, t + 1))
    a("v_mov_b32 v%d, 0x%08x" % (vNeg, f32bits(-1.6e10)))
    a("v_mov_b32 v%d, 0x%08x" % (vm, f32bits(-1e30)))
    a("v_mov_b32 v%d, 0" % vl)
    a("v_mov_b32 v%d, 0" % vmc)
    a("s_lshl_b32 s%d, s%d, 4" % (sT0, sW))
    a("s_lshl_b32 s%d, s%d, 9" % (sT1, sH))
    for n in range(8):
        a("v_add_u32 v%d, %d, v%d" % (t, 2 * n, vHi))
        a("v_xor_b32 v%d, v%d, v%d" % (t + 1, t, vL31))
        a("v_add_u32 v%d, s%d, v%d" % (t, sT0, t))
        a("v_lshlrev_b32 v%d, 13, v%d" % (t, t))
        a("v_lshl_add_u32 v%d, v%d, 4, v%d" % (t, t + 1, t))
        a("v_add_u32 v%d, s%d, v%d" % (vOK + n, sT1, t))
    a("s_lshl_b32 s%d, s%d, 8" % (sT0, sH))
    a("s_lshl_b32 s%d, s%d, 6" % (sT1, sW))
    a("s_add_u32 s%d, s%d, s%d" % (sT0, sT0, sT1))
    a("v_lshrrev_b32 v%d, 3, v%d" % (t, vLane))
    a("v_add_u32 v%d, s%d, v%d" % (t, sT0, t))
    a("v_lshlrev_b32 v%d, 12, v%d" % (t, t))
    a("v_and_b32 v%d, 7, v%d" % (t + 1, vLane))
    a("v_lshrrev_b32 v%d, 4, v%d" % (t + 2, vLane))
    a("v_xor_b32 v%d, v%d, v%d" % (t + 1, t + 1, t + 2))
    a("v_xor_b32 v%d, 4, v%d" % (t + 2, t + 1))
    a("v_lshlrev_b32 v%d, 4, v%d" % (t + 1, t + 1))
    a("v_lshlrev_b32 v%d, 4, v%d" % (t + 2, t + 2))
    for n in range(8):
        a("v_add_u32 v%d, v%d, v%d" % (vOV + n, t, t + 1 + (n & 1)))
        if n < 7:
            a("v_add_u32 v%d, 0x8000, v%d" % (t, t))
    a("v_and_b32 v%d, 15, v%d" % (t, vLane))
    a("v_xor_b32 v%d, v%d, v%d" % (t, t, vHi))
    a("v_lshlrev_b32 v%d, 9, v%d" % (t + 1, vL31))
    for j in range(8):
        a("v_xor_b32 v%d, %d, v%d" % (t + 2, 2 * j, t))
        a("v_lshl_add_u32 v%d, v%d, 4, v%d" % (vKR + j, t + 2, t + 1))
    a("v_bfe_u32 v%d, v%d, 1, 3" % (t, vLane))
    a("v_xor_b32 v%d, v%d, v%d" % (t, t, vHi))
    a("v_lshlrev_b32 v%d, 7, v%d" % (t + 1, vL31))
    a("v_add_u32 v%d, 0x10000, v%d" % (t + 1, t + 1))
    for kk in range(4):
        a("v_xor_b32 v%d, %d, v%d" % (t + 2, 2 * kk, t))
        a("v_lshl_add_u32 v%d, v%d, 4, v%d" % (vVR + kk, t + 2, t + 1))
    a("s_lshl_b32 s%d, s%d, 13" % (sMK, sW))
    a("s_lshl_b32 s%d, s%d, 19" % (sKo, sStart))
    a("s_lshl_b32 s%d, s%d, 7" % (sVo, sStart))

    def dmaK(buf):
        l = []
        for n in range(8):
            l.append(["s_add_u32 m0, s%d, %d" % (sMK, buf * 32768 + n * 1024),
                      "buffer_load_dwordx4 v%d, %s, s%d offen lds" % (vOK + n, sr(SK, 4), sKo)])
        l.append("s_add_u32 s%d, s%d, 0x80000" % (sKo, sKo))
        return l

    def dmaV(buf):
        l = []
        for n in range(8):
            l.append(["s_add_u32 m0, s%d, %d" % (sMK, 65536 + buf * 32768 + n * 1024),
                      "buffer_load_dwordx4 v%d, %s, s%d offen lds" % (vOV + n, sr(SV, 4), sVo)])
        l.append("s_add_u32 s%d, s%d, 128" % (sVo, sVo))
        return l

    def flat(l):
        o = []
        for x in l:
            o.extend(x if isinstance(x, list) else [x])
        return o

    def qk_items(buf, sset):
        it = []
        for jd in range(16):
            for kt in range(2):
                rd = "ds_read_b128 %%s, v%d offset:%d" % (vKR + (jd & 7), buf * 32768 + kt * 16384 + (jd >> 3) * 256)
                acc = vr(Sx[sset] + 16 * kt, 16)
                mf = "v_mfma_f32_32x32x16_bf16 %s, %%s, %s, %s" % (acc, ar(QA + 4 * jd, 4), "0" if jd == 0 else acc)
                it.append((rd, mf))
        return it

    def pv_items(buf):
        it = []
        for kk in range(4):
            for dt in range(8):
                rd = "ds_read_b128 %%s, v%d offset:%d" % (vVR + kk, buf * 32768 + dt * 4096)
                acc = vr(O + 16 * dt, 16)
                mf = "v_mfma_f32_32x32x16_bf16 %s, %%s, %s, %s" % (acc, vr(P + 4 * kk, 4), acc)
                it.append((rd, mf))
        return it

    D = 6
    uid = [0]
    rare = []

    def sm_max(sset, masked, tblk):
        S = Sx[sset]
        l = []
        if masked:
            idx = []
            for kt in range(2):
                for g in range(4):
                    for e in range(4):
                        idx.append((S + 16 * kt + 4 * g + e, 32 * kt + 8 * g + e + 64 * tblk))
            for i, (r, cst) in enumerate(idx):
                if cst <= 64:
                    l.append("v_cmp_gt_i32 %s, %d, v%d" % (sr(sCmp + 2 * (i % 4), 2), cst, vq))
                else:
                    l.append(["s_mov_b32 s%d, %d" % (sT0, cst),
                              "v_cmp_gt_i32 %s, s%d, v%d" % (sr(sCmp + 2 * (i % 4), 2), sT0, vq)])
                if i >= 3:
                    r2 = idx[i - 3][0]
                    l.append("v_cndmask_b32 v%d, v%d, v%d, %s" % (r2, r2, vNeg, sr(sCmp + 2 * ((i - 3) % 4), 2)))
            l.append("s_nop 1")
            for i in range(len(idx) - 3, len(idx)):
                r2 = idx[i][0]
                l.append("v_cndmask_b32 v%d, v%d, v%d, %s" % (r2, r2, vNeg, sr(sCmp + 2 * (i % 4), 2)))
        for c in range(4):
            b = S + 8 * c
            l.append("v_max3_f32 v%d, v%d, v%d, v%d" % (T + c, b, b + 1, b + 2))
        for c in range(4):
            b = S + 8 * c
            l.append("v_max3_f32 v%d, v%d, v%d, v%d" % (T + c, T + c, b + 3, b + 4))
        for c in range(4):
            b = S + 8 * c
            l.append("v_max3_f32 v%d, v%d, v%d, v%d" % (T + c, T + c, b + 5, b + 6))
        l.append("v_max3_f32 v%d, v%d, v%d, v%d" % (T, T, S + 7, S + 15))
        l.append("v_max3_f32 v%d, v%d, v%d, v%d" % (T + 2, T + 2, S + 23, S + 31))
        l.append("v_max3_f32 v%d, v%d, v%d, v%d" % (T, T, T + 1, T + 3))
        l.append("v_max_f32 v%d, v%d, v%d" % (T, T, T + 2))
        uid[0] += 1
        lab = "L_attn_rs%d" % uid[0]
        l.append(["v_mov_b32 v%d, v%d" % (T + 1, T), "s_nop 1", "v_permlane32_swap_b32 v%d, v%d" % (T, T + 1),
                  "v_max_f32 v%d, v%d, v%d" % (T, T, T + 1),
                  "v_sub_f32 v%d, v%d, v%d" % (T + 1, T, vm),
                  "v_cmp_lt_f32 vcc, s%d, v%d" % (sThr, T + 1), "s_nop 4",
                  "s_cbranch_vccnz %s" % lab, "LABEL " + lab + "_ret"])
        r = ["LABEL " + lab,
             "v_max_f32 v%d, v%d, v%d" % (T, T, vm),
             "v_sub_f32 v%d, v%d, v%d" % (T + 1, vm, T),
             "v_mul_f32 v%d, s%d, v%d" % (T + 1, sC, T + 1),
             "v_exp_f32 v%d, v%d" % (T + 1, T + 1),
             "v_mov_b32 v%d, v%d" % (vm, T),
             "v_mul_f32 v%d, s%d, v%d" % (vmc, sC, T),
             "v_mul_f32 v%d, v%d, v%d" % (vl, vl, T + 1)]
        for i in range(128):
            r.append("v_mul_f32 v%d, v%d, v%d" % (O + i, O + i, T + 1))
        r.append("s_branch " + lab + "_ret")
        rare.extend(r)
        return l

    def sm_grp(sset, kk):
        S = Sx[sset] + 8 * kk
        l = []
        for i in range(8):
            l.append("v_fma_f32 v%d, v%d, s%d, -v%d" % (S + i, S + i, sC, vmc))
        for i in range(8):
            l.append("v_exp_f32 v%d, v%d" % (S + i, S + i))
        l.append("v_add_f32 v%d, v%d, v%d" % (T + 4, S, S + 1))
        l.append("v_add_f32 v%d, v%d, v%d" % (T + 5, S + 2, S + 3))
        l.append("v_cvt_pk_bf16_f32 v%d, v%d, v%d" % (P + 4 * kk, S, S + 1))
        l.append("v_cvt_pk_bf16_f32 v%d, v%d, v%d" % (P + 4 * kk + 1, S + 2, S + 3))
        l.append("v_add_f32 v%d, v%d, v%d" % (T + 4, T + 4, S + 4))
        l.append("v_add_f32 v%d, v%d, v%d" % (T + 5, T + 5, S + 5))
        l.append("v_cvt_pk_bf16_f32 v%d, v%d, v%d" % (P + 4 * kk + 2, S + 4, S + 5))
        l.append("v_add_f32 v%d, v%d, v%d" % (T + 4, T + 4, S + 6))
        l.append("v_add_f32 v%d, v%d, v%d" % (T + 5, T + 5, S + 7))
        l.append("v_cvt_pk_bf16_f32 v%d, v%d, v%d" % (P + 4 * kk + 3, S + 6, S + 7))
        l.append("v_add_f32 v%d, v%d, v%d" % (vl, vl, T + 4))
        l.append("v_add_f32 v%d, v%d, v%d" % (vl, vl, T + 5))
        return l

    def emit(x):
        if x.startswith("LABEL "):
            a.label(x[6:])
        else:
            a(x)

    def run_stream(items, fills, pre=None):
        n = len(items)
        for i in range(min(D, n)):
            a(items[i][0] % ar(RING + 4 * (i % 8), 4))
        for x in (pre or []):
            emit(x)
        for i in range(n):
            a("s_waitcnt lgkmcnt(%d)" % min(D - 1, n - 1 - i))
            a(items[i][1] % ar(RING + 4 * (i % 8), 4))
            if i + D < n:
                a(items[i + D][0] % ar(RING + 4 * ((i + D) % 8), 4))
            for x in fills.get(i, []):
                emit(x)

    BUD = int(os.environ.get("ATT_BUD", "18"))

    def iteration(par, masked, tblk, dK, dV, doqk):
        a("s_waitcnt vmcnt(0)")
        if not os.environ.get("EXP_A_NOBAR"):
            a("s_barrier")
        dma = (dmaK(par) if dK else []) + (dmaV(par ^ 1) if dV else [])
        if os.environ.get("EXP_A_NODMA"):
            dma = []
        if doqk:
            items = qk_items(par ^ 1, par ^ 1) + pv_items(par)
            seq = sm_max(par, masked, tblk) + sm_grp(par, 0) + sm_grp(par, 1) + sm_grp(par, 2) + sm_grp(par, 3)
            if os.environ.get("EXP_A_NOSM"):
                seq = [x for x in seq if not isinstance(x, list) and x.startswith("v_cvt_pk")]
            if dma:
                nfirst = len(sm_max.__name__) * 0 + 40
                merged = []
                di = 0
                for i, x in enumerate(seq):
                    while di < len(dma) and di * nfirst <= i * len(dma):
                        merged.append(dma[di]); di += 1
                    merged.append(x)
                merged.extend(dma[di:])
                seq = merged
            bud = BUD
            while True:
                fl = spread(seq, 64, bud)
                ok = True
                for kk in range(4):
                    last = "v_cvt_pk_bf16_f32 v%d," % (P + 4 * kk + 3)
                    sl = [sidx for sidx, v in fl.items() if any(y.startswith(last) for y in v)][0]
                    if sl > 32 + 8 * kk - 2:
                        ok = False
                if ok:
                    break
                bud += 2
            run_stream(items, fl)
        else:
            items = pv_items(par)
            pre = flat(dma + sm_max(par, masked, tblk) + sm_grp(par, 0)) + ["s_nop 1"]
            seq = sm_grp(par, 1) + sm_grp(par, 2) + sm_grp(par, 3)
            fl = spread(seq, 32, 28)
            for kk in range(1, 4):
                last = "v_cvt_pk_bf16_f32 v%d," % (P + 4 * kk + 3)
                sl = [sidx for sidx, v in fl.items() if any(y.startswith(last) for y in v)][0]
                assert sl <= 8 * kk - 2, (kk, sl)
            run_stream(items, fl, pre)

    for x in flat(dmaK(0) + dmaV(0) + dmaK(1)):
        a(x)
    for i in range(128):
        a("v_mov_b32 v%d, 0" % (O + i))
    a("s_waitcnt vmcnt(16)")
    a("s_barrier")
    stamp(1)
    run_stream(qk_items(0, 0), {})
    a("s_nop 15")
    stamp(2)
    a("s_mov_b32 s%d, s%d" % (sCnt, sNp))
    a("s_cmp_eq_u32 s%d, 0" % sCnt)
    a("s_cbranch_scc1 L_attn_tail")
    a.label("L_attn_loop")
    iteration(0, False, 0, True, True, True)
    iteration(1, False, 0, True, True, True)
    a("s_sub_u32 s%d, s%d, 1" % (sCnt, sCnt))
    a("s_cmp_lg_u32 s%d, 0" % sCnt)
    a("s_cbranch_scc1 L_attn_loop")
    a.label("L_attn_tail")
    stamp(3)
    iteration(0, True, 0, False, True, True)
    iteration(1, True, 1, False, False, False)
    stamp(4)

    a("s_nop 15")
    a("v_mov_b32 v%d, v%d" % (T, vl))
    a("s_nop 1")
    a("v_permlane32_swap_b32 v%d, v%d" % (T, vl))
    a("v_add_f32 v%d, v%d, v%d" % (T + 1, T, vl))
    a("v_rcp_f32 v%d, v%d" % (T + 2, T + 1))
    a("v_mov_b32 v%d, v%d" % (T, vmc))
    a("s_lshl_b32 s%d, s%d, 4" % (sT0, sPart))
    a("s_add_u32 s%d, s%d, s%d" % (sT0, sT0, sH))
    a("s_lshl_b32 s%d, s%d, 11" % (sT0, sT0))
    a("s_lshl_b32 s%d, s%d, 7" % (sT1, sQb))
    a("s_add_u32 s%d, s%d, s%d" % (sT0, sT0, sT1))
    a("s_lshl_b32 s%d, s%d, 5" % (sT1, sW))
    a("s_add_u32 s%d, s%d, s%d" % (sT0, sT0, sT1))
    a("s_lshl_b32 s%d, s%d, 3" % (sT0, sT0))
    a("v_lshlrev_b32 v%d, 3, v%d" % (T + 3, vL31))
    a("buffer_store_dwordx2 %s, v%d, %s, s%d offen" % (vr(T, 2), T + 3, sr(SML, 4), sT0))
    stamp(5)
    vTw, vTr, vPo = T + 4, T + 5, T + 6
    a("s_lshl_b32 s%d, s%d, 13" % (sT0, sW))
    a("s_add_u32 s%d, s%d, 0x20000" % (sT0, sT0))
    a("v_lshlrev_b32 v%d, 8, v%d" % (vTw, vL31))
    a("v_lshl_add_u32 v%d, v%d, 3, v%d" % (vTw, vHi, vTw))
    a("v_add_u32 v%d, s%d, v%d" % (vTw, sT0, vTw))
    a("v_and_b32 v%d, 15, v%d" % (T + 7, vL31))
    a("v_lshlrev_b32 v%d, 4, v%d" % (T + 7, T + 7))
    a("v_lshrrev_b32 v%d, 4, v%d" % (vTr, vLane))
    a("v_and_b32 v%d, 15, v%d" % (vPo, vLane))
    a("s_lshl_b32 s%d, s%d, 7" % (sT1, sQb))
    a("s_lshl_b32 s%d, s%d, 5" % (sPoff, sW))
    a("s_add_u32 s%d, s%d, s%d" % (sT1, sT1, sPoff))
    a("s_lshl_b32 s%d, s%d, 13" % (sT1, sT1))
    a("s_lshl_b32 s%d, s%d, 9" % (sPoff, sH))
    a("s_add_u32 s%d, s%d, s%d" % (sT1, sT1, sPoff))
    a("s_lshl_b32 s%d, s%d, 24" % (sPoff, sPart))
    a("s_add_u32 s%d, s%d, s%d" % (sPoff, sPoff, sT1))
    a("v_lshlrev_b32 v%d, 13, v%d" % (T + 8, vTr))
    a("v_lshl_add_u32 v%d, v%d, 4, v%d" % (T + 8, vPo, T + 8))
    for hf in range(2):
        k = 0
        for dt in range(4):
            for g in range(4):
                r = O + 16 * (4 * hf + dt) + 4 * g
                c = P + 2 * (k % 8)
                k += 1
                for e in range(4):
                    a("v_mul_f32 v%d, v%d, v%d" % (r + e, r + e, T + 2))
                a("v_cvt_pk_bf16_f32 v%d, v%d, v%d" % (c, r, r + 1))
                a("v_cvt_pk_bf16_f32 v%d, v%d, v%d" % (c + 1, r + 2, r + 3))
                a("v_xor_b32 v%d, %d, v%d" % (T + 9, 16 * (4 * dt + g), T + 7))
                a("v_add_u32 v%d, v%d, v%d" % (T + 9, T + 9, vTw))
                a("ds_write_b64 v%d, %s" % (T + 9, vr(c, 2)))
        a("s_waitcnt lgkmcnt(0)")
        for i in range(8):
            a("v_add_u32 v%d, %d, v%d" % (T + 9, 4 * i, vTr))
            a("v_and_b32 v%d, 15, v%d" % (T + 10, T + 9))
            a("v_xor_b32 v%d, v%d, v%d" % (T + 10, T + 10, vPo))
            a("v_lshlrev_b32 v%d, 8, v%d" % (T + 9, T + 9))
            a("v_lshl_add_u32 v%d, v%d, 4, v%d" % (T + 9, T + 10, T + 9))
            a("v_add_u32 v%d, s%d, v%d" % (T + 9, sT0, T + 9))
            a("ds_read_b128 %s, v%d" % (vr(S0 + 4 * i, 4), T + 9))
        for i in range(8):
            a("s_waitcnt lgkmcnt(%d)" % (7 - i))
            a("s_add_u32 s%d, s%d, %d" % (sT1, sPoff, i * 4 * 8192 + hf * 256))
            a("buffer_store_dwordx4 %s, v%d, %s, s%d offen" % (vr(S0 + 4 * i, 4), T + 8, sr(SP, 4), sT1))
    stamp(6)
    stamp(7)
    if os.environ.get("EXP_STAMP2"):
        a("s_waitcnt vmcnt(0)")
        a("s_memtime s[80:81]")
        a("s_memrealtime s[82:83]")
        a("s_waitcnt lgkmcnt(0)")
        a("s_add_u32 s84, s50, 0x%x" % (200 * MB))
        a("s_addc_u32 s85, s51, 0")
        make_srd(a, 88, 84, 85, MB)
        for i in range(20):
            a("v_mov_b32 v%d, s%d" % (8 + i, 64 + i))
        a("s_lshl_b32 s86, s2, 8")
        a("s_lshl_b32 s87, s%d, 7" % sPart)
        a("s_add_u32 s86, s86, s87")
        a("v_mov_b32 v40, 0")
        a("s_nop 4")
        for i in range(5):
            a("buffer_store_dwordx4 v[%d:%d], v40, s[88:91], s86 offen offset:%d" % (8 + 4 * i, 11 + 4 * i, 16 * i))
    a("s_cmp_lt_i32 s%d, 0" % sItem2)
    a("s_cbranch_scc1 L_attn_end")
    a("s_mov_b32 s%d, s%d" % (sQb, sItem2))
    a("s_mov_b32 s%d, s%d" % (sNp, sItem2))
    a("s_mov_b32 s%d, 0" % sStart)
    a("s_mov_b32 s%d, 0" % sPart)
    a("s_mov_b32 s%d, -1" % sItem2)
    a("s_barrier")
    a("s_branch L_attn_item")
    a.label("L_attn_end")
    a("s_endpgm")
    for x in rare:
        emit(x)
    return kernel_desc(name, 512, 256)


SPLIT_ROW = 1280

def gen_rowwork(a):
    SX, SG, SC, SML, SGT = 60, 64, 68, 72, 76
    sW, sT0, sT1, sR = 80, 81, 82, 83
    a("s_load_dwordx2 s[84:85], s[0:1], %d" % KA['A_q'])
    a("s_load_dwordx2 s[86:87], s[0:1], %d" % KA['gate_w'])
    a("s_load_dwordx2 s[88:89], s[0:1], %d" % KA['ws'])
    a("v_lshrrev_b32 v1, 6, v0")
    a("s_nop 0")
    a("v_readfirstlane_b32 s%d, v1" % sW)
    a("s_waitcnt lgkmcnt(0)")
    make_srd(a, SX, 84, 85, 2048 * 896)
    make_srd(a, SG, 86, 87, 896)
    a("s_add_u32 s90, s88, 0x%x" % WS_PART)
    a("s_addc_u32 s91, s89, 0")
    make_srd(a, SC, 90, 91, 32 * MB)
    a("s_add_u32 s90, s88, 0x%x" % WS_ML)
    a("s_addc_u32 s91, s89, 0")
    make_srd(a, SML, 90, 91, 2 * 16 * 2048 * 8)
    a("s_add_u32 s90, s88, 0x%x" % WS_GT)
    a("s_addc_u32 s91, s89, 0")
    make_srd(a, SGT, 90, 91, 2048 * 8)
    vLane, vA, vB, t = 1, 2, 3, 4
    CA, CB, MLr, GX, GW = 16, 40, 64, 88, 96
    a("v_and_b32 v%d, 63, v0" % vLane)
    a("s_mul_i32 s%d, s2, 3" % sR)
    a("s_add_u32 s%d, s%d, %d" % (sR, sR, SPLIT_ROW))
    a("v_lshlrev_b32 v%d, 4, v0" % vA)
    a("v_lshrrev_b32 v%d, 5, v0" % vB)
    a("v_lshlrev_b32 v%d, 14, v%d" % (vB, vB))
    for r in range(3):
        a("s_add_u32 s%d, s%d, %d" % (sT0, sR, r))
        a("s_lshl_b32 s%d, s%d, 13" % (sT1, sT0))
        for c in range(2):
            a("buffer_load_dwordx4 %s, v%d, %s, s%d offen" % (vr(CA + 8 * r + 4 * c, 4), vA, sr(SC, 4), sT1))
            a("s_add_u32 s%d, s%d, 0x1000" % (sT1, sT1))
        a("s_add_u32 s%d, s%d, 0x%x" % (sT1, sT1, 0x1000000 - 0x2000))
        for c in range(2):
            a("buffer_load_dwordx4 %s, v%d, %s, s%d offen" % (vr(CB + 8 * r + 4 * c, 4), vA, sr(SC, 4), sT1))
            a("s_add_u32 s%d, s%d, 0x1000" % (sT1, sT1))
        a("s_lshl_b32 s%d, s%d, 3" % (sT1, sT0))
        for c in range(2):
            for part in range(2):
                a("s_add_u32 s%d, s%d, %d" % (sT0, sT1, c * 8 * 16384 + part * 16 * 16384))
                a("buffer_load_dwordx2 %s, v%d, %s, s%d offen" % (vr(MLr + 8 * r + 4 * c + 2 * part, 2), vB, sr(SML, 4), sT0))
    a("v_cmp_gt_u32 vcc, 56, v%d" % vLane)
    a("s_and_saveexec_b64 s[92:93], vcc")
    a("v_lshlrev_b32 v%d, 4, v%d" % (t, vLane))
    a("s_lshl_b32 s%d, s2, 3" % sT0)
    a("s_lshl_b32 s%d, s%d, 1" % (sT1, sW))
    a("s_add_u32 s%d, s%d, s%d" % (sT0, sT0, sT1))
    a("s_mul_i32 s%d, s%d, 896" % (sT1, sT0))
    a("buffer_load_dwordx4 %s, v%d, %s, 0 offen" % (vr(GW, 4), t, sr(SG, 4)))
    a("buffer_load_dwordx4 %s, v%d, %s, s%d offen" % (vr(GX, 4), t, sr(SX, 4), sT1))
    a("buffer_load_dwordx4 %s, v%d, %s, s%d offen offset:896" % (vr(GX + 4, 4), t, sr(SX, 4), sT1))
    a("s_waitcnt vmcnt(0)")
    Z = 100
    for r in range(2):
        z = Z + r
        a("v_mov_b32 v%d, 0" % z)
        for i in range(4):
            a("v_lshlrev_b32 v%d, 16, v%d" % (t, GX + 4 * r + i))
            a("v_and_b32 v%d, 0xffff0000, v%d" % (t + 1, GX + 4 * r + i))
            a("v_lshlrev_b32 v%d, 16, v%d" % (t + 2, GW + i))
            a("v_and_b32 v%d, 0xffff0000, v%d" % (t + 3, GW + i))
            a("v_mul_f32 v%d, v%d, v%d" % (t, t, t + 2))
            a("v_mul_f32 v%d, v%d, v%d" % (t + 1, t + 1, t + 3))
            a("v_cvt_pk_bf16_f32 v%d, v%d, v%d" % (t + 2, t, t + 1))
            a("v_lshlrev_b32 v%d, 16, v%d" % (t, t + 2))
            a("v_and_b32 v%d, 0xffff0000, v%d" % (t + 1, t + 2))
            a("v_add_f32 v%d, v%d, v%d" % (z, z, t))
            a("v_add_f32 v%d, v%d, v%d" % (z, z, t + 1))
    a("s_mov_b64 exec, s[92:93]")
    a("s_nop 1")
    for r in range(2):
        a("v_cndmask_b32 v%d, 0, v%d, vcc" % (Z + r, Z + r))
    for off in (0x041F, 0x081F, 0x101F, 0x201F, 0x401F):
        for r in range(2):
            a("ds_swizzle_b32 v%d, v%d offset:0x%x" % (Z + 2 + r, Z + r, off))
        a("s_waitcnt lgkmcnt(0)")
        for r in range(2):
            a("v_add_f32 v%d, v%d, v%d" % (Z + r, Z + r, Z + 2 + r))
    for r in range(2):
        a("v_mov_b32 v%d, v%d" % (Z + 2 + r, Z + r))
    a("s_nop 1")
    for r in range(2):
        a("v_permlane32_swap_b32 v%d, v%d" % (Z + 2 + r, Z + r))
    for r in range(2):
        a("v_add_f32 v%d, v%d, v%d" % (Z + r, Z + r, Z + 2 + r))
    a("v_cmp_eq_u32 vcc, 1, v%d" % vLane)
    a("s_nop 1")
    z, p = t, t + 1
    a("v_cndmask_b32 v%d, v%d, v%d, vcc" % (z, Z, Z + 1))
    a("v_cvt_pk_bf16_f32 v%d, v%d, v%d" % (p, z, z))
    a("v_lshlrev_b32 v%d, 16, v%d" % (z, p))
    a("v_mul_f32 v%d, 0x%08x, v%d" % (z, f32bits(-LOG2E), z))
    a("v_exp_f32 v%d, v%d" % (z, z))
    a("s_nop 0")
    a("v_add_f32 v%d, 1.0, v%d" % (z, z))
    a("v_rcp_f32 v%d, v%d" % (z, z))
    a("s_nop 0")
    a("v_cvt_pk_bf16_f32 v%d, v%d, v%d" % (p, z, z))
    a("v_lshlrev_b32 v%d, 16, v%d" % (t + 2, p))
    a("v_sub_f32 v%d, 1.0, v%d" % (z, t + 2))
    a("v_cvt_pk_bf16_f32 v%d, v%d, v%d" % (p, z, z))
    a("v_lshlrev_b32 v%d, 16, v%d" % (t + 3, p))
    a("v_lshlrev_b32 v%d, 3, v%d" % (t + 4, vLane))
    a("s_lshl_b32 s%d, s%d, 3" % (sT0, sT0))
    a("v_cmp_gt_u32 vcc, 2, v%d" % vLane)
    a("s_and_saveexec_b64 s[92:93], vcc")
    a("buffer_store_dwordx2 %s, v%d, %s, s%d offen" % (vr(t + 2, 2), t + 4, sr(SGT, 4), sT0))
    a("s_mov_b64 exec, s[92:93]")
    W = 104
    for k in range(6):
        mA, lA, mB, lB = MLr + 4 * k, MLr + 4 * k + 1, MLr + 4 * k + 2, MLr + 4 * k + 3
        a("v_max_f32 v%d, v%d, v%d" % (t, mA, mB))
        a("v_sub_f32 v%d, v%d, v%d" % (mA, mA, t))
        a("v_sub_f32 v%d, v%d, v%d" % (mB, mB, t))
        a("v_exp_f32 v%d, v%d" % (mA, mA))
        a("v_exp_f32 v%d, v%d" % (mB, mB))
        a("s_nop 0")
        a("v_mul_f32 v%d, v%d, v%d" % (mA, mA, lA))
        a("v_mul_f32 v%d, v%d, v%d" % (mB, mB, lB))
        a("v_add_f32 v%d, v%d, v%d" % (t, mA, mB))
        a("v_rcp_f32 v%d, v%d" % (t, t))
        a("s_nop 0")
        a("v_mul_f32 v%d, v%d, v%d" % (W + 2 * k, mA, t))
        a("v_mul_f32 v%d, v%d, v%d" % (W + 2 * k + 1, mB, t))
    U = 116
    for k in range(6):
        ra, rb = CA + 4 * k, CB + 4 * k
        for d in range(4):
            a("v_lshlrev_b32 v%d, 16, v%d" % (U + 4 * d, ra + d))
            a("v_and_b32 v%d, 0xffff0000, v%d" % (U + 4 * d + 1, ra + d))
            a("v_lshlrev_b32 v%d, 16, v%d" % (U + 4 * d + 2, rb + d))
            a("v_and_b32 v%d, 0xffff0000, v%d" % (U + 4 * d + 3, rb + d))
        for d in range(4):
            a("v_mul_f32 v%d, v%d, v%d" % (U + 4 * d, U + 4 * d, W + 2 * k))
            a("v_mul_f32 v%d, v%d, v%d" % (U + 4 * d + 1, U + 4 * d + 1, W + 2 * k))
        for d in range(4):
            a("v_fma_f32 v%d, v%d, v%d, v%d" % (U + 4 * d, U + 4 * d + 2, W + 2 * k + 1, U + 4 * d))
            a("v_fma_f32 v%d, v%d, v%d, v%d" % (U + 4 * d + 1, U + 4 * d + 3, W + 2 * k + 1, U + 4 * d + 1))
        for d in range(4):
            a("v_cvt_pk_bf16_f32 v%d, v%d, v%d" % (ra + d, U + 4 * d, U + 4 * d + 1))
        r, c = k // 2, k % 2
        a("s_add_u32 s%d, s%d, %d" % (sT0, sR, r))
        a("s_lshl_b32 s%d, s%d, 13" % (sT0, sT0))
        a("s_add_u32 s%d, s%d, %d" % (sT0, sT0, c * 0x1000))
        a("buffer_store_dwordx4 %s, v%d, %s, s%d offen" % (vr(ra, 4), vA, sr(SC, 4), sT0))
    a("s_nop 1")


def gen_conv(a):
    name = "conv_kernel"
    kernel_begin(a, name)
    RS = 5952
    WSZ = 8 * RS
    HOFF = WSZ
    YOFF = WSZ + 4640
    CST = 56576
    SU, SH, SY = 4, 12, 16
    sW, sD0, sT0, sT1 = 20, 21, 22, 23
    sDD = 32
    a("s_cmp_ge_u32 s2, 256")
    a("s_cbranch_scc1 L_conv_end")
    a("s_load_dwordx2 s[46:47], s[0:1], %d" % KA['ssm_k'])
    a("s_load_dwordx2 s[48:49], s[0:1], %d" % KA['ssm_D'])
    a("s_load_dwordx2 s[50:51], s[0:1], %d" % KA['ws'])
    a("v_lshrrev_b32 v1, 6, v0")
    a("s_nop 0")
    a("v_readfirstlane_b32 s%d, v1" % sW)
    a("s_lshl_b32 s%d, s2, 1" % sD0)
    a("s_waitcnt lgkmcnt(0)")
    make_srd(a, SH, 46, 47, 448 * 4096)
    a("s_add_u32 s52, s50, 0x%x" % WS_UT)
    a("s_addc_u32 s53, s51, 0")
    make_srd(a, SU, 52, 53, 448 * 4096)
    a("s_add_u32 s50, s50, 0x%x" % WS_A)
    a("s_addc_u32 s51, s51, 0")
    make_srd(a, SY, 50, 51, 448 * 4096)
    vTid = 0
    vt = 140
    H, UO, UP = 144, 152, 160
    a("v_lshlrev_b32 v%d, 4, v%d" % (vt, vTid))
    a("s_cmp_ge_u32 s2, 224")
    a("s_cbranch_scc1 L_conv_skipld")
    a("s_lshl_b32 s%d, s2, 2" % sT0)
    a("s_load_dword s56, s[48:49], s%d" % sT0)
    a("v_subrev_u32 v%d, 16, v%d" % (vt + 1, vt))
    a("v_max_i32 v%d, 0, v%d" % (vt + 1, vt + 1))
    for c in range(2):
        a("s_add_u32 s%d, s%d, %d" % (sT1, sD0, c))
        a("s_lshl_b32 s%d, s%d, 12" % (sT1, sT1))
        a("buffer_load_dwordx4 %s, v%d, %s, s%d offen" % (vr(H + 4 * c, 4), vt, sr(SH, 4), sT1))
        a("buffer_load_dwordx4 %s, v%d, %s, s%d offen" % (vr(UO + 4 * c, 4), vt, sr(SU, 4), sT1))
        a("buffer_load_dwordx4 %s, v%d, %s, s%d offen" % (vr(UP + 4 * c, 4), vt + 1, sr(SU, 4), sT1))
    for i in range(4):
        a("v_mov_b32 v%d, 0" % (168 + i))
    a("v_add_u32 v%d, %d, v%d" % (vt + 2, 14 * 4096, vt))
    for i in range(28):
        a("ds_write_b128 v%d, v[168:171] offset:%d" % (vt if i < 14 else vt + 2, (i % 14) * 4096))
    a.label("L_conv_skipld")
    gen_rowwork(a)
    a("s_cmp_ge_u32 s2, 224")
    a("s_cbranch_scc1 L_conv_end")
    a("s_waitcnt lgkmcnt(0)")
    a("s_lshl_b32 s%d, s56, 16" % sDD)
    a("s_and_b32 s%d, s56, 0xffff0000" % (sDD + 1))
    a("s_barrier")
    a("v_cmp_eq_u32 vcc, 0, v%d" % vTid)
    a("s_nop 1")
    for i in range(8):
        a("v_cndmask_b32 v%d, v%d, 0, vcc" % (UP + i, UP + i))
    a("v_add_u32 v%d, %d, v%d" % (vt + 2, CST, vt))
    a("ds_write_b128 v%d, %s offset:%d" % (vt, vr(H, 4), HOFF + 512))
    a("ds_write_b128 v%d, %s offset:%d" % (vt + 2, vr(H + 4, 4), HOFF + 512))
    x0, x1, p, y0, y1 = 104, 105, 106, 107, 108
    a("v_lshlrev_b32 v%d, 3, v%d" % (x0, vTid))
    a("v_sub_u32 v%d, 2048, v%d" % (x0, x0))
    a("v_lshrrev_b32 v%d, 8, v%d" % (x1, x0))
    a("v_lshlrev_b32 v%d, 1, v%d" % (x0, x0))
    a("v_lshl_add_u32 v%d, v%d, 4, v%d" % (x0, x1, x0))
    a("v_add_u32 v%d, %d, v%d" % (x1, CST, x0))
    a("s_mov_b32 s57, 0xffff")

    def build(prev, own, dst, r):
        d = lambda j: (prev + j) if j < 4 else (own + j - 4)
        for k in range(4):
            j = 8 + r - 2 * k
            if j & 1:
                a("v_alignbit_b32 v%d, v%d, v%d, 16" % (dst + k, d((j - 1) // 2), d((j - 1) // 2)))
            else:
                a("v_bfi_b32 v%d, s57, v%d, v%d" % (dst + k, d(j // 2), d(j // 2 - 1)))
    k = 0
    for c in range(2):
        for r in range(8):
            dst = 112 + 4 * (k % 4)
            k += 1
            build(UP + 4 * c, UO + 4 * c, dst, r)
            a("ds_write_b128 v%d, %s offset:%d" % (x0 if c == 0 else x1, vr(dst, 4), r * RS))
    a("v_cmp_eq_u32 vcc, 255, v%d" % vTid)
    a("s_and_saveexec_b64 s[58:59], vcc")
    a("v_mov_b32 v%d, 0" % y0)
    a("v_mov_b32 v%d, %d" % (y1, CST))
    for c in range(2):
        for r in range(7):
            dst = 112 + 4 * (k % 4)
            k += 1
            build(UO + 4 * c, 168, dst, r)
            a("ds_write_b128 v%d, %s offset:%d" % (y0 if c == 0 else y1, vr(dst, 4), r * RS))
    a("s_mov_b64 exec, s[58:59]")
    a("s_waitcnt lgkmcnt(0)")
    a("s_barrier")
    vLane, vHi, vL31, vA, vB, vY = 128, 129, 130, 131, 132, 133
    a("v_and_b32 v%d, 63, v%d" % (vLane, vTid))
    a("v_lshrrev_b32 v%d, 5, v%d" % (vHi, vLane))
    a("v_and_b32 v%d, 31, v%d" % (vL31, vLane))
    a("s_lshr_b32 s%d, s%d, 1" % (sT0, sW))
    a("s_mul_i32 s%d, s%d, %d" % (sT0, sT0, CST))
    a("s_and_b32 s%d, s%d, 1" % (sT1, sW))
    a("v_add_u32 v%d, v%d, v%d" % (vA, vL31, vHi))
    a("v_lshlrev_b32 v%d, 4, v%d" % (vA, vA))
    a("v_add_u32 v%d, s%d, v%d" % (vA, sT0, vA))
    a("v_lshrrev_b32 v%d, 2, v%d" % (vB, vL31))
    a("v_mul_u32_u24 v%d, %d, v%d" % (vB, RS, vB))
    a("v_and_b32 v%d, 3, v%d" % (x0, vL31))
    a("s_lshl_b32 s%d, s%d, 2" % (34, sT1))
    a("v_add_u32 v%d, s34, v%d" % (x0, x0))
    a("v_mul_u32_u24 v%d, 528, v%d" % (x1, x0))
    a("v_sub_u32 v%d, v%d, v%d" % (vB, vB, x1))
    a("v_lshl_add_u32 v%d, v%d, 4, v%d" % (vB, vHi, vB))
    a("s_add_u32 s35, s%d, %d" % (sT0, 3584 + 112))
    a("v_add_u32 v%d, s35, v%d" % (vB, vB))
    a("v_lshlrev_b32 v%d, 8, v%d" % (vY, x0))
    a("v_lshl_add_u32 v%d, v%d, 5, v%d" % (vY, vHi, vY))
    a("v_lshrrev_b32 v%d, 2, v%d" % (x1, vL31))
    a("v_add_u32 v%d, v%d, v%d" % (vY, vY, x1))
    a("v_lshlrev_b32 v%d, 1, v%d" % (vY, vY))
    a("v_add_u32 v%d, s%d, v%d" % (vY, sT0, vY))
    ACC, RA, RB = 16, 32, 64
    DD = 6

    def loop(nsteps):
        def rd(n):
            a("ds_read_b128 %s, v%d offset:%d" % (vr(RA + 4 * (n % 8), 4), vA, HOFF + 32 * n))
            a("ds_read_b128 %s, v%d offset:%d" % (vr(RB + 4 * (n % 8), 4), vB, 32 * n + 16 * (n >> 4)))
        for n in range(DD):
            rd(n)
        for n in range(nsteps):
            a("s_waitcnt lgkmcnt(%d)" % (2 * min(DD - 1, nsteps - 1 - n)))
            acc = vr(ACC, 16)
            a("v_mfma_f32_32x32x16_bf16 %s, %s, %s, %s" % (acc, vr(RA + 4 * (n % 8), 4), vr(RB + 4 * (n % 8), 4), "0" if n == 0 else acc))
            if n + DD < nsteps:
                rd(n + DD)
    a("s_cmp_eq_u32 s%d, 1" % sT1)
    a("s_cbranch_scc1 L_conv_nt1")
    loop(65)
    a("s_branch L_conv_join")
    a.label("L_conv_nt1")
    loop(129)
    a.label("L_conv_join")
    a("s_nop 15")
    for g in range(4):
        for e in range(0, 4, 2):
            r = ACC + 4 * g + e
            a("v_cvt_pk_bf16_f32 v%d, v%d, v%d" % (p, r, r + 1))
            a("ds_write_b16 v%d, v%d offset:%d" % (vY, p, YOFF + 16 * (8 * g + e)))
            a("ds_write_b16_d16_hi v%d, v%d offset:%d" % (vY, p, YOFF + 16 * (8 * g + e + 1)))
    a("s_waitcnt lgkmcnt(0)")
    a("s_barrier")
    a("ds_read_b128 v[64:67], v%d offset:%d" % (vt, YOFF))
    a("ds_read_b128 v[72:75], v%d offset:%d" % (vt + 2, YOFF))
    a("s_waitcnt lgkmcnt(0)")

    def rnd():
        a("v_cvt_pk_bf16_f32 v%d, v%d, v%d" % (p, x0, x1))
        a("v_lshlrev_b32 v%d, 16, v%d" % (x0, p))
        a("v_and_b32 v%d, 0xffff0000, v%d" % (x1, p))
    for c in range(2):
        Y, Uu = 64 + 8 * c, UO + 4 * c
        for i in range(4):
            a("v_lshlrev_b32 v%d, 16, v%d" % (x0, Uu + i))
            a("v_and_b32 v%d, 0xffff0000, v%d" % (x1, Uu + i))
            a("v_mul_f32 v%d, s%d, v%d" % (x0, sDD + c, x0))
            a("v_mul_f32 v%d, s%d, v%d" % (x1, sDD + c, x1))
            rnd()
            a("v_lshlrev_b32 v%d, 16, v%d" % (y0, Y + i))
            a("v_and_b32 v%d, 0xffff0000, v%d" % (y1, Y + i))
            a("v_add_f32 v%d, v%d, v%d" % (x0, x0, y0))
            a("v_add_f32 v%d, v%d, v%d" % (x1, x1, y1))
            a("v_cvt_pk_bf16_f32 v%d, v%d, v%d" % (Y + i, x0, x1))
        a("s_add_u32 s%d, s%d, %d" % (sT0, sD0, c))
        a("s_lshl_b32 s%d, s%d, 12" % (sT0, sT0))
        a("buffer_store_dwordx4 %s, v%d, %s, s%d offen" % (vr(Y, 4), vt, sr(SY, 4), sT0))
    a.label("L_conv_end")
    a("s_endpgm")
    return kernel_desc(name, 176, 176)


SPLIT_ROW = 1280


def gen_final(a):
    name = "final_kernel"
    kernel_begin(a, name)
    SX, SGT, SC, SY, SO, SWO = 4, 8, 12, 16, 20, 36
    sW, sQ0, sM0, sT0, sT1, sKA, sKB, sMB, sCnt = 24, 25, 26, 27, 28, 29, 30, 31, 52
    a("s_cmp_ge_u32 s2, 224")
    a("s_cbranch_scc1 L_fin_end")
    a("s_load_dwordx2 s[40:41], s[0:1], %d" % KA['A_q'])
    a("s_load_dwordx2 s[44:45], s[0:1], %d" % KA['ws'])
    a("s_load_dwordx2 s[46:47], s[0:1], %d" % KA['out'])
    a("s_load_dwordx2 s[50:51], s[0:1], %d" % KA['w_o'])
    a("v_lshrrev_b32 v1, 6, v0")
    a("s_nop 0")
    a("v_readfirstlane_b32 s%d, v1" % sW)
    a("s_and_b32 s%d, s2, 7" % sT0)
    a("s_lshr_b32 s%d, s2, 3" % sT1)
    a("s_and_b32 s%d, s%d, 3" % (sQ0, sT1))
    a("s_lshl_b32 s%d, s%d, 3" % (sQ0, sQ0))
    a("s_add_u32 s%d, s%d, s%d" % (sQ0, sQ0, sT0))
    a("s_lshl_b32 s%d, s%d, 6" % (sQ0, sQ0))
    a("s_lshr_b32 s%d, s%d, 2" % (sM0, sT1))
    a("s_lshl_b32 s%d, s%d, 6" % (sM0, sM0))
    a("s_waitcnt lgkmcnt(0)")
    make_srd(a, SX, 40, 41, 2048 * 896)
    a("s_add_u32 s48, s44, 0x%x" % WS_PART)
    a("s_addc_u32 s49, s45, 0")
    make_srd(a, SC, 48, 49, 16 * MB)
    a("s_add_u32 s48, s44, 0x%x" % WS_A)
    a("s_addc_u32 s49, s45, 0")
    make_srd(a, SY, 48, 49, 448 * 4096)
    a("s_add_u32 s48, s44, 0x%x" % WS_GT)
    a("s_addc_u32 s49, s45, 0")
    make_srd(a, SGT, 48, 49, 2048 * 8)
    make_srd(a, SO, 46, 47, 2048 * 896)
    make_srd(a, SWO, 50, 51, 4096 * 896)
    NS = 4
    FC, FW = [0, 32], [16, 48]
    vAg, vBg, vCr, vWr = 64, 68, 72, 76
    vLane, vHi, vL31 = 80, 81, 82
    t = 84
    a("v_and_b32 v%d, 63, v0" % vLane)
    a("v_lshrrev_b32 v%d, 5, v%d" % (vHi, vLane))
    a("v_and_b32 v%d, 31, v%d" % (vL31, vLane))
    a("v_lshrrev_b32 v%d, 4, v%d" % (t, vLane))
    a("v_and_b32 v%d, 15, v%d" % (t + 1, vLane))
    a("s_lshl_b32 s%d, s%d, 4" % (sT0, sW))
    a("s_add_u32 s%d, s%d, s%d" % (sT0, sT0, sQ0))
    for n in range(4):
        a("v_add_u32 v%d, %d, v%d" % (t + 2, 4 * n, t))
        a("v_xor_b32 v%d, v%d, v%d" % (t + 3, t + 2, t + 1))
        a("v_add_u32 v%d, s%d, v%d" % (t + 2, sT0, t + 2))
        a("v_lshlrev_b32 v%d, 13, v%d" % (t + 2, t + 2))
        a("v_lshl_add_u32 v%d, v%d, 4, v%d" % (vAg + n, t + 3, t + 2))
    a("v_lshrrev_b32 v%d, 3, v%d" % (t, vLane))
    a("s_lshl_b32 s%d, s%d, 5" % (sT0, sW))
    a("v_add_u32 v%d, s%d, v%d" % (t, sT0, t))
    a("v_mul_u32_u24 v%d, 896, v%d" % (t, t))
    a("v_bfe_u32 v%d, v%d, 4, 1" % (t + 1, vLane))
    a("v_lshlrev_b32 v%d, 2, v%d" % (t + 1, t + 1))
    a("v_and_b32 v%d, 7, v%d" % (t + 2, vLane))
    a("v_xor_b32 v%d, v%d, v%d" % (t + 1, t + 1, t + 2))
    a("v_lshl_add_u32 v%d, v%d, 4, v%d" % (t, t + 1, t))
    a("s_lshl_b32 s%d, s%d, 1" % (sT0, sM0))
    a("v_add_u32 v%d, s%d, v%d" % (t, sT0, t))
    for n in range(4):
        a("v_add_u32 v%d, %d, v%d" % (vBg + n, n * 8 * 896, t))
    a("s_lshl_b32 s%d, s%d, 1" % (sT0, sW))
    a("v_add_u32 v%d, s%d, v%d" % (t, sT0, vHi))
    a("v_and_b32 v%d, 15, v%d" % (t + 1, vL31))
    a("v_xor_b32 v%d, v%d, v%d" % (t, t, t + 1))
    a("v_lshlrev_b32 v%d, 8, v%d" % (t + 2, vL31))
    a("v_lshl_add_u32 v%d, v%d, 4, v%d" % (vCr, t, t + 2))
    a("v_xor_b32 v%d, 8, v%d" % (t, t))
    a("v_lshl_add_u32 v%d, v%d, 4, v%d" % (vCr + 1, t, t + 2))
    a("v_add_u32 v%d, 0x10000, v%d" % (vCr + 2, vCr))
    a("v_add_u32 v%d, 0x10000, v%d" % (vCr + 3, vCr + 1))
    a("v_bfe_u32 v%d, v%d, 2, 2" % (t, vLane))
    a("v_lshl_add_u32 v%d, v%d, 3, v%d" % (t, vHi, t))
    a("s_lshl_b32 s%d, s%d, 4" % (sT0, sW))
    a("v_add_u32 v%d, s%d, v%d" % (t, sT0, t))
    a("v_lshlrev_b32 v%d, 7, v%d" % (t, t))
    a("v_bfe_u32 v%d, v%d, 3, 1" % (t + 1, vLane))
    a("v_lshl_add_u32 v%d, v%d, 6, v%d" % (t, t + 1, t))
    a("v_bfe_u32 v%d, v%d, 4, 1" % (t + 1, vLane))
    a("v_lshl_add_u32 v%d, v%d, 5, v%d" % (t, t + 1, t))
    a("v_and_b32 v%d, 3, v%d" % (t + 1, vLane))
    a("v_lshl_add_u32 v%d, v%d, 3, v%d" % (t, t + 1, t))
    a("v_add_u32 v%d, 0x4000, v%d" % (vWr, t))
    a("v_xor_b32 v%d, 64, v%d" % (vWr + 1, vWr))
    a("v_add_u32 v%d, 0x10000, v%d" % (vWr + 2, vWr))
    a("v_add_u32 v%d, 0x10000, v%d" % (vWr + 3, vWr + 1))
    a("s_lshl_b32 s%d, s%d, 12" % (sMB, sW))
    a("s_mov_b32 s%d, 0" % sKA)
    a("s_mov_b32 s%d, 0" % sKB)

    def issue(tile):
        st = tile % NS
        l = []
        for n in range(4):
            l.append("s_add_u32 m0, s%d, %d" % (sMB, st * 32768 + n * 1024))
            l.append("buffer_load_dwordx4 v%d, %s, s%d offen lds" % (vAg + n, sr(SC, 4), sKA))
        for n in range(4):
            l.append("s_add_u32 m0, s%d, %d" % (sMB, st * 32768 + 16384 + n * 1024))
            l.append("buffer_load_dwordx4 v%d, %s, s%d offen lds" % (vBg + n, sr(SWO, 4), sKB))
        l.append("s_add_u32 s%d, s%d, 256" % (sKA, sKA))
        l.append("s_add_u32 s%d, s%d, %d" % (sKB, sKB, 128 * 896))
        return l

    def reads(tile):
        st = tile % NS
        fs = tile & 1
        hi2 = 2 * (st >> 1)
        l = []
        for k2 in range(2):
            for qh in range(2):
                l.append("ds_read_b128 %s, v%d offset:%d" % (vr(FC[fs] + 8 * k2 + 4 * qh, 4), vCr + hi2 + k2, (st & 1) * 32768 + qh * 8192))
            for mh in range(2):
                for j in range(2):
                    l.append("ds_read_b64_tr_b16 %s, v%d offset:%d" % (vr(FW[fs] + 8 * k2 + 4 * mh + 2 * j, 2), vWr + hi2 + mh, (st & 1) * 32768 + k2 * 8192 + j * 512))
        return l

    def mf(tile, first):
        fs = tile & 1
        l = []
        for k2 in range(2):
            for mh in range(2):
                for qh in range(2):
                    acc = ar(16 * (2 * mh + qh), 16)
                    l.append("v_mfma_f32_32x32x16_bf16 %s, %s, %s, %s" % (acc, vr(FW[fs] + 8 * k2 + 4 * mh, 4), vr(FC[fs] + 8 * k2 + 4 * qh, 4), "0" if (first and k2 == 0) else acc))
        return l
    for tl in range(3):
        for x in issue(tl):
            a(x)
    a("s_lshr_b32 s%d, s%d, 1" % (sT0, sW))
    a("s_lshl_b32 s%d, s%d, 5" % (sT0, sT0))
    a("s_add_u32 s%d, s%d, s%d" % (sT0, sT0, sM0))
    a("s_and_b32 s%d, s%d, 1" % (sT1, sW))
    a("s_lshl_b32 s%d, s%d, 5" % (sT1, sT1))
    a("s_add_u32 s%d, s%d, s%d" % (sT1, sT1, sQ0))
    a("v_add_u32 v%d, s%d, v%d" % (t, sT1, vL31))
    a("v_lshlrev_b32 v%d, 3, v%d" % (t + 5, t))
    XR, YR, GG = 96, 104, 120
    a("buffer_load_dwordx2 %s, v%d, %s, 0 offen" % (vr(GG, 2), t + 5, sr(SGT, 4)))
    a("v_mul_u32_u24 v%d, 896, v%d" % (t + 1, t))
    a("v_lshl_add_u32 v%d, v%d, 3, v%d" % (t + 1, vHi, t + 1))
    a("s_lshl_b32 s54, s%d, 1" % sT0)
    for g in range(4):
        a("buffer_load_dwordx2 %s, v%d, %s, s54 offen offset:%d" % (vr(XR + 2 * g, 2), t + 1, sr(SX, 4), 16 * g))
    a("v_lshlrev_b32 v%d, 1, v%d" % (t + 2, t))
    a("v_lshl_add_u32 v%d, v%d, 14, v%d" % (t + 2, vHi, t + 2))
    a("s_lshl_b32 s%d, s%d, 12" % (sT0, sT0))
    for g in range(4):
        for e in range(4):
            a("s_add_u32 s53, s%d, %d" % (sT0, (8 * g + e) * 4096))
            a("buffer_load_ushort v%d, v%d, %s, s53 offen" % (YR + 4 * g + e, t + 2, sr(SY, 4)))
    EX = 21
    NT = 32
    a("s_waitcnt vmcnt(%d)" % (16 + EX))
    a("s_barrier")
    for x in reads(0):
        a(x)
    for tl in range(NT):
        fill = []
        a("s_waitcnt lgkmcnt(0)")
        if tl + 1 < NT:
            after = min(NT - 1, tl + 2) - (tl + 1)
            a("s_waitcnt vmcnt(%d)" % (8 * after + (EX if tl == 0 else 0)))
            a("s_barrier")
            fill += reads(tl + 1)
            if tl + 3 < NT:
                fill += issue(tl + 3)
        for x in interleave(mf(tl, tl == 0), fill, per=4):
            a(x)
    a("s_barrier")
    a("s_nop 7")
    a("s_lshl_b32 s%d, s%d, 14" % (sT0, sW))
    a("v_lshlrev_b32 v%d, 4, v%d" % (t + 3, vLane))
    a("v_add_u32 v%d, s%d, v%d" % (t + 4, sT0, t + 3))
    for q4 in range(16):
        a("ds_write_b128 v%d, %s offset:%d" % (t + 4, ar(4 * q4, 4), q4 * 1024))
    a("s_waitcnt lgkmcnt(0)")
    a("s_barrier")
    a("s_lshl_b32 s%d, s%d, 12" % (sT0, sW))
    a("v_add_u32 v%d, s%d, v%d" % (t + 4, sT0, t + 3))
    for w2 in range(4):
        for r4 in range(4):
            a("ds_read_b128 %s, v%d offset:%d" % (vr(16 * w2 + 4 * r4, 4), t + 4, w2 * 16384 + r4 * 1024))
    a("s_waitcnt lgkmcnt(0)")
    for r in range(16):
        a("v_add_f32 v%d, v%d, v%d" % (r, r, 16 + r))
        a("v_add_f32 v%d, v%d, v%d" % (32 + r, 32 + r, 48 + r))
        a("v_add_f32 v%d, v%d, v%d" % (r, r, 32 + r))
    x0, x1, p, gg, omg = 124, 125, 126, GG, GG + 1
    y0, y1 = 127, 128
    for g in range(4):
        for e in range(0, 4, 2):
            xr = XR + 2 * g + e // 2
            a("v_lshlrev_b32 v%d, 16, v%d" % (x0, xr))
            a("v_and_b32 v%d, 0xffff0000, v%d" % (x1, xr))
            a("v_lshlrev_b32 v%d, 16, v%d" % (y0, YR + 4 * g + e))
            a("v_lshlrev_b32 v%d, 16, v%d" % (y1, YR + 4 * g + e + 1))
            a("v_mul_f32 v%d, v%d, v%d" % (x0, x0, y0))
            a("v_mul_f32 v%d, v%d, v%d" % (x1, x1, y1))
            a("v_cvt_pk_bf16_f32 v%d, v%d, v%d" % (p, x0, x1))
            a("v_lshlrev_b32 v%d, 16, v%d" % (x0, p))
            a("v_and_b32 v%d, 0xffff0000, v%d" % (x1, p))
            a("v_mul_f32 v%d, v%d, v%d" % (x0, x0, gg))
            a("v_mul_f32 v%d, v%d, v%d" % (x1, x1, gg))
            a("v_cvt_pk_bf16_f32 v%d, v%d, v%d" % (p, x0, x1))
            a("v_lshlrev_b32 v%d, 16, v%d" % (y0, p))
            a("v_and_b32 v%d, 0xffff0000, v%d" % (y1, p))
            b = 4 * g + e
            a("v_cvt_pk_bf16_f32 v%d, v%d, v%d" % (p, b, b + 1))
            a("v_lshlrev_b32 v%d, 16, v%d" % (x0, p))
            a("v_and_b32 v%d, 0xffff0000, v%d" % (x1, p))
            a("v_mul_f32 v%d, v%d, v%d" % (x0, x0, omg))
            a("v_mul_f32 v%d, v%d, v%d" % (x1, x1, omg))
            a("v_cvt_pk_bf16_f32 v%d, v%d, v%d" % (p, x0, x1))
            a("v_lshlrev_b32 v%d, 16, v%d" % (x0, p))
            a("v_and_b32 v%d, 0xffff0000, v%d" % (x1, p))
            a("v_add_f32 v%d, v%d, v%d" % (x0, x0, y0))
            a("v_add_f32 v%d, v%d, v%d" % (x1, x1, y1))
            a("v_cvt_pk_bf16_f32 v%d, v%d, v%d" % (130 + 2 * g + e // 2, x0, x1))
        a("buffer_store_dwordx2 %s, v%d, %s, s54 offen offset:%d" % (vr(130 + 2 * g, 2), t + 1, sr(SO, 4), 16 * g))
    a.label("L_fin_end")
    a("s_endpgm")
    return kernel_desc(name, 208, 144)


def f32bits(x):
    import struct
    return struct.unpack("<I", struct.pack("<f", x))[0]


def main():
    a = Asm()
    launches = []
    descs = []
    launches.append("; @launch kernel=proj_kernel grid=(256,1,1) block=(256,1,1) lds=163840")
    body = Asm()
    descs.append(gen_proj(body))
    launches.append("; @launch kernel=attn_kernel grid=(256,1,1) block=(256,1,1) lds=163840")
    descs.append(gen_attn(body))
    launches.append("; @launch kernel=conv_kernel grid=(256,1,1) block=(256,1,1) lds=114688")
    descs.append(gen_conv(body))
    launches.append("; @launch kernel=final_kernel grid=(224,1,1) block=(256,1,1) lds=131072")
    descs.append(gen_final(body))
    hdr = "\n".join(launches) + "\n" + '.amdgcn_target "amdgcn-amd-amdhsa--gfx950"\n'
    with open(OUT, "w") as f:
        f.write(hdr + body.text() + "".join(descs))
    print("wrote", OUT, len(body.lines), "lines")


if __name__ == "__main__":
    main()
```

```python
import sys, os

OUT = os.environ.get("GEN_OUT", "gated_mix__ssm_conv_h3__compressed_kv_cla__prompt.s")

KA = dict(A_q=0, A_k=8, A_v=16, shift_k=24, ssm_k=32, ssm_D=40, B_x=48, c_kv=56, w_q=64,
          w_uk=72, w_uv=80, w_o=88, gate_w=96, out=104, dbg=112, ws=120)
MB = 1 << 20
WS_Q = 0
WS_K = 16 * MB
WS_VT = 32 * MB
WS_PART = 48 * MB
PART_SZ = 2048 * 448 * 4
WS_A = 160 * MB
WS_ML = 170 * MB
WS_UT = 174 * MB
WS_GT = 172 * MB


class Asm:
    def __init__(self):
        self.lines = []
        self.n = 0

    def __call__(self, s):
        self.lines.append("    " + s)

    def label(self, l):
        self.lines.append(l + ":")

    def c(self, s):
        self.lines.append("    ; " + s)

    def raw(self, s):
        self.lines.append(s)

    def text(self):
        return "\n".join(self.lines) + "\n"


def vr(b, n):
    return "v[%d:%d]" % (b, b + n - 1)


def ar(b, n):
    return "a[%d:%d]" % (b, b + n - 1)


def sr(b, n):
    return "s[%d:%d]" % (b, b + n - 1)


def kernel_begin(a, name):
    a.raw(".text")
    a.raw(".globl %s" % name)
    a.raw(".p2align 8")
    a.raw(".type %s,@function" % name)
    a.label(name)


def kernel_desc(name, vgpr, accum, sgpr=102):
    return """.section .rodata,"a"
.p2align 6
.amdhsa_kernel %s
  .amdhsa_next_free_vgpr %d
  .amdhsa_next_free_sgpr %d
  .amdhsa_accum_offset %d
  .amdhsa_group_segment_fixed_size 0
  .amdhsa_kernarg_size 128
  .amdhsa_user_sgpr_count 2
  .amdhsa_user_sgpr_kernarg_segment_ptr 1
  .amdhsa_system_sgpr_workgroup_id_x 1
.end_amdhsa_kernel
""" % (name, vgpr, sgpr, accum)


def make_srd(a, d, lo, hi, nbytes):
    a("s_mov_b32 s%d, s%d" % (d, lo))
    a("s_and_b32 s%d, s%d, 0xffff" % (d + 1, hi))
    a("s_mov_b32 s%d, 0x%x" % (d + 2, nbytes))
    a("s_mov_b32 s%d, 0x00020000" % (d + 3))


def interleave(main, fill, start=0, per=1):
    out = []
    fi = 0
    for i, m in enumerate(main):
        out.append(m)
        if i >= start:
            for _ in range(per):
                if fi < len(fill):
                    out.append(fill[fi])
                    fi += 1
    out.extend(fill[fi:])
    return out


def gen_ujob(a, sW, sT0, sT1):
    SK, SV, SS, SU = 60, 64, 68, 72
    a("s_load_dwordx2 s[76:77], s[0:1], %d" % KA['A_k'])
    a("s_load_dwordx2 s[78:79], s[0:1], %d" % KA['A_v'])
    a("s_load_dwordx2 s[80:81], s[0:1], %d" % KA['shift_k'])
    a("s_load_dwordx2 s[82:83], s[0:1], %d" % KA['ws'])
    a("s_waitcnt lgkmcnt(0)")
    make_srd(a, SK, 76, 77, 2048 * 896)
    make_srd(a, SV, 78, 79, 2048 * 896)
    make_srd(a, SS, 80, 81, 448 * 8)
    a("s_add_u32 s82, s82, 0x%x" % WS_UT)
    a("s_addc_u32 s83, s83, 0")
    make_srd(a, SU, 82, 83, 448 * 4096)
    vL, vo, vs = 106, 107, 108
    KR, VR, SR = 110, 130, 138
    KF, VF, SF = 154, 194, 210
    x0, x1, y0, y1, p = 242, 243, 244, 245, 246
    OUT = 248
    a("v_mbcnt_lo_u32_b32 v%d, -1, 0" % vL)
    a("v_mbcnt_hi_u32_b32 v%d, -1, v%d" % (vL, vL))
    a("v_cmp_gt_u32 vcc, 56, v%d" % vL)
    a("s_and_saveexec_b64 s[84:85], vcc")
    a("s_lshl_b32 s%d, s2, 3" % sT0)
    a("s_lshl_b32 s%d, s%d, 1" % (sT1, sW))
    a("s_add_u32 s86, s%d, s%d" % (sT0, sT1))
    a("v_lshlrev_b32 v%d, 4, v%d" % (vo, vL))
    for i in range(3):
        a("s_sub_u32 s%d, s86, %d" % (sT0, 3 - i))
        a("s_mul_i32 s%d, s%d, 896" % (sT0, sT0))
        a("v_add_u32 v%d, s%d, v%d" % (vs, sT0, vo))
        a("buffer_load_dwordx4 %s, v%d, %s, 0 offen" % (vr(KR + 4 * i, 4), vs, sr(SK, 4)))
    a("s_mul_i32 s%d, s86, 896" % sT0)
    a("buffer_load_dwordx4 %s, v%d, %s, s%d offen" % (vr(KR + 12, 4), vo, sr(SK, 4), sT0))
    a("buffer_load_dwordx4 %s, v%d, %s, s%d offen offset:896" % (vr(KR + 16, 4), vo, sr(SK, 4), sT0))
    a("buffer_load_dwordx4 %s, v%d, %s, s%d offen" % (vr(VR, 4), vo, sr(SV, 4), sT0))
    a("buffer_load_dwordx4 %s, v%d, %s, s%d offen offset:896" % (vr(VR + 4, 4), vo, sr(SV, 4), sT0))
    a("v_lshlrev_b32 v%d, 6, v%d" % (vs, vL))
    for i in range(4):
        a("buffer_load_dwordx4 %s, v%d, %s, 0 offen offset:%d" % (vr(SR + 4 * i, 4), vs, sr(SS, 4), 16 * i))
    a("s_load_dwordx2 s[76:77], s[0:1], %d" % KA['A_q'])
    a("s_load_dwordx2 s[78:79], s[0:1], %d" % KA['gate_w'])
    a("s_load_dwordx2 s[80:81], s[0:1], %d" % KA['ws'])
    a("s_waitcnt lgkmcnt(0)")
    make_srd(a, SK, 76, 77, 2048 * 896)
    make_srd(a, SV, 78, 79, 896)
    a("s_add_u32 s80, s80, 0x%x" % WS_GT)
    a("s_addc_u32 s81, s81, 0")
    make_srd(a, SS, 80, 81, 2048 * 8)
    GX, GW, Z = 4, 12, 16
    a("buffer_load_dwordx4 %s, v%d, %s, s%d offen" % (vr(GX, 4), vo, sr(SK, 4), sT0))
    a("buffer_load_dwordx4 %s, v%d, %s, s%d offen offset:896" % (vr(GX + 4, 4), vo, sr(SK, 4), sT0))
    a("buffer_load_dwordx4 %s, v%d, %s, 0 offen" % (vr(GW, 4), vo, sr(SV, 4)))
    a("s_waitcnt vmcnt(0)")
    for r in range(2):
        z = Z + r
        a("v_mov_b32 v%d, 0" % z)
        for i in range(4):
            a("v_lshlrev_b32 v%d, 16, v%d" % (x0, GX + 4 * r + i))
            a("v_and_b32 v%d, 0xffff0000, v%d" % (x1, GX + 4 * r + i))
            a("v_lshlrev_b32 v%d, 16, v%d" % (y0, GW + i))
            a("v_and_b32 v%d, 0xffff0000, v%d" % (y1, GW + i))
            a("v_mul_f32 v%d, v%d, v%d" % (x0, x0, y0))
            a("v_mul_f32 v%d, v%d, v%d" % (x1, x1, y1))
            a("v_cvt_pk_bf16_f32 v%d, v%d, v%d" % (p, x0, x1))
            a("v_lshlrev_b32 v%d, 16, v%d" % (x0, p))
            a("v_and_b32 v%d, 0xffff0000, v%d" % (x1, p))
            a("v_add_f32 v%d, v%d, v%d" % (z, z, x0))
            a("v_add_f32 v%d, v%d, v%d" % (z, z, x1))
    for i in range(20):
        a("v_lshlrev_b32 v%d, 16, v%d" % (KF + 2 * i, KR + i))
        a("v_and_b32 v%d, 0xffff0000, v%d" % (KF + 2 * i + 1, KR + i))
    for i in range(8):
        a("v_lshlrev_b32 v%d, 16, v%d" % (VF + 2 * i, VR + i))
        a("v_and_b32 v%d, 0xffff0000, v%d" % (VF + 2 * i + 1, VR + i))
    for i in range(16):
        a("v_lshlrev_b32 v%d, 16, v%d" % (SF + 2 * i, SR + i))
        a("v_and_b32 v%d, 0xffff0000, v%d" % (SF + 2 * i + 1, SR + i))

    def rnd():
        a("v_cvt_pk_bf16_f32 v%d, v%d, v%d" % (p, x0, x1))
        a("v_lshlrev_b32 v%d, 16, v%d" % (x0, p))
        a("v_and_b32 v%d, 0xffff0000, v%d" % (x1, p))
    for c in range(8):
        kf = lambda row: KF + 8 * row + c
        sk = lambda j: SF + 4 * c + j
        a("v_mul_f32 v%d, v%d, v%d" % (x0, kf(0), sk(3)))
        a("v_mul_f32 v%d, v%d, v%d" % (x1, kf(1), sk(3)))
        rnd()
        for j in range(1, 4):
            a("v_mov_b32 v%d, v%d" % (y0, x0))
            a("v_mov_b32 v%d, v%d" % (y1, x1))
            a("v_mul_f32 v%d, v%d, v%d" % (x0, kf(j), sk(3 - j)))
            a("v_mul_f32 v%d, v%d, v%d" % (x1, kf(j + 1), sk(3 - j)))
            rnd()
            a("v_add_f32 v%d, v%d, v%d" % (x0, y0, x0))
            a("v_add_f32 v%d, v%d, v%d" % (x1, y1, x1))
            rnd()
        a("v_mul_f32 v%d, v%d, v%d" % (x0, x0, VF + c))
        a("v_mul_f32 v%d, v%d, v%d" % (x1, x1, VF + 8 + c))
        a("v_cvt_pk_bf16_f32 v%d, v%d, v%d" % (OUT + c, x0, x1))
    a("v_lshlrev_b32 v%d, 15, v%d" % (vs, vL))
    a("s_lshl_b32 s%d, s86, 1" % sT0)
    for c in range(8):
        a("s_add_u32 s%d, s%d, %d" % (sT1, sT0, c * 4096))
        a("buffer_store_dword v%d, v%d, %s, s%d offen" % (OUT + c, vs, sr(SU, 4), sT1))
    a("s_mov_b64 exec, s[84:85]")
    a("v_cmp_gt_u32 vcc, 56, v%d" % vL)
    a("s_nop 1")
    for r in range(2):
        a("v_cndmask_b32 v%d, 0, v%d, vcc" % (Z + r, Z + r))
    for off in (0x041F, 0x081F, 0x101F, 0x201F, 0x401F):
        for r in range(2):
            a("ds_swizzle_b32 v%d, v%d offset:0x%x" % (Z + 2 + r, Z + r, off))
        a("s_waitcnt lgkmcnt(0)")
        for r in range(2):
            a("v_add_f32 v%d, v%d, v%d" % (Z + r, Z + r, Z + 2 + r))
    for r in range(2):
        a("v_mov_b32 v%d, v%d" % (Z + 2 + r, Z + r))
    a("s_nop 1")
    for r in range(2):
        a("v_permlane32_swap_b32 v%d, v%d" % (Z + 2 + r, Z + r))
    for r in range(2):
        a("v_add_f32 v%d, v%d, v%d" % (Z + r, Z + r, Z + 2 + r))
    a("v_cmp_eq_u32 vcc, 1, v%d" % vL)
    a("s_nop 1")
    z = x0
    a("v_cndmask_b32 v%d, v%d, v%d, vcc" % (z, Z, Z + 1))
    a("v_cvt_pk_bf16_f32 v%d, v%d, v%d" % (p, z, z))
    a("v_lshlrev_b32 v%d, 16, v%d" % (z, p))
    a("v_mul_f32 v%d, 0x%08x, v%d" % (z, f32bits(-1.4426950408889634), z))
    a("v_exp_f32 v%d, v%d" % (z, z))
    a("s_nop 0")
    a("v_add_f32 v%d, 1.0, v%d" % (z, z))
    a("v_rcp_f32 v%d, v%d" % (z, z))
    a("s_nop 0")
    a("v_cvt_pk_bf16_f32 v%d, v%d, v%d" % (p, z, z))
    a("v_lshlrev_b32 v%d, 16, v%d" % (y0, p))
    a("v_sub_f32 v%d, 1.0, v%d" % (z, y0))
    a("v_cvt_pk_bf16_f32 v%d, v%d, v%d" % (p, z, z))
    a("v_lshlrev_b32 v%d, 16, v%d" % (y1, p))
    a("v_lshlrev_b32 v%d, 3, v%d" % (vs, vL))
    a("s_lshl_b32 s%d, s86, 3" % sT0)
    a("v_cmp_gt_u32 vcc, 2, v%d" % vL)
    a("s_and_saveexec_b64 s[84:85], vcc")
    a("buffer_store_dwordx2 %s, v%d, %s, s%d offen" % (vr(y0, 2), vs, sr(SS, 4), sT0))
    a("s_mov_b64 exec, s[84:85]")


def gen_proj(a):
    name = "proj_kernel"
    kernel_begin(a, name)
    SA, SB, SO = 4, 8, 12
    SA2, SB2, SO2 = 48, 52, 56
    sW, sM0, sKA, sKB, sCnt, sMode = 16, 17, 18, 19, 20, 21
    sMb, sNb, sNq, sT0, sT1, sNt, sMq, sKA2, sKB2, sSt = 22, 23, 24, 25, 26, 27, 28, 29, 30, 31
    a("s_cmp_ge_u32 s2, 256")
    a("s_cbranch_scc1 L_proj_end")
    a("s_load_dwordx2 s[32:33], s[0:1], %d" % KA['A_q'])
    a("s_load_dwordx2 s[34:35], s[0:1], %d" % KA['c_kv'])
    a("s_load_dwordx2 s[36:37], s[0:1], %d" % KA['w_q'])
    a("s_load_dwordx2 s[38:39], s[0:1], %d" % KA['w_uk'])
    a("s_load_dwordx2 s[40:41], s[0:1], %d" % KA['w_uv'])
    a("s_load_dwordx2 s[42:43], s[0:1], %d" % KA['ws'])
    a("v_lshrrev_b32 v1, 6, v0")
    a("v_and_b32 v0, 63, v0")
    a("s_nop 0")
    a("v_readfirstlane_b32 s%d, v1" % sW)
    a("s_and_b32 s%d, s2, 7" % sT0)
    a("s_lshr_b32 s%d, s2, 3" % sT1)
    a("s_and_b32 s%d, s%d, 7" % (sMb, sT1))
    a("s_lshr_b32 s%d, s%d, 3" % (sT1, sT1))
    a("s_lshl_b32 s%d, s%d, 2" % (sT0, sT0))
    a("s_add_u32 s%d, s%d, s%d" % (sNt, sT0, sT1))
    a("s_lshl_b32 s%d, s%d, 8" % (sMb, sMb))
    a("s_waitcnt lgkmcnt(0)")
    make_srd(a, SA, 34, 35, 2048 * 2048)
    a("s_cmp_ge_u32 s%d, 16" % sNt)
    a("s_cselect_b32 s44, s40, s38")
    a("s_cselect_b32 s45, s41, s39")
    a("s_cselect_b32 s%d, 1, 0" % sMode)
    make_srd(a, SB, 44, 45, 1024 * 8192)
    a("s_and_b32 s%d, s%d, 15" % (sNb, sNt))
    a("s_lshl_b32 s%d, s%d, 8" % (sNb, sNb))
    a("s_lshl_b32 s%d, s%d, 24" % (sT0, sMode))
    a("s_add_u32 s%d, s%d, 0x%x" % (sT0, sT0, WS_K))
    a("s_add_u32 s46, s42, s%d" % sT0)
    a("s_addc_u32 s47, s43, 0")
    make_srd(a, SO, 46, 47, 16 * MB)
    make_srd(a, SA2, 32, 33, 2048 * 896)
    make_srd(a, SB2, 36, 37, 448 * 8192)
    make_srd(a, SO2, 42, 43, 16 * MB)
    a("s_lshl_b32 s%d, s%d, 7" % (sNq, sNt))
    a("s_lshl_b32 s%d, s%d, 12" % (sMq, sW))
    a("s_lshl_b32 s%d, s%d, 13" % (sM0, sW))
    for r in (sKA, sKB, sKA2, sKB2):
        a("s_mov_b32 s%d, 0" % r)

    FA = [0, 32]
    FB = [16, 48]
    vLane, vHi, vL31 = 64, 65, 66
    vOA, vOB, vRA, vRB = 68, 76, 84, 88
    vOA2, vOB2, vRB2 = 92, 100, 104
    vT = 106
    QACC = 128
    a("v_mov_b32 v%d, v0" % vLane)
    a("v_lshrrev_b32 v%d, 5, v0" % vHi)
    a("v_and_b32 v%d, 31, v0" % vL31)

    def setupA(dst, lda):
        a("v_lshrrev_b32 v%d, 3, v%d" % (vT, vLane))
        a("s_lshl_b32 s%d, s%d, 6" % (sT0, sW))
        a("s_add_u32 s%d, s%d, s%d" % (sT0, sT0, sMb))
        a("v_add_u32 v%d, s%d, v%d" % (vT, sT0, vT))
        a("v_mul_u32_u24 v%d, %d, v%d" % (vT, lda, vT))
        a("v_and_b32 v%d, 7, v%d" % (vT + 1, vLane))
        a("v_lshrrev_b32 v%d, 4, v%d" % (vT + 2, vLane))
        a("v_xor_b32 v%d, v%d, v%d" % (vT + 3, vT + 1, vT + 2))
        a("v_xor_b32 v%d, 4, v%d" % (vT + 4, vT + 3))
        a("v_lshlrev_b32 v%d, 4, v%d" % (vT + 3, vT + 3))
        a("v_lshlrev_b32 v%d, 4, v%d" % (vT + 4, vT + 4))
        for n in range(8):
            a("v_add_u32 v%d, v%d, v%d" % (dst + n, vT, vT + 3 + (n & 1)))
            if n < 7:
                a("v_add_u32 v%d, %d, v%d" % (vT, 8 * lda, vT))
    setupA(vOA, 2048)
    a("s_lshl_b32 s%d, s%d, 4" % (sT0, sW))
    a("v_add_u32 v%d, s%d, v%d" % (vT, sT0, vHi))
    a("v_lshlrev_b32 v%d, 13, v%d" % (vT, vT))
    a("s_lshl_b32 s%d, s%d, 1" % (sT0, sNb))
    a("v_add_u32 v%d, s%d, v%d" % (vT, sT0, vT))
    a("v_lshlrev_b32 v%d, 2, v%d" % (vT + 1, vHi))
    a("v_xor_b32 v%d, v%d, v%d" % (vT + 3, vL31, vT + 1))
    a("v_xor_b32 v%d, 8, v%d" % (vT + 4, vT + 3))
    a("v_lshlrev_b32 v%d, 4, v%d" % (vT + 3, vT + 3))
    a("v_lshlrev_b32 v%d, 4, v%d" % (vT + 4, vT + 4))
    for n in range(8):
        a("v_add_u32 v%d, v%d, v%d" % (vOB + n, vT, vT + 3 + (n & 1)))
        if n < 7:
            a("v_add_u32 v%d, 0x4000, v%d" % (vT, vT))

    def dmaA(q):
        l = []
        for n in range(8):
            l.append(["s_add_u32 m0, s%d, %d" % (sM0, n * 1024),
                      "buffer_load_dwordx4 v%d, %s, s%d offen lds" % ((vOA2 if q else vOA) + n, sr(SA2 if q else SA, 4), sKA2 if q else sKA)])
        l.append(["s_add_u32 s%d, s%d, 128" % ((sKA2, sKA2) if q else (sKA, sKA))])
        return l

    def dmaB(q):
        l = []
        if q:
            for n in range(4):
                l.append(["s_add_u32 m0, s%d, %d" % (sMq, 32768 + n * 1024),
                          "buffer_load_dwordx4 v%d, %s, s%d offen lds" % (vOB2 + n, sr(SB2, 4), sKB2)])
            l.append(["s_add_u32 s%d, s%d, 0x80000" % (sKB2, sKB2), "s_xor_b32 s%d, s%d, 0x10000" % (sM0, sM0), "s_xor_b32 s%d, s%d, 0x10000" % (sMq, sMq)])
        else:
            for n in range(8):
                l.append(["s_add_u32 m0, s%d, %d" % (sM0, 32768 + n * 1024),
                          "buffer_load_dwordx4 v%d, %s, s%d offen lds" % (vOB + n, sr(SB, 4), sKB)])
            l.append(["s_add_u32 s%d, s%d, 0x80000" % (sKB, sKB), "s_xor_b32 s%d, s%d, 0x10000" % (sM0, sM0)])
        return l

    def flat(l):
        o = []
        for x in l:
            o.extend(x)
        return o
    for x in flat(dmaA(False) + dmaB(False) + dmaA(False)):
        a(x)
    setupA(vOA2, 896)
    a("v_lshrrev_b32 v%d, 4, v%d" % (vT + 1, vLane))
    a("s_lshl_b32 s%d, s%d, 4" % (sT0, sW))
    a("v_add_u32 v%d, s%d, v%d" % (vT, sT0, vT + 1))
    a("v_lshlrev_b32 v%d, 13, v%d" % (vT, vT))
    a("s_lshl_b32 s%d, s%d, 1" % (sT0, sNq))
    a("v_add_u32 v%d, s%d, v%d" % (vT, sT0, vT))
    a("v_lshlrev_b32 v%d, 2, v%d" % (vT + 1, vT + 1))
    a("v_and_b32 v%d, 15, v%d" % (vT + 2, vLane))
    a("v_xor_b32 v%d, v%d, v%d" % (vT + 1, vT + 1, vT + 2))
    a("v_lshl_add_u32 v%d, v%d, 4, v%d" % (vT, vT + 1, vT))
    for n in range(4):
        a("v_add_u32 v%d, %d, v%d" % (vOB2 + n, n * 0x8000, vT))
    a("s_and_b32 s%d, s%d, 1" % (sT0, sW))
    a("s_lshr_b32 s%d, s%d, 1" % (sT1, sW))
    a("s_lshl_b32 s%d, s%d, 14" % (sT0, sT0))
    a("v_lshlrev_b32 v%d, 7, v%d" % (vT, vL31))
    a("v_add_u32 v%d, s%d, v%d" % (vT, sT0, vT))
    a("v_bfe_u32 v%d, v%d, 1, 3" % (vT + 1, vLane))
    a("v_xor_b32 v%d, v%d, v%d" % (vT + 1, vT + 1, vHi))
    for ks in range(4):
        a("v_xor_b32 v%d, %d, v%d" % (vT + 2, 2 * ks, vT + 1))
        a("v_lshl_add_u32 v%d, v%d, 4, v%d" % (vRA + ks, vT + 2, vT))
    a("v_bfe_u32 v%d, v%d, 2, 2" % (vT, vLane))
    a("v_lshl_add_u32 v%d, v%d, 3, v%d" % (vT + 1, vHi, vT))
    a("v_bfe_u32 v%d, v%d, 4, 1" % (vT + 2, vLane))
    a("v_lshlrev_b32 v%d, 5, v%d" % (vT + 3, vT + 2))
    a("v_bfe_u32 v%d, v%d, 1, 1" % (vT + 2, vLane))
    a("v_lshl_add_u32 v%d, v%d, 4, v%d" % (vT + 3, vT + 2, vT + 3))
    a("v_and_b32 v%d, 1, v%d" % (vT + 2, vLane))
    a("v_lshl_add_u32 v%d, v%d, 3, v%d" % (vT + 3, vT + 2, vT + 3))
    a("v_add_u32 v%d, 0x8000, v%d" % (vT + 3, vT + 3))
    a("v_lshl_add_u32 v%d, v%d, 9, v%d" % (vT + 4, vT + 1, vT + 3))
    a("s_lshl_b32 s%d, s%d, 8" % (sT0, sT1))
    a("v_add_u32 v%d, s%d, v%d" % (vT + 4, sT0, vT + 4))
    for nt in range(4):
        a("v_xor_b32 v%d, %d, v%d" % (vT + 2, nt, vT))
        a("v_lshl_add_u32 v%d, v%d, 6, v%d" % (vRB + nt, vT + 2, vT + 4))
    a("v_lshl_add_u32 v%d, v%d, 8, v%d" % (vT + 4, vT + 1, vT + 3))
    a("s_lshl_b32 s%d, s%d, 1" % (sT1, sT1))
    for nt in range(2):
        a("v_mov_b32 v%d, s%d" % (vT + 5, sT1))
        a("v_add_u32 v%d, %d, v%d" % (vT + 5, nt, vT + 5))
        a("v_xor_b32 v%d, v%d, v%d" % (vT + 2, vT + 5, vT))
        a("v_lshl_add_u32 v%d, v%d, 6, v%d" % (vRB2 + nt, vT + 2, vT + 4))

    def frag_reads(st, ks, q):
        A = ["ds_read_b128 %s, v%d offset:%d" % (vr(FA[st] + 4 * mt, 4), vRA + ks, mt * 4096) for mt in range(4)]
        B = []
        pitch = 256 if q else 512
        for nt in range(2 if q else 4):
            for j in range(2):
                B.append("ds_read_b64_tr_b16 %s, v%d offset:%d" % (vr(FB[st] + 4 * nt + 2 * j, 2), (vRB2 if q else vRB) + nt, (ks * 16 + j * 4) * pitch))
        if q:
            return [A[0], B[0], B[1], B[2], B[3], A[1], A[2], A[3]]
        return [A[0], B[0], B[1], B[2], B[3], A[1], B[4], B[5], B[6], B[7], A[2], A[3]]

    def mfmas(st, mode, q, first):
        l = []
        nn = 2 if q else 4
        for mt in range(4):
            for nt in range(nn):
                acc = vr(QACC + (mt * nn + nt) * 16, 16) if q else ar((mt * nn + nt) * 16, 16)
                A = vr(FA[st] + 4 * mt, 4)
                B = vr(FB[st] + 4 * nt, 4)
                c = "0" if first else acc
                if q or mode == 0:
                    l.append("v_mfma_f32_32x32x16_bf16 %s, %s, %s, %s" % (acc, B, A, c))
                else:
                    l.append("v_mfma_f32_32x32x16_bf16 %s, %s, %s, %s" % (acc, A, B, c))
        return l

    def tog(regs):
        return ["v_xor_b32 v%d, 0x10000, v%d" % (r, r) for r in regs]

    def weave(mf, reads, groups, extra=()):
        n = len(mf)
        slots = [[] for _ in range(n)]
        for i, r in enumerate(reads):
            slots[min(n - 1, i * n // len(reads) if len(reads) > n else i)].append(r)
        for i, g in enumerate(groups):
            slots[min(n - 1, (i * n) // max(1, len(groups)))].extend(g)
        for i, g in enumerate(extra):
            slots[min(n - 1, (i * n) // max(1, len(extra)))].append(g)
        out = []
        for i in range(n):
            out.append(mf[i])
            out.extend(slots[i])
        return out

    def body(out, mode, q, h2, h1, nxt, first=False, nextq=None, extras=None):
        if nextq is None:
            nextq = q
        ex = extras or [[], [], [], []]
        for ks in range(3):
            out.append("s_waitcnt lgkmcnt(0)")
            out.extend(weave(mfmas(ks & 1, mode, q, first and ks == 0), frag_reads((ks + 1) & 1, ks + 1, q), h2 if ks == 0 else [], ex[ks]))
        out.append("s_waitcnt lgkmcnt(0)")
        rd = []
        if nxt:
            out.append("VMWAIT")
            out.append("s_barrier")
            regs = list(range(vRA, vRA + 4))
            if nextq == q:
                regs += list(range(vRB2, vRB2 + 2)) if q else list(range(vRB, vRB + 4))
            rd = tog(regs) + frag_reads(0, 0, nextq)
        out.extend(weave(mfmas(1, mode, q, False), rd, h1, ex[3]))

    def flush(out):
        cnt = 0
        for x in out:
            if x == "VMWAIT":
                a("s_waitcnt vmcnt(%d)" % cnt)
                continue
            if x.startswith("buffer_load") and x.endswith("lds"):
                cnt = 0
            elif x.startswith("buffer_"):
                cnt += 1
            a(x)

    def kv_epilogue_stream(mode):
        TB, RB = 68, 88
        return None

    def stamp(i):
        if os.environ.get("EXP_STAMP"):
            a("s_memtime s[%d:%d]" % (88 + 2 * i, 89 + 2 * i) if i < 7 else "s_memrealtime s[60:61]")
    stamp(0)
    if os.environ.get("EXP_STAMP"):
        a("s_memrealtime s[46:47]")
    if not os.environ.get("NO_PREFETCH"):
        a("s_load_dwordx2 s[76:77], s[0:1], %d" % KA['w_o'])
        a("s_load_dwordx2 s[78:79], s[0:1], %d" % KA['ssm_k'])
        a("s_waitcnt lgkmcnt(0)")
        make_srd(a, 60, 76, 77, 4096 * 896)
        make_srd(a, 64, 78, 79, 448 * 4096)
        a("v_lshlrev_b32 v%d, 7, v%d" % (vT, vLane))
        a("s_lshl_b32 s%d, s%d, 13" % (sT0, sW))
        a("v_add_u32 v%d, s%d, v%d" % (vT, sT0, vT))
        a("s_mul_i32 s%d, s2, 14336" % sT0)
        a("v_cmp_gt_u32 vcc, 14336, v%d" % vT)
        a("s_and_saveexec_b64 s[84:85], vcc")
        a("buffer_load_dword v%d, v%d, %s, s%d offen" % (0, vT, sr(SB2, 4), sT0))
        a("buffer_load_dword v%d, v%d, s[60:63], s%d offen" % (1, vT, sT0))
        a("s_mov_b64 exec, s[84:85]")
        a("s_mul_i32 s%d, s2, 7168" % sT0)
        a("v_cmp_gt_u32 vcc, 7168, v%d" % vT)
        a("s_and_saveexec_b64 s[84:85], vcc")
        a("buffer_load_dword v%d, v%d, s[64:67], s%d offen" % (2, vT, sT0))
        a("s_mov_b64 exec, s[84:85]")
    gen_ujob(a, sW, sT0, sT1)
    a("s_waitcnt vmcnt(9)")
    a("s_barrier")
    stamp(1)
    for x in frag_reads(0, 0, False):
        a(x)
    a("s_cmp_eq_u32 s%d, 1" % sMode)
    a("s_cbranch_scc1 L_proj_m1")
    for mode in range(2):
        if mode:
            a.label("L_proj_m1")
        o = []
        body(o, mode, False, dmaB(False), dmaA(False), True, first=True)
        flush(o)
        a("s_mov_b32 s%d, 13" % sCnt)
        a.label("L_proj_loop%d" % mode)
        o = []
        body(o, mode, False, dmaB(False), dmaA(False), True)
        flush(o)
        a("s_sub_u32 s%d, s%d, 1" % (sCnt, sCnt))
        a("s_cmp_lg_u32 s%d, 0" % sCnt)
        a("s_cbranch_scc1 L_proj_loop%d" % mode)
        o = []
        body(o, mode, False, dmaB(False), dmaA(True), True)
        body(o, mode, False, dmaB(True), dmaA(True), True, nextq=True)
        flush(o)
        stamp(2)
        TBS = [68, 74, 122]
        vw, vrd, vo, vx = 88, 89, 90, 91
        RB = 106
        pre = []
        pre.append("s_and_b32 s%d, s%d, 1" % (sT0, sW))
        pre.append("s_lshr_b32 s%d, s%d, 1" % (sT1, sW))
        pre.append("s_lshl_b32 s%d, s%d, 7" % (sT0, sT0))
        pre.append("s_lshl_b32 s%d, s%d, 7" % (sT1, sT1))
        pre.append("s_add_u32 s%d, s%d, s%d" % (sT0, sT0, sMb))
        pre.append("s_add_u32 s%d, s%d, s%d" % (sT1, sT1, sNb))
        pre.append("s_lshl_b32 s%d, s%d, 13" % (sSt, sW))
        pre.append("s_add_u32 s%d, s%d, 0x20000" % (sSt, sSt))
        pre.append("v_and_b32 v%d, 15, v%d" % (vw, vL31))
        if mode == 1:
            pre.append("v_xor_b32 v%d, v%d, v%d" % (vw, vw, vHi))
        pre.append("v_lshlrev_b32 v%d, 4, v%d" % (vw, vw))
        pre.append("v_lshl_add_u32 v%d, v%d, 8, v%d" % (vw, vL31, vw))
        if mode == 0:
            pre.append("v_lshl_add_u32 v%d, v%d, 3, v%d" % (vw, vHi, vw))
        pre.append("v_add_u32 v%d, s%d, v%d" % (vw, sSt, vw))
        pre.append("v_lshrrev_b32 v%d, 4, v%d" % (vrd, vLane))
        pre.append("v_and_b32 v%d, 15, v%d" % (vo, vLane))
        pre.append("v_xor_b32 v%d, v%d, v%d" % (vx, vrd, vo))
        pre.append("v_lshlrev_b32 v%d, 4, v%d" % (vx, vx))
        pre.append("v_lshl_add_u32 v%d, v%d, 8, v%d" % (vx, vrd, vx))
        rs = 13 if mode == 0 else 12
        r0, c0 = (sT0, sT1) if mode == 0 else (sT1, sT0)
        pre.append("v_add_u32 v%d, s%d, v%d" % (vrd, r0, vrd))
        pre.append("v_lshlrev_b32 v%d, %d, v%d" % (vrd, rs, vrd))
        pre.append("v_lshl_add_u32 v%d, v%d, 4, v%d" % (vo, vo, vrd))
        pre.append("s_lshl_b32 s%d, s%d, 1" % (c0, c0))
        pre.append("v_add_u32 v%d, s%d, v%d" % (vo, c0, vo))
        pre.append("v_add_u32 v%d, s%d, v%d" % (vrd, sSt, vx))
        segs = [[] for _ in range(28)]
        segs[0].extend(pre)
        k = 0
        for r in range(4):
            wr = []
            for u in range(16):
                o2, g = u // 4, u % 4
                mt, nt = (r, o2) if mode == 0 else (o2, r)
                t = TBS[k % 3]
                k += 1
                base = (mt * 4 + nt) * 16 + 4 * g
                for e in range(4):
                    wr.append("v_accvgpr_read_b32 v%d, a%d" % (t + e, base + e))
                wr.append("v_cvt_pk_bf16_f32 v%d, v%d, v%d" % (t + 4, t, t + 1))
                wr.append("v_cvt_pk_bf16_f32 v%d, v%d, v%d" % (t + 5, t + 2, t + 3))
                if mode == 0:
                    wr.append("v_xor_b32 v%d, %d, v%d" % (t, 16 * (4 * nt + g), vw))
                    wr.append("ds_write_b64 v%d, %s" % (t, vr(t + 4, 2)))
                else:
                    wr.append("v_xor_b32 v%d, %d, v%d" % (t, 16 * (4 * mt + 2 * (g >> 1)), vw))
                    wr.append("ds_write_b64 v%d, %s offset:%d" % (t, vr(t + 4, 2), 8 * (g & 1)))
            s0 = 1 + 6 * r
            for i, x in enumerate(wr):
                segs[s0 + i * 4 // len(wr)].append(x)
            for hf in range(2):
                rd, st = [], []
                for i in range(4):
                    ii = 4 * hf + i
                    rd.append("v_xor_b32 v%d, %d, v%d" % (vx, 16 * ((4 * ii) & 15), vrd))
                    rd.append("ds_read_b128 %s, v%d offset:%d" % (vr(RB + 4 * i, 4), vx, ii * 1024))
                    st.append("s_mov_b32 s%d, %d" % (sCnt, (32 * r + 4 * ii) << rs))
                    st.append("buffer_store_dwordx4 %s, v%d, %s, s%d offen" % (vr(RB + 4 * i, 4), vo, sr(SO, 4), sCnt))
                segs[s0 + 4 + hf].extend(rd)
                segs[s0 + 5 + hf] = st + segs[s0 + 5 + hf]
        o = []
        for tl in range(7):
            body(o, mode, True, dmaB(True) if tl + 1 < 7 else [], dmaA(True) if tl + 2 < 7 else [], tl + 1 < 7,
                 first=(tl == 0), extras=segs[4 * tl:4 * tl + 4])
        flush(o)
        stamp(3)
        stamp(4)
        a("s_barrier")
        a("s_nop 7")
        a("s_and_b32 s%d, s%d, 1" % (sT0, sW))
        a("s_lshr_b32 s%d, s%d, 1" % (sT1, sW))
        a("s_lshl_b32 s%d, s%d, 7" % (sT0, sT0))
        a("s_lshl_b32 s%d, s%d, 6" % (sT1, sT1))
        a("s_add_u32 s%d, s%d, s%d" % (sT0, sT0, sMb))
        a("s_add_u32 s%d, s%d, s%d" % (sT1, sT1, sNq))
        a("s_mul_i32 s%d, s%d, %d" % (sSt, sW, 128 * 144))
        a("v_mul_u32_u24 v%d, 144, v%d" % (vw, vL31))
        a("v_lshl_add_u32 v%d, v%d, 3, v%d" % (vw, vHi, vw))
        a("v_add_u32 v%d, s%d, v%d" % (vw, sSt, vw))
        a("v_lshrrev_b32 v%d, 3, v%d" % (vrd, vLane))
        a("v_mul_u32_u24 v%d, 144, v%d" % (vrd, vrd))
        a("v_and_b32 v%d, 7, v%d" % (vo, vLane))
        a("v_lshl_add_u32 v%d, v%d, 4, v%d" % (vrd, vo, vrd))
        a("v_add_u32 v%d, s%d, v%d" % (vrd, sSt, vrd))
        a("v_lshrrev_b32 v%d, 3, v%d" % (vx, vLane))
        a("v_add_u32 v%d, s%d, v%d" % (vx, sT0, vx))
        a("v_lshlrev_b32 v%d, 13, v%d" % (vx, vx))
        a("v_lshl_add_u32 v%d, v%d, 4, v%d" % (vo, vo, vx))
        a("s_lshl_b32 s%d, s%d, 1" % (sT1, sT1))
        a("v_add_u32 v%d, s%d, v%d" % (vo, sT1, vo))
        k = 0
        for mt in range(4):
            for nt in range(2):
                for g in range(4):
                    t = 2 * (k % 16)
                    k += 1
                    base = QACC + (mt * 2 + nt) * 16 + 4 * g
                    a("v_cvt_pk_bf16_f32 v%d, v%d, v%d" % (t, base, base + 1))
                    a("v_cvt_pk_bf16_f32 v%d, v%d, v%d" % (t + 1, base + 2, base + 3))
                    a("ds_write_b64 v%d, %s offset:%d" % (vw, vr(t, 2), mt * 32 * 144 + 64 * nt + 16 * g))
        a("s_waitcnt lgkmcnt(0)")
        for i in range(16):
            a("ds_read_b128 %s, v%d offset:%d" % (vr(QACC + 4 * i, 4), vrd, i * 8 * 144))
        for j in range(16):
            a("s_waitcnt lgkmcnt(%d)" % (15 - j))
            a("s_mov_b32 s%d, %d" % (sT0, (j * 8) << 13))
            a("buffer_store_dwordx4 %s, v%d, %s, s%d offen" % (vr(QACC + 4 * j, 4), vo, sr(SO2, 4), sT0))
        stamp(5)
        if os.environ.get("EXP_STAMP"):
            a("s_waitcnt vmcnt(0)")
            stamp(6)
            stamp(7)
            a("s_waitcnt lgkmcnt(0)")
            a("s_mov_b32 s62, s46")
            a("s_mov_b32 s63, s47")
            a("s_add_u32 s64, s42, 0x%x" % (200 * MB))
            a("s_addc_u32 s65, s43, 0")
            make_srd(a, 68, 64, 65, MB)
            for i in range(14):
                a("v_mov_b32 v%d, s%d" % (8 + i, 88 + i))
            for i in range(4):
                a("v_mov_b32 v%d, s%d" % (24 + i, 60 + i))
            a("s_lshl_b32 s66, s2, 7")
            a("v_mov_b32 v40, 0")
            a("s_nop 4")
            for i in range(5):
                a("buffer_store_dwordx4 v[%d:%d], v40, s[68:71], s66 offen offset:%d" % (8 + 4 * i, 11 + 4 * i, 16 * i))
        a("s_endpgm")
    a.label("L_proj_end")
    a("s_endpgm")
    return kernel_desc(name, 512, 256)


LOG2E = 1.4426950408889634
PART2_ROWS = 768
WS_PART2 = WS_PART + 16 * PART_SZ
PART_TOTAL = 16 * PART_SZ + 16 * PART2_ROWS * 1792
RESC_T = 8.0


def cost(x):
    if x.startswith("v_exp") or x.startswith("v_rcp"):
        return 8
    if x.startswith("buffer_load"):
        return 12
    if x.startswith("s_nop"):
        return 4 * (int(x.split()[1]) + 1)
    return 4


def spread(fills, nslots, budget):
    out = {}
    slot = 0
    acc = 0
    for x in fills:
        if isinstance(x, list):
            c = sum(cost(y) for y in x)
        else:
            c = cost(x)
        if acc + c > budget and acc > 0 and slot < nslots - 1:
            slot += 1
            acc = 0
        out.setdefault(slot, []).extend(x if isinstance(x, list) else [x])
        acc += c
    return out


def gen_attn(a):
    name = "attn_kernel"
    kernel_begin(a, name)
    SQ, SK, SV, SWO, SP, SML = 4, 8, 12, 16, 20, 56
    sW, sH, sQb, sCnt, sKo, sVo, sT0, sT1, sMK, sC = 24, 25, 26, 27, 28, 29, 30, 31, 32, 34
    sStart, sNp, sPart, sItem2, sPoff, sWoff, sThr = 35, 36, 37, 38, 39, 48, 49
    sCmp = 40
    a("s_cmp_ge_u32 s2, 256")
    a("s_cbranch_scc1 L_attn_conv")
    a("s_load_dwordx2 s[50:51], s[0:1], %d" % KA['ws'])
    a("s_load_dwordx2 s[52:53], s[0:1], %d" % KA['dbg'])
    a("v_lshrrev_b32 v1, 6, v0")
    a("v_and_b32 v0, 63, v0")
    a("s_nop 0")
    a("v_readfirstlane_b32 s%d, v1" % sW)
    a("s_and_b32 s%d, s2, 7" % sT0)
    a("s_lshl_b32 s%d, s%d, 1" % (sT0, sT0))
    a("s_bfe_u32 s%d, s2, 0x10003" % sT1)
    a("s_add_u32 s%d, s%d, s%d" % (sH, sT0, sT1))
    a("s_lshr_b32 s%d, s2, 4" % sT0)
    a("s_waitcnt lgkmcnt(0)")
    make_srd(a, SQ, 50, 51, 16 * MB)
    a("s_add_u32 s54, s50, 0x%x" % WS_K)
    a("s_addc_u32 s55, s51, 0")
    make_srd(a, SK, 54, 55, 16 * MB)
    a("s_add_u32 s54, s50, 0x%x" % WS_VT)
    a("s_addc_u32 s55, s51, 0")
    make_srd(a, SV, 54, 55, 16 * MB)
    make_srd(a, SWO, 52, 53, 256)
    a("s_add_u32 s54, s50, 0x%x" % WS_PART)
    a("s_addc_u32 s55, s51, 0")
    make_srd(a, SP, 54, 55, 32 * MB)
    a("s_add_u32 s54, s50, 0x%x" % WS_ML)
    a("s_addc_u32 s55, s51, 0")
    make_srd(a, SML, 54, 55, 2 * 16 * 2048 * 8)
    a("s_mov_b32 s%d, 0x%08x" % (sC, f32bits(LOG2E / 16.0)))
    a("s_mov_b32 s%d, 0x%08x" % (sThr, f32bits(RESC_T * 16.0 / LOG2E)))
    a("s_mov_b32 s%d, -1" % sItem2)
    a("s_mov_b32 s%d, 0" % sStart)
    a("s_mov_b32 s%d, 0" % sPart)
    a("s_cmp_ge_u32 s%d, 6" % sT0)
    a("s_cbranch_scc1 L_attn_r6")
    a("s_sub_u32 s%d, 15, s%d" % (sQb, sT0))
    a("s_mov_b32 s%d, 9" % sNp)
    a("s_branch L_attn_item")
    a.label("L_attn_r6")
    a("s_cmp_ge_u32 s%d, 12" % sT0)
    a("s_cbranch_scc1 L_attn_r12")
    a("s_sub_u32 s%d, s%d, 6" % (sItem2, sT0))
    a("s_sub_u32 s%d, 15, s%d" % (sQb, sItem2))
    a("s_mov_b32 s%d, 20" % sStart)
    a("s_sub_u32 s%d, 5, s%d" % (sNp, sItem2))
    a("s_mov_b32 s%d, 1" % sPart)
    a("s_branch L_attn_item")
    a.label("L_attn_r12")
    a("s_sub_u32 s%d, 21, s%d" % (sQb, sT0))
    a("s_cmp_lt_u32 s%d, 14" % sT0)
    a("s_cbranch_scc1 L_attn_r12b")
    a("s_sub_u32 s%d, s%d, 8" % (sQb, sT0))
    a.label("L_attn_r12b")
    a("s_mov_b32 s%d, s%d" % (sNp, sQb))

    O, S0, S1, P, T = 0, 128, 160, 192, 208
    vm, vl, vq, vNeg = 220, 221, 222, 223
    vKR, vVR, vOK, vOV = 224, 232, 236, 244
    vLane, vHi, vL31, vmc = 252, 253, 254, 255
    QA, RING = 0, 64
    Sx = [S0, S1]
    t = T
    a.label("L_attn_item")
    def stamp(i):
        if os.environ.get("EXP_STAMP2"):
            a("s_memtime s[%d:%d]" % (64 + 2 * i, 65 + 2 * i))
    stamp(0)
    a("v_mbcnt_lo_u32_b32 v%d, -1, 0" % vLane)
    a("v_mbcnt_hi_u32_b32 v%d, -1, v%d" % (vLane, vLane))
    a("v_lshrrev_b32 v%d, 5, v%d" % (vHi, vLane))
    a("v_and_b32 v%d, 31, v%d" % (vL31, vLane))
    a("s_lshl_b32 s%d, s%d, 7" % (sT0, sQb))
    a("s_lshl_b32 s%d, s%d, 5" % (sT1, sW))
    a("s_add_u32 s%d, s%d, s%d" % (sT0, sT0, sT1))
    a("v_add_u32 v%d, s%d, v%d" % (t, sT0, vL31))
    a("v_lshlrev_b32 v%d, 13, v%d" % (t, t))
    a("v_lshl_add_u32 v%d, v%d, 4, v%d" % (t, vHi, t))
    a("s_lshl_b32 s%d, s%d, 9" % (sT1, sH))
    for j in range(16):
        a("buffer_load_dwordx4 %s, v%d, %s, s%d offen offset:%d" % (ar(QA + 4 * j, 4), t, sr(SQ, 4), sT1, 32 * j))
    a("s_lshl_b32 s%d, s%d, 1" % (sT0, sNp))
    a("s_add_u32 s%d, s%d, s%d" % (sT0, sT0, sStart))
    a("s_lshl_b32 s%d, s%d, 1" % (sT1, sQb))
    a("s_sub_u32 s%d, s%d, s%d" % (sT0, sT1, sT0))
    a("s_lshl_b32 s%d, s%d, 6" % (sT0, sT0))
    a("s_lshl_b32 s%d, s%d, 5" % (sT1, sW))
    a("s_add_u32 s%d, s%d, s%d" % (sT0, sT0, sT1))
    a("v_add_u32 v%d, s%d, v%d" % (vq, sT0, vL31))
    a("v_lshlrev_b32 v%d, 2, v%d" % (t + 1, vHi))
    a("v_sub_u32 v%d, v%d, v%d" % (vq, vq, t + 1))
    a("v_mov_b32 v%d, 0x%08x" % (vNeg, f32bits(-1.6e10)))
    a("v_mov_b32 v%d, 0x%08x" % (vm, f32bits(-1e30)))
    a("v_mov_b32 v%d, 0" % vl)
    a("v_mov_b32 v%d, 0" % vmc)
    a("s_lshl_b32 s%d, s%d, 4" % (sT0, sW))
    a("s_lshl_b32 s%d, s%d, 9" % (sT1, sH))
    for n in range(8):
        a("v_add_u32 v%d, %d, v%d" % (t, 2 * n, vHi))
        a("v_xor_b32 v%d, v%d, v%d" % (t + 1, t, vL31))
        a("v_add_u32 v%d, s%d, v%d" % (t, sT0, t))
        a("v_lshlrev_b32 v%d, 13, v%d" % (t, t))
        a("v_lshl_add_u32 v%d, v%d, 4, v%d" % (t, t + 1, t))
        a("v_add_u32 v%d, s%d, v%d" % (vOK + n, sT1, t))
    a("s_lshl_b32 s%d, s%d, 8" % (sT0, sH))
    a("s_lshl_b32 s%d, s%d, 6" % (sT1, sW))
    a("s_add_u32 s%d, s%d, s%d" % (sT0, sT0, sT1))
    a("v_lshrrev_b32 v%d, 3, v%d" % (t, vLane))
    a("v_add_u32 v%d, s%d, v%d" % (t, sT0, t))
    a("v_lshlrev_b32 v%d, 12, v%d" % (t, t))
    a("v_and_b32 v%d, 7, v%d" % (t + 1, vLane))
    a("v_lshrrev_b32 v%d, 4, v%d" % (t + 2, vLane))
    a("v_xor_b32 v%d, v%d, v%d" % (t + 1, t + 1, t + 2))
    a("v_xor_b32 v%d, 4, v%d" % (t + 2, t + 1))
    a("v_lshlrev_b32 v%d, 4, v%d" % (t + 1, t + 1))
    a("v_lshlrev_b32 v%d, 4, v%d" % (t + 2, t + 2))
    for n in range(8):
        a("v_add_u32 v%d, v%d, v%d" % (vOV + n, t, t + 1 + (n & 1)))
        if n < 7:
            a("v_add_u32 v%d, 0x8000, v%d" % (t, t))
    a("v_and_b32 v%d, 15, v%d" % (t, vLane))
    a("v_xor_b32 v%d, v%d, v%d" % (t, t, vHi))
    a("v_lshlrev_b32 v%d, 9, v%d" % (t + 1, vL31))
    for j in range(8):
        a("v_xor_b32 v%d, %d, v%d" % (t + 2, 2 * j, t))
        a("v_lshl_add_u32 v%d, v%d, 4, v%d" % (vKR + j, t + 2, t + 1))
    a("v_bfe_u32 v%d, v%d, 1, 3" % (t, vLane))
    a("v_xor_b32 v%d, v%d, v%d" % (t, t, vHi))
    a("v_lshlrev_b32 v%d, 7, v%d" % (t + 1, vL31))
    a("v_add_u32 v%d, 0x10000, v%d" % (t + 1, t + 1))
    for kk in range(4):
        a("v_xor_b32 v%d, %d, v%d" % (t + 2, 2 * kk, t))
        a("v_lshl_add_u32 v%d, v%d, 4, v%d" % (vVR + kk, t + 2, t + 1))
    a("s_lshl_b32 s%d, s%d, 13" % (sMK, sW))
    a("s_lshl_b32 s%d, s%d, 19" % (sKo, sStart))
    a("s_lshl_b32 s%d, s%d, 7" % (sVo, sStart))

    def dmaK(buf):
        l = []
        for n in range(8):
            l.append(["s_add_u32 m0, s%d, %d" % (sMK, buf * 32768 + n * 1024),
                      "buffer_load_dwordx4 v%d, %s, s%d offen lds" % (vOK + n, sr(SK, 4), sKo)])
        l.append("s_add_u32 s%d, s%d, 0x80000" % (sKo, sKo))
        return l

    def dmaV(buf):
        l = []
        for n in range(8):
            l.append(["s_add_u32 m0, s%d, %d" % (sMK, 65536 + buf * 32768 + n * 1024),
                      "buffer_load_dwordx4 v%d, %s, s%d offen lds" % (vOV + n, sr(SV, 4), sVo)])
        l.append("s_add_u32 s%d, s%d, 128" % (sVo, sVo))
        return l

    def flat(l):
        o = []
        for x in l:
            o.extend(x if isinstance(x, list) else [x])
        return o

    def qk_items(buf, sset):
        it = []
        for jd in range(16):
            for kt in range(2):
                rd = "ds_read_b128 %%s, v%d offset:%d" % (vKR + (jd & 7), buf * 32768 + kt * 16384 + (jd >> 3) * 256)
                acc = vr(Sx[sset] + 16 * kt, 16)
                mf = "v_mfma_f32_32x32x16_bf16 %s, %%s, %s, %s" % (acc, ar(QA + 4 * jd, 4), "0" if jd == 0 else acc)
                it.append((rd, mf))
        return it

    def pv_items(buf):
        it = []
        for kk in range(4):
            for dt in range(8):
                rd = "ds_read_b128 %%s, v%d offset:%d" % (vVR + kk, buf * 32768 + dt * 4096)
                acc = vr(O + 16 * dt, 16)
                mf = "v_mfma_f32_32x32x16_bf16 %s, %%s, %s, %s" % (acc, vr(P + 4 * kk, 4), acc)
                it.append((rd, mf))
        return it

    D = 6
    uid = [0]
    rare = []

    def sm_max(sset, masked, tblk):
        S = Sx[sset]
        l = []
        if masked:
            idx = []
            for kt in range(2):
                for g in range(4):
                    for e in range(4):
                        idx.append((S + 16 * kt + 4 * g + e, 32 * kt + 8 * g + e + 64 * tblk))
            for i, (r, cst) in enumerate(idx):
                if cst <= 64:
                    l.append("v_cmp_gt_i32 %s, %d, v%d" % (sr(sCmp + 2 * (i % 4), 2), cst, vq))
                else:
                    l.append(["s_mov_b32 s%d, %d" % (sT0, cst),
                              "v_cmp_gt_i32 %s, s%d, v%d" % (sr(sCmp + 2 * (i % 4), 2), sT0, vq)])
                if i >= 3:
                    r2 = idx[i - 3][0]
                    l.append("v_cndmask_b32 v%d, v%d, v%d, %s" % (r2, r2, vNeg, sr(sCmp + 2 * ((i - 3) % 4), 2)))
            l.append("s_nop 1")
            for i in range(len(idx) - 3, len(idx)):
                r2 = idx[i][0]
                l.append("v_cndmask_b32 v%d, v%d, v%d, %s" % (r2, r2, vNeg, sr(sCmp + 2 * (i % 4), 2)))
        for c in range(4):
            b = S + 8 * c
            l.append("v_max3_f32 v%d, v%d, v%d, v%d" % (T + c, b, b + 1, b + 2))
        for c in range(4):
            b = S + 8 * c
            l.append("v_max3_f32 v%d, v%d, v%d, v%d" % (T + c, T + c, b + 3, b + 4))
        for c in range(4):
            b = S + 8 * c
            l.append("v_max3_f32 v%d, v%d, v%d, v%d" % (T + c, T + c, b + 5, b + 6))
        l.append("v_max3_f32 v%d, v%d, v%d, v%d" % (T, T, S + 7, S + 15))
        l.append("v_max3_f32 v%d, v%d, v%d, v%d" % (T + 2, T + 2, S + 23, S + 31))
        l.append("v_max3_f32 v%d, v%d, v%d, v%d" % (T, T, T + 1, T + 3))
        l.append("v_max_f32 v%d, v%d, v%d" % (T, T, T + 2))
        uid[0] += 1
        lab = "L_attn_rs%d" % uid[0]
        l.append(["v_mov_b32 v%d, v%d" % (T + 1, T), "s_nop 1", "v_permlane32_swap_b32 v%d, v%d" % (T, T + 1),
                  "v_max_f32 v%d, v%d, v%d" % (T, T, T + 1),
                  "v_sub_f32 v%d, v%d, v%d" % (T + 1, T, vm),
                  "v_cmp_lt_f32 vcc, s%d, v%d" % (sThr, T + 1), "s_nop 4",
                  "s_cbranch_vccnz %s" % lab, "LABEL " + lab + "_ret"])
        r = ["LABEL " + lab,
             "v_max_f32 v%d, v%d, v%d" % (T, T, vm),
             "v_sub_f32 v%d, v%d, v%d" % (T + 1, vm, T),
             "v_mul_f32 v%d, s%d, v%d" % (T + 1, sC, T + 1),
             "v_exp_f32 v%d, v%d" % (T + 1, T + 1),
             "v_mov_b32 v%d, v%d" % (vm, T),
             "v_mul_f32 v%d, s%d, v%d" % (vmc, sC, T),
             "v_mul_f32 v%d, v%d, v%d" % (vl, vl, T + 1)]
        for i in range(128):
            r.append("v_mul_f32 v%d, v%d, v%d" % (O + i, O + i, T + 1))
        r.append("s_branch " + lab + "_ret")
        rare.extend(r)
        return l

    def sm_grp(sset, kk):
        S = Sx[sset] + 8 * kk
        l = []
        for i in range(8):
            l.append("v_fma_f32 v%d, v%d, s%d, -v%d" % (S + i, S + i, sC, vmc))
        for i in range(8):
            l.append("v_exp_f32 v%d, v%d" % (S + i, S + i))
        l.append("v_add_f32 v%d, v%d, v%d" % (T + 4, S, S + 1))
        l.append("v_add_f32 v%d, v%d, v%d" % (T + 5, S + 2, S + 3))
        l.append("v_cvt_pk_bf16_f32 v%d, v%d, v%d" % (P + 4 * kk, S, S + 1))
        l.append("v_cvt_pk_bf16_f32 v%d, v%d, v%d" % (P + 4 * kk + 1, S + 2, S + 3))
        l.append("v_add_f32 v%d, v%d, v%d" % (T + 4, T + 4, S + 4))
        l.append("v_add_f32 v%d, v%d, v%d" % (T + 5, T + 5, S + 5))
        l.append("v_cvt_pk_bf16_f32 v%d, v%d, v%d" % (P + 4 * kk + 2, S + 4, S + 5))
        l.append("v_add_f32 v%d, v%d, v%d" % (T + 4, T + 4, S + 6))
        l.append("v_add_f32 v%d, v%d, v%d" % (T + 5, T + 5, S + 7))
        l.append("v_cvt_pk_bf16_f32 v%d, v%d, v%d" % (P + 4 * kk + 3, S + 6, S + 7))
        l.append("v_add_f32 v%d, v%d, v%d" % (vl, vl, T + 4))
        l.append("v_add_f32 v%d, v%d, v%d" % (vl, vl, T + 5))
        return l

    def emit(x):
        if x.startswith("LABEL "):
            a.label(x[6:])
        else:
            a(x)

    def run_stream(items, fills, pre=None):
        n = len(items)
        for i in range(min(D, n)):
            a(items[i][0] % ar(RING + 4 * (i % 8), 4))
        for x in (pre or []):
            emit(x)
        for i in range(n):
            a("s_waitcnt lgkmcnt(%d)" % min(D - 1, n - 1 - i))
            a(items[i][1] % ar(RING + 4 * (i % 8), 4))
            if i + D < n:
                a(items[i + D][0] % ar(RING + 4 * ((i + D) % 8), 4))
            for x in fills.get(i, []):
                emit(x)

    BUD = int(os.environ.get("ATT_BUD", "18"))

    def iteration(par, masked, tblk, dK, dV, doqk):
        a("s_waitcnt vmcnt(0)")
        if not os.environ.get("EXP_A_NOBAR"):
            a("s_barrier")
        dma = (dmaK(par) if dK else []) + (dmaV(par ^ 1) if dV else [])
        if os.environ.get("EXP_A_NODMA"):
            dma = []
        if doqk:
            items = qk_items(par ^ 1, par ^ 1) + pv_items(par)
            seq = sm_max(par, masked, tblk) + sm_grp(par, 0) + sm_grp(par, 1) + sm_grp(par, 2) + sm_grp(par, 3)
            if os.environ.get("EXP_A_NOSM"):
                seq = [x for x in seq if not isinstance(x, list) and x.startswith("v_cvt_pk")]
            if dma:
                nfirst = len(sm_max.__name__) * 0 + 40
                merged = []
                di = 0
                for i, x in enumerate(seq):
                    while di < len(dma) and di * nfirst <= i * len(dma):
                        merged.append(dma[di]); di += 1
                    merged.append(x)
                merged.extend(dma[di:])
                seq = merged
            bud = BUD
            while True:
                fl = spread(seq, 64, bud)
                ok = True
                for kk in range(4):
                    last = "v_cvt_pk_bf16_f32 v%d," % (P + 4 * kk + 3)
                    sl = [sidx for sidx, v in fl.items() if any(y.startswith(last) for y in v)][0]
                    if sl > 32 + 8 * kk - 2:
                        ok = False
                if ok:
                    break
                bud += 2
            run_stream(items, fl)
        else:
            items = pv_items(par)
            pre = flat(dma + sm_max(par, masked, tblk) + sm_grp(par, 0)) + ["s_nop 1"]
            seq = sm_grp(par, 1) + sm_grp(par, 2) + sm_grp(par, 3)
            fl = spread(seq, 32, 28)
            for kk in range(1, 4):
                last = "v_cvt_pk_bf16_f32 v%d," % (P + 4 * kk + 3)
                sl = [sidx for sidx, v in fl.items() if any(y.startswith(last) for y in v)][0]
                assert sl <= 8 * kk - 2, (kk, sl)
            run_stream(items, fl, pre)

    for x in flat(dmaK(0) + dmaV(0) + dmaK(1)):
        a(x)
    for i in range(128):
        a("v_mov_b32 v%d, 0" % (O + i))
    a("s_waitcnt vmcnt(16)")
    a("s_barrier")
    stamp(1)
    run_stream(qk_items(0, 0), {})
    a("s_nop 15")
    stamp(2)
    a("s_mov_b32 s%d, s%d" % (sCnt, sNp))
    a("s_cmp_eq_u32 s%d, 0" % sCnt)
    a("s_cbranch_scc1 L_attn_tail")
    a.label("L_attn_loop")
    iteration(0, False, 0, True, True, True)
    iteration(1, False, 0, True, True, True)
    a("s_sub_u32 s%d, s%d, 1" % (sCnt, sCnt))
    a("s_cmp_lg_u32 s%d, 0" % sCnt)
    a("s_cbranch_scc1 L_attn_loop")
    a.label("L_attn_tail")
    stamp(3)
    iteration(0, True, 0, False, True, True)
    iteration(1, True, 1, False, False, False)
    stamp(4)

    a("s_nop 15")
    a("v_mov_b32 v%d, v%d" % (T, vl))
    a("s_nop 1")
    a("v_permlane32_swap_b32 v%d, v%d" % (T, vl))
    a("v_add_f32 v%d, v%d, v%d" % (T + 1, T, vl))
    a("v_rcp_f32 v%d, v%d" % (T + 2, T + 1))
    a("v_mov_b32 v%d, v%d" % (T, vmc))
    sTk, sPi, sSlot = 60, 61, 62
    a("s_mov_b32 s%d, s%d" % (sSlot, sPart))
    a("s_mov_b32 s%d, 0" % sTk)
    a("s_cmp_lt_u32 s%d, 10" % sQb)
    a("s_cbranch_scc1 L_attn_store")
    a("s_mul_i32 s%d, s%d, 6" % (sPi, sH))
    a("s_add_u32 s%d, s%d, 15" % (sPi, sPi))
    a("s_sub_u32 s%d, s%d, s%d" % (sPi, sPi, sQb))
    a("s_barrier")
    a("v_mov_b32 v%d, 0" % (T + 3))
    a("s_cmp_lg_u32 s%d, 0" % sW)
    a("s_cbranch_scc1 L_attn_tk1")
    a("s_and_b32 s%d, s%d, 15" % (sT0, sPi))
    a("s_lshl_b32 s%d, s%d, 1" % (sT0, sT0))
    a("s_lshl_b32 s%d, 1, s%d" % (sT1, sT0))
    a("v_mov_b32 v%d, s%d" % (T + 4, sT1))
    a("s_lshr_b32 s%d, s%d, 4" % (sT1, sPi))
    a("s_lshl_b32 s%d, s%d, 2" % (sT1, sT1))
    a("s_mov_b64 s[46:47], exec")
    a("s_mov_b64 exec, 1")
    a("buffer_atomic_add v%d, v%d, %s, s%d offen sc0" % (T + 4, T + 3, sr(SWO, 4), sT1))
    a("s_waitcnt vmcnt(0)")
    a("v_lshrrev_b32 v%d, s%d, v%d" % (T + 4, sT0, T + 4))
    a("v_and_b32 v%d, 3, v%d" % (T + 4, T + 4))
    a("ds_write_b32 v%d, v%d" % (T + 3, T + 4))
    a("s_mov_b64 exec, s[46:47]")
    a("s_waitcnt lgkmcnt(0)")
    a.label("L_attn_tk1")
    a("s_barrier")
    a("ds_read_b32 v%d, v%d" % (T + 4, T + 3))
    a("s_waitcnt lgkmcnt(0)")
    a("v_readfirstlane_b32 s%d, v%d" % (sTk, T + 4))
    a("s_nop 3")
    a("s_cmp_eq_u32 s%d, 0" % sTk)
    a("s_cbranch_scc1 L_attn_first")
    a("s_cmp_lg_u32 s%d, 0" % sW)
    a("s_cbranch_scc1 L_attn_pl1")
    a("s_lshr_b32 s%d, s%d, 5" % (sT1, sPi))
    a("s_lshl_b32 s%d, s%d, 2" % (sT1, sT1))
    a("s_add_u32 s%d, s%d, 32" % (sT1, sT1))
    a("s_and_b32 s%d, s%d, 31" % (sT0, sPi))
    a.label("L_attn_poll")
    a("buffer_load_dword v%d, v%d, %s, s%d offen sc1" % (T + 4, T + 3, sr(SWO, 4), sT1))
    a("s_waitcnt vmcnt(0)")
    a("v_readfirstlane_b32 s%d, v%d" % (sSlot, T + 4))
    a("s_nop 3")
    a("s_lshr_b32 s%d, s%d, s%d" % (sSlot, sSlot, sT0))
    a("s_and_b32 s%d, s%d, 1" % (sSlot, sSlot))
    a("s_cbranch_scc1 L_attn_pl1")
    a("s_sleep 4")
    a("s_branch L_attn_poll")
    a.label("L_attn_pl1")
    a("s_barrier")
    a("s_xor_b32 s%d, s%d, 1" % (sSlot, sPart))
    a("s_lshl_b32 s%d, s%d, 7" % (sT0, sQb))
    a("s_lshl_b32 s%d, s%d, 5" % (sT1, sW))
    a("s_add_u32 s%d, s%d, s%d" % (sT0, sT0, sT1))
    a("v_add_u32 v%d, s%d, v%d" % (T + 3, sT0, vL31))
    a("v_lshlrev_b32 v%d, 3, v%d" % (T + 4, T + 3))
    a("s_lshl_b32 s%d, s%d, 4" % (sT0, sSlot))
    a("s_add_u32 s%d, s%d, s%d" % (sT0, sT0, sH))
    a("s_lshl_b32 s%d, s%d, 14" % (sT0, sT0))
    a("buffer_load_dwordx2 %s, v%d, %s, s%d offen sc1" % (vr(T + 6, 2), T + 4, sr(SML, 4), sT0))
    a("v_lshlrev_b32 v%d, 13, v%d" % (T + 3, T + 3))
    a("v_lshl_add_u32 v%d, v%d, 3, v%d" % (T + 3, vHi, T + 3))
    a("s_lshl_b32 s%d, s%d, 24" % (sT0, sSlot))
    a("s_lshl_b32 s%d, s%d, 9" % (sT1, sH))
    a("s_add_u32 s%d, s%d, s%d" % (sT0, sT0, sT1))
    for dt in range(8):
        for g in range(4):
            a("buffer_load_dwordx2 %s, v%d, %s, s%d offen offset:%d sc1" % (vr(S0 + 8 * dt + 2 * g, 2), T + 3, sr(SP, 4), sT0, 64 * dt + 16 * g))
    a("s_waitcnt vmcnt(32)")
    a("v_max_f32 v%d, v%d, v%d" % (T + 8, T, T + 6))
    a("v_sub_f32 v%d, v%d, v%d" % (T + 9, T, T + 8))
    a("v_sub_f32 v%d, v%d, v%d" % (T + 10, T + 6, T + 8))
    a("v_exp_f32 v%d, v%d" % (T + 9, T + 9))
    a("v_exp_f32 v%d, v%d" % (T + 10, T + 10))
    a("s_nop 0")
    a("v_mul_f32 v%d, v%d, v%d" % (T + 10, T + 10, T + 7))
    a("v_fma_f32 v%d, v%d, v%d, v%d" % (T + 8, T + 9, T + 1, T + 10))
    a("v_rcp_f32 v%d, v%d" % (T + 8, T + 8))
    a("s_nop 0")
    a("v_mul_f32 v%d, v%d, v%d" % (T + 9, T + 9, T + 8))
    a("v_mul_f32 v%d, v%d, v%d" % (T + 10, T + 10, T + 8))
    a("v_mov_b32 v%d, 1.0" % (T + 2))
    for i in range(128):
        a("v_mul_f32 v%d, v%d, v%d" % (O + i, O + i, T + 9))
    for k2 in range(32):
        if k2 % 4 == 0:
            a("s_waitcnt vmcnt(%d)" % (28 - k2))
        for d in range(2):
            r = S0 + 2 * k2 + d
            o = O + 4 * k2 + 2 * d
            a("v_lshlrev_b32 v%d, 16, v%d" % (P + 2 * d, r))
            a("v_and_b32 v%d, 0xffff0000, v%d" % (P + 2 * d + 1, r))
        for d in range(2):
            o = O + 4 * k2 + 2 * d
            a("v_fma_f32 v%d, v%d, v%d, v%d" % (o, P + 2 * d, T + 10, o))
            a("v_fma_f32 v%d, v%d, v%d, v%d" % (o + 1, P + 2 * d + 1, T + 10, o + 1))
    a("s_mov_b32 s%d, 0" % sSlot)
    a("s_branch L_attn_store")
    a.label("L_attn_first")
    a("s_lshl_b32 s%d, s%d, 4" % (sT0, sPart))
    a("s_add_u32 s%d, s%d, s%d" % (sT0, sT0, sH))
    a("s_lshl_b32 s%d, s%d, 11" % (sT0, sT0))
    a("s_lshl_b32 s%d, s%d, 7" % (sT1, sQb))
    a("s_add_u32 s%d, s%d, s%d" % (sT0, sT0, sT1))
    a("s_lshl_b32 s%d, s%d, 5" % (sT1, sW))
    a("s_add_u32 s%d, s%d, s%d" % (sT0, sT0, sT1))
    a("s_lshl_b32 s%d, s%d, 3" % (sT0, sT0))
    a("v_lshlrev_b32 v%d, 3, v%d" % (T + 3, vL31))
    a("buffer_store_dwordx2 %s, v%d, %s, s%d offen sc1" % (vr(T, 2), T + 3, sr(SML, 4), sT0))
    a("s_mov_b32 s%d, 2" % sTk)
    a.label("L_attn_store")
    stamp(5)
    vTw, vTr, vPo = T + 4, T + 5, T + 6
    a("s_lshl_b32 s%d, s%d, 13" % (sT0, sW))
    a("s_add_u32 s%d, s%d, 0x20000" % (sT0, sT0))
    a("v_lshlrev_b32 v%d, 8, v%d" % (vTw, vL31))
    a("v_lshl_add_u32 v%d, v%d, 3, v%d" % (vTw, vHi, vTw))
    a("v_add_u32 v%d, s%d, v%d" % (vTw, sT0, vTw))
    a("v_and_b32 v%d, 15, v%d" % (T + 7, vL31))
    a("v_lshlrev_b32 v%d, 4, v%d" % (T + 7, T + 7))
    a("v_lshrrev_b32 v%d, 4, v%d" % (vTr, vLane))
    a("v_and_b32 v%d, 15, v%d" % (vPo, vLane))
    a("s_lshl_b32 s%d, s%d, 7" % (sT1, sQb))
    a("s_lshl_b32 s%d, s%d, 5" % (sPoff, sW))
    a("s_add_u32 s%d, s%d, s%d" % (sT1, sT1, sPoff))
    a("s_lshl_b32 s%d, s%d, 13" % (sT1, sT1))
    a("s_lshl_b32 s%d, s%d, 9" % (sPoff, sH))
    a("s_add_u32 s%d, s%d, s%d" % (sT1, sT1, sPoff))
    a("s_lshl_b32 s%d, s%d, 24" % (sPoff, sSlot))
    a("s_add_u32 s%d, s%d, s%d" % (sPoff, sPoff, sT1))
    a("v_lshlrev_b32 v%d, 13, v%d" % (T + 8, vTr))
    a("v_lshl_add_u32 v%d, v%d, 4, v%d" % (T + 8, vPo, T + 8))
    for hf in range(2):
        k = 0
        for dt in range(4):
            for g in range(4):
                r = O + 16 * (4 * hf + dt) + 4 * g
                c = P + 2 * (k % 8)
                k += 1
                for e in range(4):
                    a("v_mul_f32 v%d, v%d, v%d" % (r + e, r + e, T + 2))
                a("v_cvt_pk_bf16_f32 v%d, v%d, v%d" % (c, r, r + 1))
                a("v_cvt_pk_bf16_f32 v%d, v%d, v%d" % (c + 1, r + 2, r + 3))
                a("v_xor_b32 v%d, %d, v%d" % (T + 9, 16 * (4 * dt + g), T + 7))
                a("v_add_u32 v%d, v%d, v%d" % (T + 9, T + 9, vTw))
                a("ds_write_b64 v%d, %s" % (T + 9, vr(c, 2)))
        a("s_waitcnt lgkmcnt(0)")
        for i in range(8):
            a("v_add_u32 v%d, %d, v%d" % (T + 9, 4 * i, vTr))
            a("v_and_b32 v%d, 15, v%d" % (T + 10, T + 9))
            a("v_xor_b32 v%d, v%d, v%d" % (T + 10, T + 10, vPo))
            a("v_lshlrev_b32 v%d, 8, v%d" % (T + 9, T + 9))
            a("v_lshl_add_u32 v%d, v%d, 4, v%d" % (T + 9, T + 10, T + 9))
            a("v_add_u32 v%d, s%d, v%d" % (T + 9, sT0, T + 9))
            a("ds_read_b128 %s, v%d" % (vr(S0 + 4 * i, 4), T + 9))
        for i in range(8):
            a("s_waitcnt lgkmcnt(%d)" % (7 - i))
            a("s_add_u32 s%d, s%d, %d" % (sT1, sPoff, i * 4 * 8192 + hf * 256))
            a("buffer_store_dwordx4 %s, v%d, %s, s%d offen" % (vr(S0 + 4 * i, 4), T + 8, sr(SP, 4), sT1))
    a("s_cmp_lg_u32 s%d, 2" % sTk)
    a("s_cbranch_scc1 L_attn_nopub")
    a("s_waitcnt vmcnt(0)")
    a("s_barrier")
    a("s_cmp_lg_u32 s%d, 0" % sW)
    a("s_cbranch_scc1 L_attn_nopub")
    a("s_and_b32 s%d, s%d, 31" % (sT0, sPi))
    a("s_lshl_b32 s%d, 1, s%d" % (sT0, sT0))
    a("v_mov_b32 v%d, s%d" % (T + 4, sT0))
    a("v_mov_b32 v%d, 0" % (T + 3))
    a("s_lshr_b32 s%d, s%d, 5" % (sT1, sPi))
    a("s_lshl_b32 s%d, s%d, 2" % (sT1, sT1))
    a("s_add_u32 s%d, s%d, 32" % (sT1, sT1))
    a("s_mov_b64 s[46:47], exec")
    a("s_mov_b64 exec, 1")
    a("buffer_atomic_or v%d, v%d, %s, s%d offen" % (T + 4, T + 3, sr(SWO, 4), sT1))
    a("s_mov_b64 exec, s[46:47]")
    a.label("L_attn_nopub")
    stamp(6)
    stamp(7)
    if os.environ.get("EXP_STAMP2"):
        a("s_waitcnt vmcnt(0)")
        a("s_memtime s[80:81]")
        a("s_memrealtime s[82:83]")
        a("s_waitcnt lgkmcnt(0)")
        a("s_add_u32 s84, s50, 0x%x" % (200 * MB))
        a("s_addc_u32 s85, s51, 0")
        make_srd(a, 88, 84, 85, MB)
        for i in range(20):
            a("v_mov_b32 v%d, s%d" % (8 + i, 64 + i))
        a("s_lshl_b32 s86, s2, 8")
        a("s_lshl_b32 s87, s%d, 7" % sPart)
        a("s_add_u32 s86, s86, s87")
        a("v_mov_b32 v40, 0")
        a("s_nop 4")
        for i in range(5):
            a("buffer_store_dwordx4 v[%d:%d], v40, s[88:91], s86 offen offset:%d" % (8 + 4 * i, 11 + 4 * i, 16 * i))
    a("s_cmp_lt_i32 s%d, 0" % sItem2)
    a("s_cbranch_scc1 L_attn_end")
    a("s_mov_b32 s%d, s%d" % (sQb, sItem2))
    a("s_mov_b32 s%d, s%d" % (sNp, sItem2))
    a("s_mov_b32 s%d, 0" % sStart)
    a("s_mov_b32 s%d, 0" % sPart)
    a("s_mov_b32 s%d, -1" % sItem2)
    a("s_barrier")
    a("s_branch L_attn_item")
    a.label("L_attn_end")
    a("s_endpgm")
    for x in rare:
        emit(x)
    a.label("L_attn_conv")
    a("s_sub_u32 s2, s2, 256")
    gen_conv(a)
    return kernel_desc(name, 512, 256)


SPLIT_ROW = 1280

def gen_rowwork(a):
    SX, SG, SC, SML, SGT = 60, 64, 68, 72, 76
    sW, sT0, sT1, sR = 80, 81, 82, 83
    a("s_load_dwordx2 s[84:85], s[0:1], %d" % KA['A_q'])
    a("s_load_dwordx2 s[86:87], s[0:1], %d" % KA['gate_w'])
    a("s_load_dwordx2 s[88:89], s[0:1], %d" % KA['ws'])
    a("v_lshrrev_b32 v1, 6, v0")
    a("s_nop 0")
    a("v_readfirstlane_b32 s%d, v1" % sW)
    a("s_waitcnt lgkmcnt(0)")
    make_srd(a, SX, 84, 85, 2048 * 896)
    make_srd(a, SG, 86, 87, 896)
    a("s_add_u32 s90, s88, 0x%x" % WS_PART)
    a("s_addc_u32 s91, s89, 0")
    make_srd(a, SC, 90, 91, 32 * MB)
    a("s_add_u32 s90, s88, 0x%x" % WS_ML)
    a("s_addc_u32 s91, s89, 0")
    make_srd(a, SML, 90, 91, 2 * 16 * 2048 * 8)
    a("s_add_u32 s90, s88, 0x%x" % WS_GT)
    a("s_addc_u32 s91, s89, 0")
    make_srd(a, SGT, 90, 91, 2048 * 8)
    vLane, vA, vB, t = 1, 2, 3, 4
    CA, CB, MLr, GX, GW = 16, 40, 64, 88, 96
    a("v_and_b32 v%d, 63, v0" % vLane)
    a("s_mul_i32 s%d, s2, 3" % sR)
    a("s_add_u32 s%d, s%d, %d" % (sR, sR, SPLIT_ROW))
    a("v_lshlrev_b32 v%d, 4, v0" % vA)
    a("v_lshrrev_b32 v%d, 5, v0" % vB)
    a("v_lshlrev_b32 v%d, 14, v%d" % (vB, vB))
    for r in range(3):
        a("s_add_u32 s%d, s%d, %d" % (sT0, sR, r))
        a("s_lshl_b32 s%d, s%d, 13" % (sT1, sT0))
        for c in range(2):
            a("buffer_load_dwordx4 %s, v%d, %s, s%d offen" % (vr(CA + 8 * r + 4 * c, 4), vA, sr(SC, 4), sT1))
            a("s_add_u32 s%d, s%d, 0x1000" % (sT1, sT1))
        a("s_add_u32 s%d, s%d, 0x%x" % (sT1, sT1, 0x1000000 - 0x2000))
        for c in range(2):
            a("buffer_load_dwordx4 %s, v%d, %s, s%d offen" % (vr(CB + 8 * r + 4 * c, 4), vA, sr(SC, 4), sT1))
            a("s_add_u32 s%d, s%d, 0x1000" % (sT1, sT1))
        a("s_lshl_b32 s%d, s%d, 3" % (sT1, sT0))
        for c in range(2):
            for part in range(2):
                a("s_add_u32 s%d, s%d, %d" % (sT0, sT1, c * 8 * 16384 + part * 16 * 16384))
                a("buffer_load_dwordx2 %s, v%d, %s, s%d offen" % (vr(MLr + 8 * r + 4 * c + 2 * part, 2), vB, sr(SML, 4), sT0))
    a("v_cmp_gt_u32 vcc, 56, v%d" % vLane)
    a("s_and_saveexec_b64 s[92:93], vcc")
    a("v_lshlrev_b32 v%d, 4, v%d" % (t, vLane))
    a("s_lshl_b32 s%d, s2, 3" % sT0)
    a("s_lshl_b32 s%d, s%d, 1" % (sT1, sW))
    a("s_add_u32 s%d, s%d, s%d" % (sT0, sT0, sT1))
    a("s_mul_i32 s%d, s%d, 896" % (sT1, sT0))
    a("buffer_load_dwordx4 %s, v%d, %s, 0 offen" % (vr(GW, 4), t, sr(SG, 4)))
    a("buffer_load_dwordx4 %s, v%d, %s, s%d offen" % (vr(GX, 4), t, sr(SX, 4), sT1))
    a("buffer_load_dwordx4 %s, v%d, %s, s%d offen offset:896" % (vr(GX + 4, 4), t, sr(SX, 4), sT1))
    a("s_waitcnt vmcnt(0)")
    Z = 100
    for r in range(2):
        z = Z + r
        a("v_mov_b32 v%d, 0" % z)
        for i in range(4):
            a("v_lshlrev_b32 v%d, 16, v%d" % (t, GX + 4 * r + i))
            a("v_and_b32 v%d, 0xffff0000, v%d" % (t + 1, GX + 4 * r + i))
            a("v_lshlrev_b32 v%d, 16, v%d" % (t + 2, GW + i))
            a("v_and_b32 v%d, 0xffff0000, v%d" % (t + 3, GW + i))
            a("v_mul_f32 v%d, v%d, v%d" % (t, t, t + 2))
            a("v_mul_f32 v%d, v%d, v%d" % (t + 1, t + 1, t + 3))
            a("v_cvt_pk_bf16_f32 v%d, v%d, v%d" % (t + 2, t, t + 1))
            a("v_lshlrev_b32 v%d, 16, v%d" % (t, t + 2))
            a("v_and_b32 v%d, 0xffff0000, v%d" % (t + 1, t + 2))
            a("v_add_f32 v%d, v%d, v%d" % (z, z, t))
            a("v_add_f32 v%d, v%d, v%d" % (z, z, t + 1))
    a("s_mov_b64 exec, s[92:93]")
    a("s_nop 1")
    for r in range(2):
        a("v_cndmask_b32 v%d, 0, v%d, vcc" % (Z + r, Z + r))
    for off in (0x041F, 0x081F, 0x101F, 0x201F, 0x401F):
        for r in range(2):
            a("ds_swizzle_b32 v%d, v%d offset:0x%x" % (Z + 2 + r, Z + r, off))
        a("s_waitcnt lgkmcnt(0)")
        for r in range(2):
            a("v_add_f32 v%d, v%d, v%d" % (Z + r, Z + r, Z + 2 + r))
    for r in range(2):
        a("v_mov_b32 v%d, v%d" % (Z + 2 + r, Z + r))
    a("s_nop 1")
    for r in range(2):
        a("v_permlane32_swap_b32 v%d, v%d" % (Z + 2 + r, Z + r))
    for r in range(2):
        a("v_add_f32 v%d, v%d, v%d" % (Z + r, Z + r, Z + 2 + r))
    a("v_cmp_eq_u32 vcc, 1, v%d" % vLane)
    a("s_nop 1")
    z, p = t, t + 1
    a("v_cndmask_b32 v%d, v%d, v%d, vcc" % (z, Z, Z + 1))
    a("v_cvt_pk_bf16_f32 v%d, v%d, v%d" % (p, z, z))
    a("v_lshlrev_b32 v%d, 16, v%d" % (z, p))
    a("v_mul_f32 v%d, 0x%08x, v%d" % (z, f32bits(-LOG2E), z))
    a("v_exp_f32 v%d, v%d" % (z, z))
    a("s_nop 0")
    a("v_add_f32 v%d, 1.0, v%d" % (z, z))
    a("v_rcp_f32 v%d, v%d" % (z, z))
    a("s_nop 0")
    a("v_cvt_pk_bf16_f32 v%d, v%d, v%d" % (p, z, z))
    a("v_lshlrev_b32 v%d, 16, v%d" % (t + 2, p))
    a("v_sub_f32 v%d, 1.0, v%d" % (z, t + 2))
    a("v_cvt_pk_bf16_f32 v%d, v%d, v%d" % (p, z, z))
    a("v_lshlrev_b32 v%d, 16, v%d" % (t + 3, p))
    a("v_lshlrev_b32 v%d, 3, v%d" % (t + 4, vLane))
    a("s_lshl_b32 s%d, s%d, 3" % (sT0, sT0))
    a("v_cmp_gt_u32 vcc, 2, v%d" % vLane)
    a("s_and_saveexec_b64 s[92:93], vcc")
    a("buffer_store_dwordx2 %s, v%d, %s, s%d offen" % (vr(t + 2, 2), t + 4, sr(SGT, 4), sT0))
    a("s_mov_b64 exec, s[92:93]")
    W = 104
    for k in range(6):
        mA, lA, mB, lB = MLr + 4 * k, MLr + 4 * k + 1, MLr + 4 * k + 2, MLr + 4 * k + 3
        a("v_max_f32 v%d, v%d, v%d" % (t, mA, mB))
        a("v_sub_f32 v%d, v%d, v%d" % (mA, mA, t))
        a("v_sub_f32 v%d, v%d, v%d" % (mB, mB, t))
        a("v_exp_f32 v%d, v%d" % (mA, mA))
        a("v_exp_f32 v%d, v%d" % (mB, mB))
        a("s_nop 0")
        a("v_mul_f32 v%d, v%d, v%d" % (mA, mA, lA))
        a("v_mul_f32 v%d, v%d, v%d" % (mB, mB, lB))
        a("v_add_f32 v%d, v%d, v%d" % (t, mA, mB))
        a("v_rcp_f32 v%d, v%d" % (t, t))
        a("s_nop 0")
        a("v_mul_f32 v%d, v%d, v%d" % (W + 2 * k, mA, t))
        a("v_mul_f32 v%d, v%d, v%d" % (W + 2 * k + 1, mB, t))
    U = 116
    for k in range(6):
        ra, rb = CA + 4 * k, CB + 4 * k
        for d in range(4):
            a("v_lshlrev_b32 v%d, 16, v%d" % (U + 4 * d, ra + d))
            a("v_and_b32 v%d, 0xffff0000, v%d" % (U + 4 * d + 1, ra + d))
            a("v_lshlrev_b32 v%d, 16, v%d" % (U + 4 * d + 2, rb + d))
            a("v_and_b32 v%d, 0xffff0000, v%d" % (U + 4 * d + 3, rb + d))
        for d in range(4):
            a("v_mul_f32 v%d, v%d, v%d" % (U + 4 * d, U + 4 * d, W + 2 * k))
            a("v_mul_f32 v%d, v%d, v%d" % (U + 4 * d + 1, U + 4 * d + 1, W + 2 * k))
        for d in range(4):
            a("v_fma_f32 v%d, v%d, v%d, v%d" % (U + 4 * d, U + 4 * d + 2, W + 2 * k + 1, U + 4 * d))
            a("v_fma_f32 v%d, v%d, v%d, v%d" % (U + 4 * d + 1, U + 4 * d + 3, W + 2 * k + 1, U + 4 * d + 1))
        for d in range(4):
            a("v_cvt_pk_bf16_f32 v%d, v%d, v%d" % (ra + d, U + 4 * d, U + 4 * d + 1))
        r, c = k // 2, k % 2
        a("s_add_u32 s%d, s%d, %d" % (sT0, sR, r))
        a("s_lshl_b32 s%d, s%d, 13" % (sT0, sT0))
        a("s_add_u32 s%d, s%d, %d" % (sT0, sT0, c * 0x1000))
        a("buffer_store_dwordx4 %s, v%d, %s, s%d offen" % (vr(ra, 4), vA, sr(SC, 4), sT0))
    a("s_nop 1")


def gen_conv(a):
    RS = 5952
    WSZ = 8 * RS
    HOFF = WSZ
    YOFF = WSZ + 4640
    CST = 56576
    SU, SH, SY = 4, 12, 16
    sW, sD0, sT0, sT1 = 20, 21, 22, 23
    sDD = 32
    a("s_cmp_ge_u32 s2, 224")
    a("s_cbranch_scc1 L_conv_end")
    a("s_load_dwordx2 s[46:47], s[0:1], %d" % KA['ssm_k'])
    a("s_load_dwordx2 s[48:49], s[0:1], %d" % KA['ssm_D'])
    a("s_load_dwordx2 s[50:51], s[0:1], %d" % KA['ws'])
    a("v_lshrrev_b32 v1, 6, v0")
    a("s_nop 0")
    a("v_readfirstlane_b32 s%d, v1" % sW)
    a("s_lshl_b32 s%d, s2, 1" % sD0)
    a("s_waitcnt lgkmcnt(0)")
    make_srd(a, SH, 46, 47, 448 * 4096)
    a("s_add_u32 s52, s50, 0x%x" % WS_UT)
    a("s_addc_u32 s53, s51, 0")
    make_srd(a, SU, 52, 53, 448 * 4096)
    a("s_add_u32 s50, s50, 0x%x" % WS_A)
    a("s_addc_u32 s51, s51, 0")
    make_srd(a, SY, 50, 51, 448 * 4096)
    vTid = 0
    vt = 140
    H, UO, UP = 144, 152, 160
    a("v_lshlrev_b32 v%d, 4, v%d" % (vt, vTid))
    a("s_lshl_b32 s%d, s2, 2" % sT0)
    a("s_load_dword s56, s[48:49], s%d" % sT0)
    a("v_subrev_u32 v%d, 16, v%d" % (vt + 1, vt))
    a("v_max_i32 v%d, 0, v%d" % (vt + 1, vt + 1))
    for c in range(2):
        a("s_add_u32 s%d, s%d, %d" % (sT1, sD0, c))
        a("s_lshl_b32 s%d, s%d, 12" % (sT1, sT1))
        a("buffer_load_dwordx4 %s, v%d, %s, s%d offen" % (vr(H + 4 * c, 4), vt, sr(SH, 4), sT1))
        a("buffer_load_dwordx4 %s, v%d, %s, s%d offen" % (vr(UO + 4 * c, 4), vt, sr(SU, 4), sT1))
        a("buffer_load_dwordx4 %s, v%d, %s, s%d offen" % (vr(UP + 4 * c, 4), vt + 1, sr(SU, 4), sT1))
    for i in range(4):
        a("v_mov_b32 v%d, 0" % (168 + i))
    a("v_add_u32 v%d, %d, v%d" % (vt + 2, 14 * 4096, vt))
    for i in range(28):
        a("ds_write_b128 v%d, v[168:171] offset:%d" % (vt if i < 14 else vt + 2, (i % 14) * 4096))
    a("s_waitcnt vmcnt(0) lgkmcnt(0)")
    a("s_lshl_b32 s%d, s56, 16" % sDD)
    a("s_and_b32 s%d, s56, 0xffff0000" % (sDD + 1))
    a("s_barrier")
    a("v_cmp_eq_u32 vcc, 0, v%d" % vTid)
    a("s_nop 1")
    for i in range(8):
        a("v_cndmask_b32 v%d, v%d, 0, vcc" % (UP + i, UP + i))
    a("v_add_u32 v%d, %d, v%d" % (vt + 2, CST, vt))
    a("ds_write_b128 v%d, %s offset:%d" % (vt, vr(H, 4), HOFF + 512))
    a("ds_write_b128 v%d, %s offset:%d" % (vt + 2, vr(H + 4, 4), HOFF + 512))
    x0, x1, p, y0, y1 = 104, 105, 106, 107, 108
    a("v_lshlrev_b32 v%d, 3, v%d" % (x0, vTid))
    a("v_sub_u32 v%d, 2048, v%d" % (x0, x0))
    a("v_lshrrev_b32 v%d, 8, v%d" % (x1, x0))
    a("v_lshlrev_b32 v%d, 1, v%d" % (x0, x0))
    a("v_lshl_add_u32 v%d, v%d, 4, v%d" % (x0, x1, x0))
    a("v_add_u32 v%d, %d, v%d" % (x1, CST, x0))
    a("s_mov_b32 s57, 0xffff")

    def build(prev, own, dst, r):
        d = lambda j: (prev + j) if j < 4 else (own + j - 4)
        for k in range(4):
            j = 8 + r - 2 * k
            if j & 1:
                a("v_alignbit_b32 v%d, v%d, v%d, 16" % (dst + k, d((j - 1) // 2), d((j - 1) // 2)))
            else:
                a("v_bfi_b32 v%d, s57, v%d, v%d" % (dst + k, d(j // 2), d(j // 2 - 1)))
    k = 0
    for c in range(2):
        for r in range(8):
            dst = 112 + 4 * (k % 4)
            k += 1
            build(UP + 4 * c, UO + 4 * c, dst, r)
            a("ds_write_b128 v%d, %s offset:%d" % (x0 if c == 0 else x1, vr(dst, 4), r * RS))
    a("v_cmp_eq_u32 vcc, 255, v%d" % vTid)
    a("s_and_saveexec_b64 s[58:59], vcc")
    a("v_mov_b32 v%d, 0" % y0)
    a("v_mov_b32 v%d, %d" % (y1, CST))
    for c in range(2):
        for r in range(7):
            dst = 112 + 4 * (k % 4)
            k += 1
            build(UO + 4 * c, 168, dst, r)
            a("ds_write_b128 v%d, %s offset:%d" % (y0 if c == 0 else y1, vr(dst, 4), r * RS))
    a("s_mov_b64 exec, s[58:59]")
    a("s_waitcnt lgkmcnt(0)")
    a("s_barrier")
    vLane, vHi, vL31, vA, vB, vY = 128, 129, 130, 131, 132, 133
    a("v_and_b32 v%d, 63, v%d" % (vLane, vTid))
    a("v_lshrrev_b32 v%d, 5, v%d" % (vHi, vLane))
    a("v_and_b32 v%d, 31, v%d" % (vL31, vLane))
    a("s_lshr_b32 s%d, s%d, 1" % (sT0, sW))
    a("s_mul_i32 s%d, s%d, %d" % (sT0, sT0, CST))
    a("s_and_b32 s%d, s%d, 1" % (sT1, sW))
    a("v_add_u32 v%d, v%d, v%d" % (vA, vL31, vHi))
    a("v_lshlrev_b32 v%d, 4, v%d" % (vA, vA))
    a("v_add_u32 v%d, s%d, v%d" % (vA, sT0, vA))
    a("v_lshrrev_b32 v%d, 2, v%d" % (vB, vL31))
    a("v_mul_u32_u24 v%d, %d, v%d" % (vB, RS, vB))
    a("v_and_b32 v%d, 3, v%d" % (x0, vL31))
    a("s_lshl_b32 s%d, s%d, 2" % (34, sT1))
    a("v_add_u32 v%d, s34, v%d" % (x0, x0))
    a("v_mul_u32_u24 v%d, 528, v%d" % (x1, x0))
    a("v_sub_u32 v%d, v%d, v%d" % (vB, vB, x1))
    a("v_lshl_add_u32 v%d, v%d, 4, v%d" % (vB, vHi, vB))
    a("s_add_u32 s35, s%d, %d" % (sT0, 3584 + 112))
    a("v_add_u32 v%d, s35, v%d" % (vB, vB))
    a("v_lshlrev_b32 v%d, 8, v%d" % (vY, x0))
    a("v_lshl_add_u32 v%d, v%d, 5, v%d" % (vY, vHi, vY))
    a("v_lshrrev_b32 v%d, 2, v%d" % (x1, vL31))
    a("v_add_u32 v%d, v%d, v%d" % (vY, vY, x1))
    a("v_lshlrev_b32 v%d, 1, v%d" % (vY, vY))
    a("v_add_u32 v%d, s%d, v%d" % (vY, sT0, vY))
    ACC, RA, RB = 16, 32, 64
    DD = 6

    def loop(nsteps):
        def rd(n):
            a("ds_read_b128 %s, v%d offset:%d" % (vr(RA + 4 * (n % 8), 4), vA, HOFF + 32 * n))
            a("ds_read_b128 %s, v%d offset:%d" % (vr(RB + 4 * (n % 8), 4), vB, 32 * n + 16 * (n >> 4)))
        for n in range(DD):
            rd(n)
        for n in range(nsteps):
            a("s_waitcnt lgkmcnt(%d)" % (2 * min(DD - 1, nsteps - 1 - n)))
            acc = vr(ACC, 16)
            a("v_mfma_f32_32x32x16_bf16 %s, %s, %s, %s" % (acc, vr(RA + 4 * (n % 8), 4), vr(RB + 4 * (n % 8), 4), "0" if n == 0 else acc))
            if n + DD < nsteps:
                rd(n + DD)
    a("s_cmp_eq_u32 s%d, 1" % sT1)
    a("s_cbranch_scc1 L_conv_nt1")
    loop(65)
    a("s_branch L_conv_join")
    a.label("L_conv_nt1")
    loop(129)
    a.label("L_conv_join")
    a("s_nop 15")
    for g in range(4):
        for e in range(0, 4, 2):
            r = ACC + 4 * g + e
            a("v_cvt_pk_bf16_f32 v%d, v%d, v%d" % (p, r, r + 1))
            a("ds_write_b16 v%d, v%d offset:%d" % (vY, p, YOFF + 16 * (8 * g + e)))
            a("ds_write_b16_d16_hi v%d, v%d offset:%d" % (vY, p, YOFF + 16 * (8 * g + e + 1)))
    a("s_waitcnt lgkmcnt(0)")
    a("s_barrier")
    a("ds_read_b128 v[64:67], v%d offset:%d" % (vt, YOFF))
    a("ds_read_b128 v[72:75], v%d offset:%d" % (vt + 2, YOFF))
    a("s_waitcnt lgkmcnt(0)")

    def rnd():
        a("v_cvt_pk_bf16_f32 v%d, v%d, v%d" % (p, x0, x1))
        a("v_lshlrev_b32 v%d, 16, v%d" % (x0, p))
        a("v_and_b32 v%d, 0xffff0000, v%d" % (x1, p))
    for c in range(2):
        Y, Uu = 64 + 8 * c, UO + 4 * c
        for i in range(4):
            a("v_lshlrev_b32 v%d, 16, v%d" % (x0, Uu + i))
            a("v_and_b32 v%d, 0xffff0000, v%d" % (x1, Uu + i))
            a("v_mul_f32 v%d, s%d, v%d" % (x0, sDD + c, x0))
            a("v_mul_f32 v%d, s%d, v%d" % (x1, sDD + c, x1))
            rnd()
            a("v_lshlrev_b32 v%d, 16, v%d" % (y0, Y + i))
            a("v_and_b32 v%d, 0xffff0000, v%d" % (y1, Y + i))
            a("v_add_f32 v%d, v%d, v%d" % (x0, x0, y0))
            a("v_add_f32 v%d, v%d, v%d" % (x1, x1, y1))
            a("v_cvt_pk_bf16_f32 v%d, v%d, v%d" % (Y + i, x0, x1))
        a("s_add_u32 s%d, s%d, %d" % (sT0, sD0, c))
        a("s_lshl_b32 s%d, s%d, 12" % (sT0, sT0))
        a("buffer_store_dwordx4 %s, v%d, %s, s%d offen" % (vr(Y, 4), vt, sr(SY, 4), sT0))
    a.label("L_conv_end")
    a("s_endpgm")


SPLIT_ROW = 1280


def gen_final(a):
    name = "final_kernel"
    kernel_begin(a, name)
    SX, SGT, SC, SY, SO, SWO = 4, 8, 12, 16, 20, 36
    sW, sQ0, sM0, sT0, sT1, sKA, sKB, sMB, sCnt = 24, 25, 26, 27, 28, 29, 30, 31, 52
    a("s_cmp_ge_u32 s2, 224")
    a("s_cbranch_scc1 L_fin_end")
    a("s_load_dwordx2 s[40:41], s[0:1], %d" % KA['A_q'])
    a("s_load_dwordx2 s[44:45], s[0:1], %d" % KA['ws'])
    a("s_load_dwordx2 s[46:47], s[0:1], %d" % KA['out'])
    a("s_load_dwordx2 s[50:51], s[0:1], %d" % KA['w_o'])
    a("v_lshrrev_b32 v1, 6, v0")
    a("s_nop 0")
    a("v_readfirstlane_b32 s%d, v1" % sW)
    a("s_and_b32 s%d, s2, 7" % sT0)
    a("s_lshr_b32 s%d, s2, 3" % sT1)
    a("s_and_b32 s%d, s%d, 3" % (sQ0, sT1))
    a("s_lshl_b32 s%d, s%d, 3" % (sQ0, sQ0))
    a("s_add_u32 s%d, s%d, s%d" % (sQ0, sQ0, sT0))
    a("s_lshl_b32 s%d, s%d, 6" % (sQ0, sQ0))
    a("s_lshr_b32 s%d, s%d, 2" % (sM0, sT1))
    a("s_lshl_b32 s%d, s%d, 6" % (sM0, sM0))
    a("s_waitcnt lgkmcnt(0)")
    make_srd(a, SX, 40, 41, 2048 * 896)
    a("s_add_u32 s48, s44, 0x%x" % WS_PART)
    a("s_addc_u32 s49, s45, 0")
    make_srd(a, SC, 48, 49, 16 * MB)
    a("s_add_u32 s48, s44, 0x%x" % WS_A)
    a("s_addc_u32 s49, s45, 0")
    make_srd(a, SY, 48, 49, 448 * 4096)
    a("s_add_u32 s48, s44, 0x%x" % WS_GT)
    a("s_addc_u32 s49, s45, 0")
    make_srd(a, SGT, 48, 49, 2048 * 8)
    make_srd(a, SO, 46, 47, 2048 * 896)
    make_srd(a, SWO, 50, 51, 4096 * 896)
    NS = 4
    FC, FW = [0, 32], [16, 48]
    vAg, vBg, vCr, vWr = 64, 68, 72, 76
    vLane, vHi, vL31 = 80, 81, 82
    t = 84
    a("v_and_b32 v%d, 63, v0" % vLane)
    a("v_lshrrev_b32 v%d, 5, v%d" % (vHi, vLane))
    a("v_and_b32 v%d, 31, v%d" % (vL31, vLane))
    a("v_lshrrev_b32 v%d, 4, v%d" % (t, vLane))
    a("v_and_b32 v%d, 15, v%d" % (t + 1, vLane))
    a("s_lshl_b32 s%d, s%d, 4" % (sT0, sW))
    a("s_add_u32 s%d, s%d, s%d" % (sT0, sT0, sQ0))
    for n in range(4):
        a("v_add_u32 v%d, %d, v%d" % (t + 2, 4 * n, t))
        a("v_xor_b32 v%d, v%d, v%d" % (t + 3, t + 2, t + 1))
        a("v_add_u32 v%d, s%d, v%d" % (t + 2, sT0, t + 2))
        a("v_lshlrev_b32 v%d, 13, v%d" % (t + 2, t + 2))
        a("v_lshl_add_u32 v%d, v%d, 4, v%d" % (vAg + n, t + 3, t + 2))
    a("v_lshrrev_b32 v%d, 3, v%d" % (t, vLane))
    a("s_lshl_b32 s%d, s%d, 5" % (sT0, sW))
    a("v_add_u32 v%d, s%d, v%d" % (t, sT0, t))
    a("v_mul_u32_u24 v%d, 896, v%d" % (t, t))
    a("v_bfe_u32 v%d, v%d, 4, 1" % (t + 1, vLane))
    a("v_lshlrev_b32 v%d, 2, v%d" % (t + 1, t + 1))
    a("v_and_b32 v%d, 7, v%d" % (t + 2, vLane))
    a("v_xor_b32 v%d, v%d, v%d" % (t + 1, t + 1, t + 2))
    a("v_lshl_add_u32 v%d, v%d, 4, v%d" % (t, t + 1, t))
    a("s_lshl_b32 s%d, s%d, 1" % (sT0, sM0))
    a("v_add_u32 v%d, s%d, v%d" % (t, sT0, t))
    for n in range(4):
        a("v_add_u32 v%d, %d, v%d" % (vBg + n, n * 8 * 896, t))
    a("s_lshl_b32 s%d, s%d, 1" % (sT0, sW))
    a("v_add_u32 v%d, s%d, v%d" % (t, sT0, vHi))
    a("v_and_b32 v%d, 15, v%d" % (t + 1, vL31))
    a("v_xor_b32 v%d, v%d, v%d" % (t, t, t + 1))
    a("v_lshlrev_b32 v%d, 8, v%d" % (t + 2, vL31))
    a("v_lshl_add_u32 v%d, v%d, 4, v%d" % (vCr, t, t + 2))
    a("v_xor_b32 v%d, 8, v%d" % (t, t))
    a("v_lshl_add_u32 v%d, v%d, 4, v%d" % (vCr + 1, t, t + 2))
    a("v_add_u32 v%d, 0x10000, v%d" % (vCr + 2, vCr))
    a("v_add_u32 v%d, 0x10000, v%d" % (vCr + 3, vCr + 1))
    a("v_bfe_u32 v%d, v%d, 2, 2" % (t, vLane))
    a("v_lshl_add_u32 v%d, v%d, 3, v%d" % (t, vHi, t))
    a("s_lshl_b32 s%d, s%d, 4" % (sT0, sW))
    a("v_add_u32 v%d, s%d, v%d" % (t, sT0, t))
    a("v_lshlrev_b32 v%d, 7, v%d" % (t, t))
    a("v_bfe_u32 v%d, v%d, 3, 1" % (t + 1, vLane))
    a("v_lshl_add_u32 v%d, v%d, 6, v%d" % (t, t + 1, t))
    a("v_bfe_u32 v%d, v%d, 4, 1" % (t + 1, vLane))
    a("v_lshl_add_u32 v%d, v%d, 5, v%d" % (t, t + 1, t))
    a("v_and_b32 v%d, 3, v%d" % (t + 1, vLane))
    a("v_lshl_add_u32 v%d, v%d, 3, v%d" % (t, t + 1, t))
    a("v_add_u32 v%d, 0x4000, v%d" % (vWr, t))
    a("v_xor_b32 v%d, 64, v%d" % (vWr + 1, vWr))
    a("v_add_u32 v%d, 0x10000, v%d" % (vWr + 2, vWr))
    a("v_add_u32 v%d, 0x10000, v%d" % (vWr + 3, vWr + 1))
    a("s_lshl_b32 s%d, s%d, 12" % (sMB, sW))
    a("s_mov_b32 s%d, 0" % sKA)
    a("s_mov_b32 s%d, 0" % sKB)

    def issue(tile):
        st = tile % NS
        l = []
        for n in range(4):
            l.append("s_add_u32 m0, s%d, %d" % (sMB, st * 32768 + n * 1024))
            l.append("buffer_load_dwordx4 v%d, %s, s%d offen lds" % (vAg + n, sr(SC, 4), sKA))
        for n in range(4):
            l.append("s_add_u32 m0, s%d, %d" % (sMB, st * 32768 + 16384 + n * 1024))
            l.append("buffer_load_dwordx4 v%d, %s, s%d offen lds" % (vBg + n, sr(SWO, 4), sKB))
        l.append("s_add_u32 s%d, s%d, 256" % (sKA, sKA))
        l.append("s_add_u32 s%d, s%d, %d" % (sKB, sKB, 128 * 896))
        return l

    def reads(tile):
        st = tile % NS
        fs = tile & 1
        hi2 = 2 * (st >> 1)
        l = []
        for k2 in range(2):
            for qh in range(2):
                l.append("ds_read_b128 %s, v%d offset:%d" % (vr(FC[fs] + 8 * k2 + 4 * qh, 4), vCr + hi2 + k2, (st & 1) * 32768 + qh * 8192))
            for mh in range(2):
                for j in range(2):
                    l.append("ds_read_b64_tr_b16 %s, v%d offset:%d" % (vr(FW[fs] + 8 * k2 + 4 * mh + 2 * j, 2), vWr + hi2 + mh, (st & 1) * 32768 + k2 * 8192 + j * 512))
        return l

    def mf(tile, first):
        fs = tile & 1
        l = []
        for k2 in range(2):
            for mh in range(2):
                for qh in range(2):
                    acc = ar(16 * (2 * mh + qh), 16)
                    l.append("v_mfma_f32_32x32x16_bf16 %s, %s, %s, %s" % (acc, vr(FW[fs] + 8 * k2 + 4 * mh, 4), vr(FC[fs] + 8 * k2 + 4 * qh, 4), "0" if (first and k2 == 0) else acc))
        return l
    for tl in range(3):
        for x in issue(tl):
            a(x)
    a("s_lshr_b32 s%d, s%d, 1" % (sT0, sW))
    a("s_lshl_b32 s%d, s%d, 5" % (sT0, sT0))
    a("s_add_u32 s%d, s%d, s%d" % (sT0, sT0, sM0))
    a("s_and_b32 s%d, s%d, 1" % (sT1, sW))
    a("s_lshl_b32 s%d, s%d, 5" % (sT1, sT1))
    a("s_add_u32 s%d, s%d, s%d" % (sT1, sT1, sQ0))
    a("v_add_u32 v%d, s%d, v%d" % (t, sT1, vL31))
    a("v_lshlrev_b32 v%d, 3, v%d" % (t + 5, t))
    XR, YR, GG = 96, 104, 120
    a("buffer_load_dwordx2 %s, v%d, %s, 0 offen" % (vr(GG, 2), t + 5, sr(SGT, 4)))
    a("v_mul_u32_u24 v%d, 896, v%d" % (t + 1, t))
    a("v_lshl_add_u32 v%d, v%d, 3, v%d" % (t + 1, vHi, t + 1))
    a("s_lshl_b32 s54, s%d, 1" % sT0)
    for g in range(4):
        a("buffer_load_dwordx2 %s, v%d, %s, s54 offen offset:%d" % (vr(XR + 2 * g, 2), t + 1, sr(SX, 4), 16 * g))
    a("v_lshlrev_b32 v%d, 1, v%d" % (t + 2, t))
    a("v_lshl_add_u32 v%d, v%d, 14, v%d" % (t + 2, vHi, t + 2))
    a("s_lshl_b32 s%d, s%d, 12" % (sT0, sT0))
    for g in range(4):
        for e in range(4):
            a("s_add_u32 s53, s%d, %d" % (sT0, (8 * g + e) * 4096))
            a("buffer_load_ushort v%d, v%d, %s, s53 offen" % (YR + 4 * g + e, t + 2, sr(SY, 4)))
    EX = 21
    NT = 32
    a("s_waitcnt vmcnt(%d)" % (16 + EX))
    a("s_barrier")
    for x in reads(0):
        a(x)
    for tl in range(NT):
        fill = []
        a("s_waitcnt lgkmcnt(0)")
        if tl + 1 < NT:
            after = min(NT - 1, tl + 2) - (tl + 1)
            a("s_waitcnt vmcnt(%d)" % (8 * after + (EX if tl == 0 else 0)))
            a("s_barrier")
            fill += reads(tl + 1)
            if tl + 3 < NT:
                fill += issue(tl + 3)
        for x in interleave(mf(tl, tl == 0), fill, per=4):
            a(x)
    a("s_barrier")
    a("s_nop 7")
    a("s_lshl_b32 s%d, s%d, 14" % (sT0, sW))
    a("v_lshlrev_b32 v%d, 4, v%d" % (t + 3, vLane))
    a("v_add_u32 v%d, s%d, v%d" % (t + 4, sT0, t + 3))
    for q4 in range(16):
        a("ds_write_b128 v%d, %s offset:%d" % (t + 4, ar(4 * q4, 4), q4 * 1024))
    a("s_waitcnt lgkmcnt(0)")
    a("s_barrier")
    a("s_lshl_b32 s%d, s%d, 12" % (sT0, sW))
    a("v_add_u32 v%d, s%d, v%d" % (t + 4, sT0, t + 3))
    for w2 in range(4):
        for r4 in range(4):
            a("ds_read_b128 %s, v%d offset:%d" % (vr(16 * w2 + 4 * r4, 4), t + 4, w2 * 16384 + r4 * 1024))
    a("s_waitcnt lgkmcnt(0)")
    for r in range(16):
        a("v_add_f32 v%d, v%d, v%d" % (r, r, 16 + r))
        a("v_add_f32 v%d, v%d, v%d" % (32 + r, 32 + r, 48 + r))
        a("v_add_f32 v%d, v%d, v%d" % (r, r, 32 + r))
    x0, x1, p, gg, omg = 124, 125, 126, GG, GG + 1
    y0, y1 = 127, 128
    for g in range(4):
        for e in range(0, 4, 2):
            xr = XR + 2 * g + e // 2
            a("v_lshlrev_b32 v%d, 16, v%d" % (x0, xr))
            a("v_and_b32 v%d, 0xffff0000, v%d" % (x1, xr))
            a("v_lshlrev_b32 v%d, 16, v%d" % (y0, YR + 4 * g + e))
            a("v_lshlrev_b32 v%d, 16, v%d" % (y1, YR + 4 * g + e + 1))
            a("v_mul_f32 v%d, v%d, v%d" % (x0, x0, y0))
            a("v_mul_f32 v%d, v%d, v%d" % (x1, x1, y1))
            a("v_cvt_pk_bf16_f32 v%d, v%d, v%d" % (p, x0, x1))
            a("v_lshlrev_b32 v%d, 16, v%d" % (x0, p))
            a("v_and_b32 v%d, 0xffff0000, v%d" % (x1, p))
            a("v_mul_f32 v%d, v%d, v%d" % (x0, x0, gg))
            a("v_mul_f32 v%d, v%d, v%d" % (x1, x1, gg))
            a("v_cvt_pk_bf16_f32 v%d, v%d, v%d" % (p, x0, x1))
            a("v_lshlrev_b32 v%d, 16, v%d" % (y0, p))
            a("v_and_b32 v%d, 0xffff0000, v%d" % (y1, p))
            b = 4 * g + e
            a("v_cvt_pk_bf16_f32 v%d, v%d, v%d" % (p, b, b + 1))
            a("v_lshlrev_b32 v%d, 16, v%d" % (x0, p))
            a("v_and_b32 v%d, 0xffff0000, v%d" % (x1, p))
            a("v_mul_f32 v%d, v%d, v%d" % (x0, x0, omg))
            a("v_mul_f32 v%d, v%d, v%d" % (x1, x1, omg))
            a("v_cvt_pk_bf16_f32 v%d, v%d, v%d" % (p, x0, x1))
            a("v_lshlrev_b32 v%d, 16, v%d" % (x0, p))
            a("v_and_b32 v%d, 0xffff0000, v%d" % (x1, p))
            a("v_add_f32 v%d, v%d, v%d" % (x0, x0, y0))
            a("v_add_f32 v%d, v%d, v%d" % (x1, x1, y1))
            a("v_cvt_pk_bf16_f32 v%d, v%d, v%d" % (130 + 2 * g + e // 2, x0, x1))
        a("buffer_store_dwordx2 %s, v%d, %s, s54 offen offset:%d" % (vr(130 + 2 * g, 2), t + 1, sr(SO, 4), 16 * g))
    a.label("L_fin_end")
    a("s_endpgm")
    return kernel_desc(name, 208, 144)


def f32bits(x):
    import struct
    return struct.unpack("<I", struct.pack("<f", x))[0]


def main():
    a = Asm()
    launches = []
    descs = []
    launches.append("; @launch kernel=proj_kernel grid=(256,1,1) block=(256,1,1) lds=163840")
    body = Asm()
    descs.append(gen_proj(body))
    launches.append("; @launch kernel=attn_kernel grid=(480,1,1) block=(256,1,1) lds=163840")
    descs.append(gen_attn(body))
    launches.append("; @launch kernel=final_kernel grid=(224,1,1) block=(256,1,1) lds=131072")
    descs.append(gen_final(body))
    hdr = "\n".join(launches) + "\n" + '.amdgcn_target "amdgcn-amd-amdhsa--gfx950"\n'
    txt = body.text()
    fl = os.environ.get("ST_FLAGS", "sc1")
    if fl:
        import re
        txt = re.sub(r"(buffer_store_dwordx4 [^\n]*)", lambda m: m.group(1) + " " + fl, txt)
    with open(OUT, "w") as f:
        f.write(hdr + txt + "".join(descs))
    print("wrote", OUT, len(body.lines), "lines")


if __name__ == "__main__":
    main()
```

```python
import sys, os

OUT = os.environ.get("GEN_OUT", "gated_mix__ssm_conv_h3__compressed_kv_cla__prompt.s")

KA = dict(A_q=0, A_k=8, A_v=16, shift_k=24, ssm_k=32, ssm_D=40, B_x=48, c_kv=56, w_q=64,
          w_uk=72, w_uv=80, w_o=88, gate_w=96, out=104, dbg=112, ws=120)
MB = 1 << 20
WS_Q = 0
WS_K = 16 * MB
WS_VT = 32 * MB
WS_PART = 48 * MB
PART_SZ = 2048 * 448 * 4
WS_A = 160 * MB
WS_ML = 170 * MB
WS_UT = 174 * MB
WS_GT = 172 * MB


class Asm:
    def __init__(self):
        self.lines = []
        self.n = 0

    def __call__(self, s):
        self.lines.append("    " + s)

    def label(self, l):
        self.lines.append(l + ":")

    def c(self, s):
        self.lines.append("    ; " + s)

    def raw(self, s):
        self.lines.append(s)

    def text(self):
        return "\n".join(self.lines) + "\n"


def vr(b, n):
    return "v[%d:%d]" % (b, b + n - 1)


def ar(b, n):
    return "a[%d:%d]" % (b, b + n - 1)


def sr(b, n):
    return "s[%d:%d]" % (b, b + n - 1)


def kernel_begin(a, name):
    a.raw(".text")
    a.raw(".globl %s" % name)
    a.raw(".p2align 8")
    a.raw(".type %s,@function" % name)
    a.label(name)


def kernel_desc(name, vgpr, accum, sgpr=102):
    return """.section .rodata,"a"
.p2align 6
.amdhsa_kernel %s
  .amdhsa_next_free_vgpr %d
  .amdhsa_next_free_sgpr %d
  .amdhsa_accum_offset %d
  .amdhsa_group_segment_fixed_size 0
  .amdhsa_kernarg_size 128
  .amdhsa_user_sgpr_count 2
  .amdhsa_user_sgpr_kernarg_segment_ptr 1
  .amdhsa_system_sgpr_workgroup_id_x 1
.end_amdhsa_kernel
""" % (name, vgpr, sgpr, accum)


def make_srd(a, d, lo, hi, nbytes):
    a("s_mov_b32 s%d, s%d" % (d, lo))
    a("s_and_b32 s%d, s%d, 0xffff" % (d + 1, hi))
    a("s_mov_b32 s%d, 0x%x" % (d + 2, nbytes))
    a("s_mov_b32 s%d, 0x00020000" % (d + 3))


def signal_done(a, sW, srd_lo, tmpv, lab, word, target):
    a("s_waitcnt vmcnt(0)")
    a("s_barrier")
    a("s_cmp_lg_u32 s%d, 0" % sW)
    a("s_cbranch_scc1 %s" % lab)
    a("s_load_dwordx2 s[46:47], s[0:1], %d" % KA['dbg'])
    a("s_waitcnt lgkmcnt(0)")
    make_srd(a, srd_lo, 46, 47, 256)
    a("v_mov_b32 v%d, 1" % tmpv)
    a("v_mov_b32 v%d, %d" % (tmpv + 1, 4 * word))
    a("s_mov_b64 exec, 1")
    a("buffer_atomic_add v%d, v%d, %s, 0 offen sc0" % (tmpv, tmpv + 1, sr(srd_lo, 4)))
    a("s_waitcnt vmcnt(0)")
    a("v_readfirstlane_b32 s46, v%d" % tmpv)
    a("s_nop 3")
    a("s_cmp_lg_u32 s46, %d" % (target - 1))
    a("s_cbranch_scc1 %s" % lab)
    a("v_mov_b32 v%d, 1" % tmpv)
    a("v_mov_b32 v%d, 160" % (tmpv + 1))
    a("buffer_store_dword v%d, v%d, %s, 0 offen sc1" % (tmpv, tmpv + 1, sr(srd_lo, 4)))
    a.label(lab)


def wait_count(a, sW, srd_lo, tmpv, lab, word, target):
    a("s_cmp_lg_u32 s%d, 0" % sW)
    a("s_cbranch_scc1 %s_done" % lab)
    a("s_load_dwordx2 s[46:47], s[0:1], %d" % KA['dbg'])
    a("s_waitcnt lgkmcnt(0)")
    make_srd(a, srd_lo, 46, 47, 256)
    a("v_mov_b32 v%d, %d" % (tmpv + 1, 4 * word))
    a.label(lab)
    a("buffer_load_dword v%d, v%d, %s, 0 offen sc1" % (tmpv, tmpv + 1, sr(srd_lo, 4)))
    a("s_waitcnt vmcnt(0)")
    a("v_readfirstlane_b32 s46, v%d" % tmpv)
    a("s_nop 3")
    a("s_cmp_ge_u32 s46, %d" % target)
    a("s_cbranch_scc1 %s_done" % lab)
    a("s_sleep 16")
    a("s_branch %s" % lab)
    a.label(lab + "_done")
    a("s_barrier")


def tl_begin(a):
    if os.environ.get("EXP_TL"):
        a("s_memrealtime s[98:99]")
        a("s_mov_b32 s97, s2")


def tl_mid(a):
    if os.environ.get("EXP_TL"):
        a("s_memrealtime s[94:95]")


def tl_end(a, base):
    if os.environ.get("EXP_TL"):
        a("s_mov_b64 exec, -1")
        a("s_waitcnt vmcnt(0)")
        a("s_memrealtime s[100:101]")
        a("s_load_dwordx2 s[84:85], s[0:1], %d" % KA['ws'])
        a("s_waitcnt lgkmcnt(0)")
        a("s_add_u32 s84, s84, 0x%x" % (base * MB))
        a("s_addc_u32 s85, s85, 0")
        make_srd(a, 88, 84, 85, MB)
        for i in range(4):
            a("v_mov_b32 v%d, s%d" % (8 + i, 98 + i))
        a("v_mov_b32 v12, s94")
        a("v_mov_b32 v13, s95")
        a("s_lshl_b32 s86, s97, 5")
        a("v_mov_b32 v40, 0")
        a("s_nop 4")
        a("buffer_store_dwordx4 v[8:11], v40, s[88:91], s86 offen")
        a("buffer_store_dwordx2 v[12:13], v40, s[88:91], s86 offen offset:16")


def interleave(main, fill, start=0, per=1):
    out = []
    fi = 0
    for i, m in enumerate(main):
        out.append(m)
        if i >= start:
            for _ in range(per):
                if fi < len(fill):
                    out.append(fill[fi])
                    fi += 1
    out.extend(fill[fi:])
    return out


def gen_ujob(a, sW, sT0, sT1):
    SK, SV, SS, SU = 60, 64, 68, 72
    a("s_load_dwordx2 s[76:77], s[0:1], %d" % KA['A_k'])
    a("s_load_dwordx2 s[78:79], s[0:1], %d" % KA['A_v'])
    a("s_load_dwordx2 s[80:81], s[0:1], %d" % KA['shift_k'])
    a("s_load_dwordx2 s[82:83], s[0:1], %d" % KA['ws'])
    a("s_waitcnt lgkmcnt(0)")
    make_srd(a, SK, 76, 77, 2048 * 896)
    make_srd(a, SV, 78, 79, 2048 * 896)
    make_srd(a, SS, 80, 81, 448 * 8)
    a("s_add_u32 s82, s82, 0x%x" % WS_UT)
    a("s_addc_u32 s83, s83, 0")
    make_srd(a, SU, 82, 83, 448 * 4096)
    vL, vo, vs = 106, 107, 108
    KR, VR, SR = 110, 130, 138
    KF, VF, SF = 154, 194, 210
    x0, x1, y0, y1, p = 242, 243, 244, 245, 246
    OUT = 248
    a("v_mbcnt_lo_u32_b32 v%d, -1, 0" % vL)
    a("v_mbcnt_hi_u32_b32 v%d, -1, v%d" % (vL, vL))
    a("v_cmp_gt_u32 vcc, 56, v%d" % vL)
    a("s_and_saveexec_b64 s[84:85], vcc")
    a("s_lshl_b32 s%d, s2, 3" % sT0)
    a("s_lshl_b32 s%d, s%d, 1" % (sT1, sW))
    a("s_add_u32 s86, s%d, s%d" % (sT0, sT1))
    a("v_lshlrev_b32 v%d, 4, v%d" % (vo, vL))
    for i in range(3):
        a("s_sub_u32 s%d, s86, %d" % (sT0, 3 - i))
        a("s_mul_i32 s%d, s%d, 896" % (sT0, sT0))
        a("v_add_u32 v%d, s%d, v%d" % (vs, sT0, vo))
        a("buffer_load_dwordx4 %s, v%d, %s, 0 offen" % (vr(KR + 4 * i, 4), vs, sr(SK, 4)))
    a("s_mul_i32 s%d, s86, 896" % sT0)
    a("buffer_load_dwordx4 %s, v%d, %s, s%d offen" % (vr(KR + 12, 4), vo, sr(SK, 4), sT0))
    a("buffer_load_dwordx4 %s, v%d, %s, s%d offen offset:896" % (vr(KR + 16, 4), vo, sr(SK, 4), sT0))
    a("buffer_load_dwordx4 %s, v%d, %s, s%d offen" % (vr(VR, 4), vo, sr(SV, 4), sT0))
    a("buffer_load_dwordx4 %s, v%d, %s, s%d offen offset:896" % (vr(VR + 4, 4), vo, sr(SV, 4), sT0))
    a("v_lshlrev_b32 v%d, 6, v%d" % (vs, vL))
    for i in range(4):
        a("buffer_load_dwordx4 %s, v%d, %s, 0 offen offset:%d" % (vr(SR + 4 * i, 4), vs, sr(SS, 4), 16 * i))
    a("s_load_dwordx2 s[76:77], s[0:1], %d" % KA['A_q'])
    a("s_load_dwordx2 s[78:79], s[0:1], %d" % KA['gate_w'])
    a("s_load_dwordx2 s[80:81], s[0:1], %d" % KA['ws'])
    a("s_waitcnt lgkmcnt(0)")
    make_srd(a, SK, 76, 77, 2048 * 896)
    make_srd(a, SV, 78, 79, 896)
    a("s_add_u32 s80, s80, 0x%x" % WS_GT)
    a("s_addc_u32 s81, s81, 0")
    make_srd(a, SS, 80, 81, 2048 * 8)
    GX, GW, Z = 4, 12, 16
    a("buffer_load_dwordx4 %s, v%d, %s, s%d offen" % (vr(GX, 4), vo, sr(SK, 4), sT0))
    a("buffer_load_dwordx4 %s, v%d, %s, s%d offen offset:896" % (vr(GX + 4, 4), vo, sr(SK, 4), sT0))
    a("buffer_load_dwordx4 %s, v%d, %s, 0 offen" % (vr(GW, 4), vo, sr(SV, 4)))
    a("s_waitcnt vmcnt(0)")
    for r in range(2):
        z = Z + r
        a("v_mov_b32 v%d, 0" % z)
        for i in range(4):
            a("v_lshlrev_b32 v%d, 16, v%d" % (x0, GX + 4 * r + i))
            a("v_and_b32 v%d, 0xffff0000, v%d" % (x1, GX + 4 * r + i))
            a("v_lshlrev_b32 v%d, 16, v%d" % (y0, GW + i))
            a("v_and_b32 v%d, 0xffff0000, v%d" % (y1, GW + i))
            a("v_mul_f32 v%d, v%d, v%d" % (x0, x0, y0))
            a("v_mul_f32 v%d, v%d, v%d" % (x1, x1, y1))
            a("v_cvt_pk_bf16_f32 v%d, v%d, v%d" % (p, x0, x1))
            a("v_lshlrev_b32 v%d, 16, v%d" % (x0, p))
            a("v_and_b32 v%d, 0xffff0000, v%d" % (x1, p))
            a("v_add_f32 v%d, v%d, v%d" % (z, z, x0))
            a("v_add_f32 v%d, v%d, v%d" % (z, z, x1))
    for i in range(20):
        a("v_lshlrev_b32 v%d, 16, v%d" % (KF + 2 * i, KR + i))
        a("v_and_b32 v%d, 0xffff0000, v%d" % (KF + 2 * i + 1, KR + i))
    for i in range(8):
        a("v_lshlrev_b32 v%d, 16, v%d" % (VF + 2 * i, VR + i))
        a("v_and_b32 v%d, 0xffff0000, v%d" % (VF + 2 * i + 1, VR + i))
    for i in range(16):
        a("v_lshlrev_b32 v%d, 16, v%d" % (SF + 2 * i, SR + i))
        a("v_and_b32 v%d, 0xffff0000, v%d" % (SF + 2 * i + 1, SR + i))

    def rnd():
        a("v_cvt_pk_bf16_f32 v%d, v%d, v%d" % (p, x0, x1))
        a("v_lshlrev_b32 v%d, 16, v%d" % (x0, p))
        a("v_and_b32 v%d, 0xffff0000, v%d" % (x1, p))
    for c in range(8):
        kf = lambda row: KF + 8 * row + c
        sk = lambda j: SF + 4 * c + j
        a("v_mul_f32 v%d, v%d, v%d" % (x0, kf(0), sk(3)))
        a("v_mul_f32 v%d, v%d, v%d" % (x1, kf(1), sk(3)))
        rnd()
        for j in range(1, 4):
            a("v_mov_b32 v%d, v%d" % (y0, x0))
            a("v_mov_b32 v%d, v%d" % (y1, x1))
            a("v_mul_f32 v%d, v%d, v%d" % (x0, kf(j), sk(3 - j)))
            a("v_mul_f32 v%d, v%d, v%d" % (x1, kf(j + 1), sk(3 - j)))
            rnd()
            a("v_add_f32 v%d, v%d, v%d" % (x0, y0, x0))
            a("v_add_f32 v%d, v%d, v%d" % (x1, y1, x1))
            rnd()
        a("v_mul_f32 v%d, v%d, v%d" % (x0, x0, VF + c))
        a("v_mul_f32 v%d, v%d, v%d" % (x1, x1, VF + 8 + c))
        a("v_cvt_pk_bf16_f32 v%d, v%d, v%d" % (OUT + c, x0, x1))
    a("v_lshlrev_b32 v%d, 15, v%d" % (vs, vL))
    a("s_lshl_b32 s%d, s86, 1" % sT0)
    for c in range(8):
        a("s_add_u32 s%d, s%d, %d" % (sT1, sT0, c * 4096))
        a("buffer_store_dword v%d, v%d, %s, s%d offen" % (OUT + c, vs, sr(SU, 4), sT1))
    a("s_mov_b64 exec, s[84:85]")
    a("v_cmp_gt_u32 vcc, 56, v%d" % vL)
    a("s_nop 1")
    for r in range(2):
        a("v_cndmask_b32 v%d, 0, v%d, vcc" % (Z + r, Z + r))
    for off in (0x041F, 0x081F, 0x101F, 0x201F, 0x401F):
        for r in range(2):
            a("ds_swizzle_b32 v%d, v%d offset:0x%x" % (Z + 2 + r, Z + r, off))
        a("s_waitcnt lgkmcnt(0)")
        for r in range(2):
            a("v_add_f32 v%d, v%d, v%d" % (Z + r, Z + r, Z + 2 + r))
    for r in range(2):
        a("v_mov_b32 v%d, v%d" % (Z + 2 + r, Z + r))
    a("s_nop 1")
    for r in range(2):
        a("v_permlane32_swap_b32 v%d, v%d" % (Z + 2 + r, Z + r))
    for r in range(2):
        a("v_add_f32 v%d, v%d, v%d" % (Z + r, Z + r, Z + 2 + r))
    a("v_cmp_eq_u32 vcc, 1, v%d" % vL)
    a("s_nop 1")
    z = x0
    a("v_cndmask_b32 v%d, v%d, v%d, vcc" % (z, Z, Z + 1))
    a("v_cvt_pk_bf16_f32 v%d, v%d, v%d" % (p, z, z))
    a("v_lshlrev_b32 v%d, 16, v%d" % (z, p))
    a("v_mul_f32 v%d, 0x%08x, v%d" % (z, f32bits(-1.4426950408889634), z))
    a("v_exp_f32 v%d, v%d" % (z, z))
    a("s_nop 0")
    a("v_add_f32 v%d, 1.0, v%d" % (z, z))
    a("v_rcp_f32 v%d, v%d" % (z, z))
    a("s_nop 0")
    a("v_cvt_pk_bf16_f32 v%d, v%d, v%d" % (p, z, z))
    a("v_lshlrev_b32 v%d, 16, v%d" % (y0, p))
    a("v_sub_f32 v%d, 1.0, v%d" % (z, y0))
    a("v_cvt_pk_bf16_f32 v%d, v%d, v%d" % (p, z, z))
    a("v_lshlrev_b32 v%d, 16, v%d" % (y1, p))
    a("v_lshlrev_b32 v%d, 3, v%d" % (vs, vL))
    a("s_lshl_b32 s%d, s86, 3" % sT0)
    a("v_cmp_gt_u32 vcc, 2, v%d" % vL)
    a("s_and_saveexec_b64 s[84:85], vcc")
    a("buffer_store_dwordx2 %s, v%d, %s, s%d offen" % (vr(y0, 2), vs, sr(SS, 4), sT0))
    a("s_mov_b64 exec, s[84:85]")


def gen_proj(a):
    name = "proj_kernel"
    kernel_begin(a, name)
    tl_begin(a)
    SA, SB, SO = 4, 8, 12
    SA2, SB2, SO2 = 48, 52, 56
    sW, sM0, sKA, sKB, sCnt, sMode = 16, 17, 18, 19, 20, 21
    sMb, sNb, sNq, sT0, sT1, sNt, sMq, sKA2, sKB2, sSt = 22, 23, 24, 25, 26, 27, 28, 29, 30, 31
    a("s_cmp_ge_u32 s2, 256")
    a("s_cbranch_scc1 L_proj_end")
    a("s_load_dwordx2 s[32:33], s[0:1], %d" % KA['A_q'])
    a("s_load_dwordx2 s[34:35], s[0:1], %d" % KA['c_kv'])
    a("s_load_dwordx2 s[36:37], s[0:1], %d" % KA['w_q'])
    a("s_load_dwordx2 s[38:39], s[0:1], %d" % KA['w_uk'])
    a("s_load_dwordx2 s[40:41], s[0:1], %d" % KA['w_uv'])
    a("s_load_dwordx2 s[42:43], s[0:1], %d" % KA['ws'])
    a("v_lshrrev_b32 v1, 6, v0")
    a("v_and_b32 v0, 63, v0")
    a("s_nop 0")
    a("v_readfirstlane_b32 s%d, v1" % sW)
    a("s_and_b32 s%d, s2, 7" % sT0)
    a("s_lshr_b32 s%d, s2, 3" % sT1)
    a("s_and_b32 s%d, s%d, 7" % (sMb, sT1))
    a("s_lshr_b32 s%d, s%d, 3" % (sT1, sT1))
    a("s_lshl_b32 s%d, s%d, 2" % (sT0, sT0))
    a("s_add_u32 s%d, s%d, s%d" % (sNt, sT0, sT1))
    a("s_lshl_b32 s%d, s%d, 8" % (sMb, sMb))
    a("s_waitcnt lgkmcnt(0)")
    make_srd(a, SA, 34, 35, 2048 * 2048)
    a("s_cmp_ge_u32 s%d, 16" % sNt)
    a("s_cselect_b32 s44, s40, s38")
    a("s_cselect_b32 s45, s41, s39")
    a("s_cselect_b32 s%d, 1, 0" % sMode)
    make_srd(a, SB, 44, 45, 1024 * 8192)
    a("s_and_b32 s%d, s%d, 15" % (sNb, sNt))
    a("s_lshl_b32 s%d, s%d, 8" % (sNb, sNb))
    a("s_lshl_b32 s%d, s%d, 24" % (sT0, sMode))
    a("s_add_u32 s%d, s%d, 0x%x" % (sT0, sT0, WS_K))
    a("s_add_u32 s46, s42, s%d" % sT0)
    a("s_addc_u32 s47, s43, 0")
    make_srd(a, SO, 46, 47, 16 * MB)
    make_srd(a, SA2, 32, 33, 2048 * 896)
    make_srd(a, SB2, 36, 37, 448 * 8192)
    make_srd(a, SO2, 42, 43, 16 * MB)
    a("s_lshl_b32 s%d, s%d, 7" % (sNq, sNt))
    a("s_lshl_b32 s%d, s%d, 12" % (sMq, sW))
    a("s_lshl_b32 s%d, s%d, 13" % (sM0, sW))
    for r in (sKA, sKB, sKA2, sKB2):
        a("s_mov_b32 s%d, 0" % r)

    FA = [0, 32]
    FB = [16, 48]
    vLane, vHi, vL31 = 64, 65, 66
    vOA, vOB, vRA, vRB = 68, 76, 84, 88
    vOA2, vOB2, vRB2 = 92, 100, 104
    vT = 106
    QACC = 128
    a("v_mov_b32 v%d, v0" % vLane)
    a("v_lshrrev_b32 v%d, 5, v0" % vHi)
    a("v_and_b32 v%d, 31, v0" % vL31)

    def setupA(dst, lda):
        a("v_lshrrev_b32 v%d, 3, v%d" % (vT, vLane))
        a("s_lshl_b32 s%d, s%d, 6" % (sT0, sW))
        a("s_add_u32 s%d, s%d, s%d" % (sT0, sT0, sMb))
        a("v_add_u32 v%d, s%d, v%d" % (vT, sT0, vT))
        a("v_mul_u32_u24 v%d, %d, v%d" % (vT, lda, vT))
        a("v_and_b32 v%d, 7, v%d" % (vT + 1, vLane))
        a("v_lshrrev_b32 v%d, 4, v%d" % (vT + 2, vLane))
        a("v_xor_b32 v%d, v%d, v%d" % (vT + 3, vT + 1, vT + 2))
        a("v_xor_b32 v%d, 4, v%d" % (vT + 4, vT + 3))
        a("v_lshlrev_b32 v%d, 4, v%d" % (vT + 3, vT + 3))
        a("v_lshlrev_b32 v%d, 4, v%d" % (vT + 4, vT + 4))
        for n in range(8):
            a("v_add_u32 v%d, v%d, v%d" % (dst + n, vT, vT + 3 + (n & 1)))
            if n < 7:
                a("v_add_u32 v%d, %d, v%d" % (vT, 8 * lda, vT))
    setupA(vOA, 2048)
    a("s_lshl_b32 s%d, s%d, 4" % (sT0, sW))
    a("v_add_u32 v%d, s%d, v%d" % (vT, sT0, vHi))
    a("v_lshlrev_b32 v%d, 13, v%d" % (vT, vT))
    a("s_lshl_b32 s%d, s%d, 1" % (sT0, sNb))
    a("v_add_u32 v%d, s%d, v%d" % (vT, sT0, vT))
    a("v_lshlrev_b32 v%d, 2, v%d" % (vT + 1, vHi))
    a("v_xor_b32 v%d, v%d, v%d" % (vT + 3, vL31, vT + 1))
    a("v_xor_b32 v%d, 8, v%d" % (vT + 4, vT + 3))
    a("v_lshlrev_b32 v%d, 4, v%d" % (vT + 3, vT + 3))
    a("v_lshlrev_b32 v%d, 4, v%d" % (vT + 4, vT + 4))
    for n in range(8):
        a("v_add_u32 v%d, v%d, v%d" % (vOB + n, vT, vT + 3 + (n & 1)))
        if n < 7:
            a("v_add_u32 v%d, 0x4000, v%d" % (vT, vT))

    def dmaA(q):
        l = []
        for n in range(8):
            l.append(["s_add_u32 m0, s%d, %d" % (sM0, n * 1024),
                      "buffer_load_dwordx4 v%d, %s, s%d offen lds" % ((vOA2 if q else vOA) + n, sr(SA2 if q else SA, 4), sKA2 if q else sKA)])
        l.append(["s_add_u32 s%d, s%d, 128" % ((sKA2, sKA2) if q else (sKA, sKA))])
        return l

    def dmaB(q):
        l = []
        if q:
            for n in range(4):
                l.append(["s_add_u32 m0, s%d, %d" % (sMq, 32768 + n * 1024),
                          "buffer_load_dwordx4 v%d, %s, s%d offen lds" % (vOB2 + n, sr(SB2, 4), sKB2)])
            l.append(["s_add_u32 s%d, s%d, 0x80000" % (sKB2, sKB2), "s_xor_b32 s%d, s%d, 0x10000" % (sM0, sM0), "s_xor_b32 s%d, s%d, 0x10000" % (sMq, sMq)])
        else:
            for n in range(8):
                l.append(["s_add_u32 m0, s%d, %d" % (sM0, 32768 + n * 1024),
                          "buffer_load_dwordx4 v%d, %s, s%d offen lds" % (vOB + n, sr(SB, 4), sKB)])
            l.append(["s_add_u32 s%d, s%d, 0x80000" % (sKB, sKB), "s_xor_b32 s%d, s%d, 0x10000" % (sM0, sM0)])
        return l

    def flat(l):
        o = []
        for x in l:
            o.extend(x)
        return o
    for x in flat(dmaA(False) + dmaB(False) + dmaA(False)):
        a(x)
    setupA(vOA2, 896)
    a("v_lshrrev_b32 v%d, 4, v%d" % (vT + 1, vLane))
    a("s_lshl_b32 s%d, s%d, 4" % (sT0, sW))
    a("v_add_u32 v%d, s%d, v%d" % (vT, sT0, vT + 1))
    a("v_lshlrev_b32 v%d, 13, v%d" % (vT, vT))
    a("s_lshl_b32 s%d, s%d, 1" % (sT0, sNq))
    a("v_add_u32 v%d, s%d, v%d" % (vT, sT0, vT))
    a("v_lshlrev_b32 v%d, 2, v%d" % (vT + 1, vT + 1))
    a("v_and_b32 v%d, 15, v%d" % (vT + 2, vLane))
    a("v_xor_b32 v%d, v%d, v%d" % (vT + 1, vT + 1, vT + 2))
    a("v_lshl_add_u32 v%d, v%d, 4, v%d" % (vT, vT + 1, vT))
    for n in range(4):
        a("v_add_u32 v%d, %d, v%d" % (vOB2 + n, n * 0x8000, vT))
    a("s_and_b32 s%d, s%d, 1" % (sT0, sW))
    a("s_lshr_b32 s%d, s%d, 1" % (sT1, sW))
    a("s_lshl_b32 s%d, s%d, 14" % (sT0, sT0))
    a("v_lshlrev_b32 v%d, 7, v%d" % (vT, vL31))
    a("v_add_u32 v%d, s%d, v%d" % (vT, sT0, vT))
    a("v_bfe_u32 v%d, v%d, 1, 3" % (vT + 1, vLane))
    a("v_xor_b32 v%d, v%d, v%d" % (vT + 1, vT + 1, vHi))
    for ks in range(4):
        a("v_xor_b32 v%d, %d, v%d" % (vT + 2, 2 * ks, vT + 1))
        a("v_lshl_add_u32 v%d, v%d, 4, v%d" % (vRA + ks, vT + 2, vT))
    a("v_bfe_u32 v%d, v%d, 2, 2" % (vT, vLane))
    a("v_lshl_add_u32 v%d, v%d, 3, v%d" % (vT + 1, vHi, vT))
    a("v_bfe_u32 v%d, v%d, 4, 1" % (vT + 2, vLane))
    a("v_lshlrev_b32 v%d, 5, v%d" % (vT + 3, vT + 2))
    a("v_bfe_u32 v%d, v%d, 1, 1" % (vT + 2, vLane))
    a("v_lshl_add_u32 v%d, v%d, 4, v%d" % (vT + 3, vT + 2, vT + 3))
    a("v_and_b32 v%d, 1, v%d" % (vT + 2, vLane))
    a("v_lshl_add_u32 v%d, v%d, 3, v%d" % (vT + 3, vT + 2, vT + 3))
    a("v_add_u32 v%d, 0x8000, v%d" % (vT + 3, vT + 3))
    a("v_lshl_add_u32 v%d, v%d, 9, v%d" % (vT + 4, vT + 1, vT + 3))
    a("s_lshl_b32 s%d, s%d, 8" % (sT0, sT1))
    a("v_add_u32 v%d, s%d, v%d" % (vT + 4, sT0, vT + 4))
    for nt in range(4):
        a("v_xor_b32 v%d, %d, v%d" % (vT + 2, nt, vT))
        a("v_lshl_add_u32 v%d, v%d, 6, v%d" % (vRB + nt, vT + 2, vT + 4))
    a("v_lshl_add_u32 v%d, v%d, 8, v%d" % (vT + 4, vT + 1, vT + 3))
    a("s_lshl_b32 s%d, s%d, 1" % (sT1, sT1))
    for nt in range(2):
        a("v_mov_b32 v%d, s%d" % (vT + 5, sT1))
        a("v_add_u32 v%d, %d, v%d" % (vT + 5, nt, vT + 5))
        a("v_xor_b32 v%d, v%d, v%d" % (vT + 2, vT + 5, vT))
        a("v_lshl_add_u32 v%d, v%d, 6, v%d" % (vRB2 + nt, vT + 2, vT + 4))

    def frag_reads(st, ks, q):
        A = ["ds_read_b128 %s, v%d offset:%d" % (vr(FA[st] + 4 * mt, 4), vRA + ks, mt * 4096) for mt in range(4)]
        B = []
        pitch = 256 if q else 512
        for nt in range(2 if q else 4):
            for j in range(2):
                B.append("ds_read_b64_tr_b16 %s, v%d offset:%d" % (vr(FB[st] + 4 * nt + 2 * j, 2), (vRB2 if q else vRB) + nt, (ks * 16 + j * 4) * pitch))
        if q:
            return [A[0], B[0], B[1], B[2], B[3], A[1], A[2], A[3]]
        return [A[0], B[0], B[1], B[2], B[3], A[1], B[4], B[5], B[6], B[7], A[2], A[3]]

    def mfmas(st, mode, q, first):
        l = []
        nn = 2 if q else 4
        for mt in range(4):
            for nt in range(nn):
                acc = vr(QACC + (mt * nn + nt) * 16, 16) if q else ar((mt * nn + nt) * 16, 16)
                A = vr(FA[st] + 4 * mt, 4)
                B = vr(FB[st] + 4 * nt, 4)
                c = "0" if first else acc
                if q or mode == 0:
                    l.append("v_mfma_f32_32x32x16_bf16 %s, %s, %s, %s" % (acc, B, A, c))
                else:
                    l.append("v_mfma_f32_32x32x16_bf16 %s, %s, %s, %s" % (acc, A, B, c))
        return l

    def tog(regs):
        return ["v_xor_b32 v%d, 0x10000, v%d" % (r, r) for r in regs]

    def weave(mf, reads, groups, extra=()):
        n = len(mf)
        slots = [[] for _ in range(n)]
        for i, r in enumerate(reads):
            slots[min(n - 1, i * n // len(reads) if len(reads) > n else i)].append(r)
        for i, g in enumerate(groups):
            slots[min(n - 1, (i * n) // max(1, len(groups)))].extend(g)
        for i, g in enumerate(extra):
            slots[min(n - 1, (i * n) // max(1, len(extra)))].append(g)
        out = []
        for i in range(n):
            out.append(mf[i])
            out.extend(slots[i])
        return out

    def body(out, mode, q, h2, h1, nxt, first=False, nextq=None, extras=None):
        if nextq is None:
            nextq = q
        ex = extras or [[], [], [], []]
        for ks in range(3):
            out.append("s_waitcnt lgkmcnt(0)")
            out.extend(weave(mfmas(ks & 1, mode, q, first and ks == 0), frag_reads((ks + 1) & 1, ks + 1, q), h2 if ks == 0 else [], ex[ks]))
        out.append("s_waitcnt lgkmcnt(0)")
        rd = []
        if nxt:
            out.append("VMWAIT")
            out.append("s_barrier")
            regs = list(range(vRA, vRA + 4))
            if nextq == q:
                regs += list(range(vRB2, vRB2 + 2)) if q else list(range(vRB, vRB + 4))
            rd = tog(regs) + frag_reads(0, 0, nextq)
        out.extend(weave(mfmas(1, mode, q, False), rd, h1, ex[3]))

    def flush(out):
        cnt = 0
        for x in out:
            if x == "VMWAIT":
                a("s_waitcnt vmcnt(%d)" % cnt)
                continue
            if x.startswith("buffer_load") and x.endswith("lds"):
                cnt = 0
            elif x.startswith("buffer_"):
                cnt += 1
            a(x)

    def kv_epilogue_stream(mode):
        TB, RB = 68, 88
        return None

    def stamp(i):
        if os.environ.get("EXP_STAMP"):
            a("s_memtime s[%d:%d]" % (88 + 2 * i, 89 + 2 * i) if i < 7 else "s_memrealtime s[60:61]")
    stamp(0)
    if os.environ.get("EXP_STAMP"):
        a("s_memrealtime s[46:47]")
    if not os.environ.get("NO_PREFETCH"):
        a("s_load_dwordx2 s[76:77], s[0:1], %d" % KA['w_o'])
        a("s_load_dwordx2 s[78:79], s[0:1], %d" % KA['ssm_k'])
        a("s_waitcnt lgkmcnt(0)")
        make_srd(a, 60, 76, 77, 4096 * 896)
        make_srd(a, 64, 78, 79, 448 * 4096)
        a("v_lshlrev_b32 v%d, 7, v%d" % (vT, vLane))
        a("s_lshl_b32 s%d, s%d, 13" % (sT0, sW))
        a("v_add_u32 v%d, s%d, v%d" % (vT, sT0, vT))
        a("s_mul_i32 s%d, s2, 14336" % sT0)
        a("v_cmp_gt_u32 vcc, 14336, v%d" % vT)
        a("s_and_saveexec_b64 s[84:85], vcc")
        a("buffer_load_dword v%d, v%d, %s, s%d offen" % (0, vT, sr(SB2, 4), sT0))
        a("buffer_load_dword v%d, v%d, s[60:63], s%d offen" % (1, vT, sT0))
        a("s_mov_b64 exec, s[84:85]")
        a("s_mul_i32 s%d, s2, 7168" % sT0)
        a("v_cmp_gt_u32 vcc, 7168, v%d" % vT)
        a("s_and_saveexec_b64 s[84:85], vcc")
        a("buffer_load_dword v%d, v%d, s[64:67], s%d offen" % (2, vT, sT0))
        a("s_mov_b64 exec, s[84:85]")
    gen_ujob(a, sW, sT0, sT1)
    a("s_waitcnt vmcnt(9)")
    a("s_barrier")
    stamp(1)
    for x in frag_reads(0, 0, False):
        a(x)
    a("s_cmp_eq_u32 s%d, 1" % sMode)
    a("s_cbranch_scc1 L_proj_m1")
    for mode in range(2):
        if mode:
            a.label("L_proj_m1")
        o = []
        body(o, mode, False, dmaB(False), dmaA(False), True, first=True)
        flush(o)
        a("s_mov_b32 s%d, 13" % sCnt)
        a.label("L_proj_loop%d" % mode)
        o = []
        body(o, mode, False, dmaB(False), dmaA(False), True)
        flush(o)
        a("s_sub_u32 s%d, s%d, 1" % (sCnt, sCnt))
        a("s_cmp_lg_u32 s%d, 0" % sCnt)
        a("s_cbranch_scc1 L_proj_loop%d" % mode)
        o = []
        body(o, mode, False, dmaB(False), dmaA(True), True)
        body(o, mode, False, dmaB(True), dmaA(True), True, nextq=True)
        flush(o)
        stamp(2)
        TBS = [68, 74, 122]
        vw, vrd, vo, vx = 88, 89, 90, 91
        RB = 106
        pre = []
        pre.append("s_and_b32 s%d, s%d, 1" % (sT0, sW))
        pre.append("s_lshr_b32 s%d, s%d, 1" % (sT1, sW))
        pre.append("s_lshl_b32 s%d, s%d, 7" % (sT0, sT0))
        pre.append("s_lshl_b32 s%d, s%d, 7" % (sT1, sT1))
        pre.append("s_add_u32 s%d, s%d, s%d" % (sT0, sT0, sMb))
        pre.append("s_add_u32 s%d, s%d, s%d" % (sT1, sT1, sNb))
        pre.append("s_lshl_b32 s%d, s%d, 13" % (sSt, sW))
        pre.append("s_add_u32 s%d, s%d, 0x20000" % (sSt, sSt))
        pre.append("v_and_b32 v%d, 15, v%d" % (vw, vL31))
        if mode == 1:
            pre.append("v_xor_b32 v%d, v%d, v%d" % (vw, vw, vHi))
        pre.append("v_lshlrev_b32 v%d, 4, v%d" % (vw, vw))
        pre.append("v_lshl_add_u32 v%d, v%d, 8, v%d" % (vw, vL31, vw))
        if mode == 0:
            pre.append("v_lshl_add_u32 v%d, v%d, 3, v%d" % (vw, vHi, vw))
        pre.append("v_add_u32 v%d, s%d, v%d" % (vw, sSt, vw))
        pre.append("v_lshrrev_b32 v%d, 4, v%d" % (vrd, vLane))
        pre.append("v_and_b32 v%d, 15, v%d" % (vo, vLane))
        pre.append("v_xor_b32 v%d, v%d, v%d" % (vx, vrd, vo))
        pre.append("v_lshlrev_b32 v%d, 4, v%d" % (vx, vx))
        pre.append("v_lshl_add_u32 v%d, v%d, 8, v%d" % (vx, vrd, vx))
        rs = 13 if mode == 0 else 12
        r0, c0 = (sT0, sT1) if mode == 0 else (sT1, sT0)
        pre.append("v_add_u32 v%d, s%d, v%d" % (vrd, r0, vrd))
        pre.append("v_lshlrev_b32 v%d, %d, v%d" % (vrd, rs, vrd))
        pre.append("v_lshl_add_u32 v%d, v%d, 4, v%d" % (vo, vo, vrd))
        pre.append("s_lshl_b32 s%d, s%d, 1" % (c0, c0))
        pre.append("v_add_u32 v%d, s%d, v%d" % (vo, c0, vo))
        pre.append("v_add_u32 v%d, s%d, v%d" % (vrd, sSt, vx))
        segs = [[] for _ in range(28)]
        segs[0].extend(pre)
        k = 0
        for r in range(4):
            wr = []
            for u in range(16):
                o2, g = u // 4, u % 4
                mt, nt = (r, o2) if mode == 0 else (o2, r)
                t = TBS[k % 3]
                k += 1
                base = (mt * 4 + nt) * 16 + 4 * g
                for e in range(4):
                    wr.append("v_accvgpr_read_b32 v%d, a%d" % (t + e, base + e))
                wr.append("v_cvt_pk_bf16_f32 v%d, v%d, v%d" % (t + 4, t, t + 1))
                wr.append("v_cvt_pk_bf16_f32 v%d, v%d, v%d" % (t + 5, t + 2, t + 3))
                if mode == 0:
                    wr.append("v_xor_b32 v%d, %d, v%d" % (t, 16 * (4 * nt + g), vw))
                    wr.append("ds_write_b64 v%d, %s" % (t, vr(t + 4, 2)))
                else:
                    wr.append("v_xor_b32 v%d, %d, v%d" % (t, 16 * (4 * mt + 2 * (g >> 1)), vw))
                    wr.append("ds_write_b64 v%d, %s offset:%d" % (t, vr(t + 4, 2), 8 * (g & 1)))
            s0 = 1 + 6 * r
            for i, x in enumerate(wr):
                segs[s0 + i * 4 // len(wr)].append(x)
            for hf in range(2):
                rd, st = [], []
                for i in range(4):
                    ii = 4 * hf + i
                    rd.append("v_xor_b32 v%d, %d, v%d" % (vx, 16 * ((4 * ii) & 15), vrd))
                    rd.append("ds_read_b128 %s, v%d offset:%d" % (vr(RB + 4 * i, 4), vx, ii * 1024))
                    st.append("s_mov_b32 s%d, %d" % (sCnt, (32 * r + 4 * ii) << rs))
                    st.append("buffer_store_dwordx4 %s, v%d, %s, s%d offen" % (vr(RB + 4 * i, 4), vo, sr(SO, 4), sCnt))
                segs[s0 + 4 + hf].extend(rd)
                segs[s0 + 5 + hf] = st + segs[s0 + 5 + hf]
        o = []
        for tl in range(7):
            body(o, mode, True, dmaB(True) if tl + 1 < 7 else [], dmaA(True) if tl + 2 < 7 else [], tl + 1 < 7,
                 first=(tl == 0), extras=segs[4 * tl:4 * tl + 4])
        flush(o)
        stamp(3)
        stamp(4)
        a("s_barrier")
        a("s_nop 7")
        a("s_and_b32 s%d, s%d, 1" % (sT0, sW))
        a("s_lshr_b32 s%d, s%d, 1" % (sT1, sW))
        a("s_lshl_b32 s%d, s%d, 7" % (sT0, sT0))
        a("s_lshl_b32 s%d, s%d, 6" % (sT1, sT1))
        a("s_add_u32 s%d, s%d, s%d" % (sT0, sT0, sMb))
        a("s_add_u32 s%d, s%d, s%d" % (sT1, sT1, sNq))
        a("s_mul_i32 s%d, s%d, %d" % (sSt, sW, 128 * 144))
        a("v_mul_u32_u24 v%d, 144, v%d" % (vw, vL31))
        a("v_lshl_add_u32 v%d, v%d, 3, v%d" % (vw, vHi, vw))
        a("v_add_u32 v%d, s%d, v%d" % (vw, sSt, vw))
        a("v_lshrrev_b32 v%d, 3, v%d" % (vrd, vLane))
        a("v_mul_u32_u24 v%d, 144, v%d" % (vrd, vrd))
        a("v_and_b32 v%d, 7, v%d" % (vo, vLane))
        a("v_lshl_add_u32 v%d, v%d, 4, v%d" % (vrd, vo, vrd))
        a("v_add_u32 v%d, s%d, v%d" % (vrd, sSt, vrd))
        a("v_lshrrev_b32 v%d, 3, v%d" % (vx, vLane))
        a("v_add_u32 v%d, s%d, v%d" % (vx, sT0, vx))
        a("v_lshlrev_b32 v%d, 13, v%d" % (vx, vx))
        a("v_lshl_add_u32 v%d, v%d, 4, v%d" % (vo, vo, vx))
        a("s_lshl_b32 s%d, s%d, 1" % (sT1, sT1))
        a("v_add_u32 v%d, s%d, v%d" % (vo, sT1, vo))
        k = 0
        for mt in range(4):
            for nt in range(2):
                for g in range(4):
                    t = 2 * (k % 16)
                    k += 1
                    base = QACC + (mt * 2 + nt) * 16 + 4 * g
                    a("v_cvt_pk_bf16_f32 v%d, v%d, v%d" % (t, base, base + 1))
                    a("v_cvt_pk_bf16_f32 v%d, v%d, v%d" % (t + 1, base + 2, base + 3))
                    a("ds_write_b64 v%d, %s offset:%d" % (vw, vr(t, 2), mt * 32 * 144 + 64 * nt + 16 * g))
        a("s_waitcnt lgkmcnt(0)")
        for i in range(16):
            a("ds_read_b128 %s, v%d offset:%d" % (vr(QACC + 4 * i, 4), vrd, i * 8 * 144))
        for j in range(16):
            a("s_waitcnt lgkmcnt(%d)" % (15 - j))
            a("s_mov_b32 s%d, %d" % (sT0, (j * 8) << 13))
            a("buffer_store_dwordx4 %s, v%d, %s, s%d offen" % (vr(QACC + 4 * j, 4), vo, sr(SO2, 4), sT0))
        stamp(5)
        if os.environ.get("EXP_STAMP"):
            a("s_waitcnt vmcnt(0)")
            stamp(6)
            stamp(7)
            a("s_waitcnt lgkmcnt(0)")
            a("s_mov_b32 s62, s46")
            a("s_mov_b32 s63, s47")
            a("s_add_u32 s64, s42, 0x%x" % (200 * MB))
            a("s_addc_u32 s65, s43, 0")
            make_srd(a, 68, 64, 65, MB)
            for i in range(14):
                a("v_mov_b32 v%d, s%d" % (8 + i, 88 + i))
            for i in range(4):
                a("v_mov_b32 v%d, s%d" % (24 + i, 60 + i))
            a("s_lshl_b32 s66, s2, 7")
            a("v_mov_b32 v40, 0")
            a("s_nop 4")
            for i in range(5):
                a("buffer_store_dwordx4 v[%d:%d], v40, s[68:71], s66 offen offset:%d" % (8 + 4 * i, 11 + 4 * i, 16 * i))
        tl_end(a, 201)
        a("s_endpgm")
    a.label("L_proj_end")
    a("s_endpgm")
    return kernel_desc(name, 512, 256)


LOG2E = 1.4426950408889634
PART2_ROWS = 768
WS_PART2 = WS_PART + 16 * PART_SZ
PART_TOTAL = 16 * PART_SZ + 16 * PART2_ROWS * 1792
RESC_T = 8.0


def cost(x):
    if x.startswith("v_exp") or x.startswith("v_rcp"):
        return 8
    if x.startswith("buffer_load"):
        return 12
    if x.startswith("s_nop"):
        return 4 * (int(x.split()[1]) + 1)
    return 4


def spread(fills, nslots, budget):
    out = {}
    slot = 0
    acc = 0
    for x in fills:
        if isinstance(x, list):
            c = sum(cost(y) for y in x)
        else:
            c = cost(x)
        if acc + c > budget and acc > 0 and slot < nslots - 1:
            slot += 1
            acc = 0
        out.setdefault(slot, []).extend(x if isinstance(x, list) else [x])
        acc += c
    return out


def gen_attn(a):
    name = "attn_kernel"
    kernel_begin(a, name)
    tl_begin(a)
    SQ, SK, SV, SWO, SP, SML = 4, 8, 12, 16, 20, 56
    sW, sH, sQb, sCnt, sKo, sVo, sT0, sT1, sMK, sC = 24, 25, 26, 27, 28, 29, 30, 31, 32, 34
    sStart, sNp, sPart, sItem2, sPoff, sWoff, sThr = 35, 36, 37, 38, 39, 48, 49
    sCmp = 40
    a("s_cmp_ge_u32 s2, 256")
    a("s_cbranch_scc1 L_attn_conv")
    a("s_load_dwordx2 s[50:51], s[0:1], %d" % KA['ws'])
    a("s_load_dwordx2 s[52:53], s[0:1], %d" % KA['dbg'])
    a("v_lshrrev_b32 v1, 6, v0")
    a("v_and_b32 v0, 63, v0")
    a("s_nop 0")
    a("v_readfirstlane_b32 s%d, v1" % sW)
    a("s_and_b32 s%d, s2, 7" % sT0)
    a("s_lshl_b32 s%d, s%d, 1" % (sT0, sT0))
    a("s_bfe_u32 s%d, s2, 0x10003" % sT1)
    a("s_add_u32 s%d, s%d, s%d" % (sH, sT0, sT1))
    a("s_lshr_b32 s%d, s2, 4" % sT0)
    a("s_waitcnt lgkmcnt(0)")
    make_srd(a, SQ, 50, 51, 16 * MB)
    a("s_add_u32 s54, s50, 0x%x" % WS_K)
    a("s_addc_u32 s55, s51, 0")
    make_srd(a, SK, 54, 55, 16 * MB)
    a("s_add_u32 s54, s50, 0x%x" % WS_VT)
    a("s_addc_u32 s55, s51, 0")
    make_srd(a, SV, 54, 55, 16 * MB)
    make_srd(a, SWO, 52, 53, 256)
    a("s_add_u32 s54, s50, 0x%x" % WS_PART)
    a("s_addc_u32 s55, s51, 0")
    make_srd(a, SP, 54, 55, 32 * MB)
    a("s_add_u32 s54, s50, 0x%x" % WS_ML)
    a("s_addc_u32 s55, s51, 0")
    make_srd(a, SML, 54, 55, 2 * 16 * 2048 * 8)
    a("s_mov_b32 s%d, 0x%08x" % (sC, f32bits(LOG2E / 16.0)))
    a("s_mov_b32 s%d, 0x%08x" % (sThr, f32bits(RESC_T * 16.0 / LOG2E)))
    a("s_mov_b32 s%d, -1" % sItem2)
    a("s_mov_b32 s%d, 0" % sStart)
    a("s_mov_b32 s%d, 0" % sPart)
    a("s_cmp_ge_u32 s%d, 7" % sT0)
    a("s_cbranch_scc1 L_attn_r6")
    a("s_mov_b32 s%d, s%d" % (sItem2, sT0))
    a("s_sub_u32 s%d, 15, s%d" % (sQb, sItem2))
    a("s_mov_b32 s%d, 18" % sStart)
    a("s_sub_u32 s%d, 6, s%d" % (sNp, sItem2))
    a("s_mov_b32 s%d, 1" % sPart)
    a("s_branch L_attn_item")
    a.label("L_attn_r6")
    a("s_cmp_ge_u32 s%d, 14" % sT0)
    a("s_cbranch_scc1 L_attn_r12")
    a("s_sub_u32 s%d, 22, s%d" % (sQb, sT0))
    a("s_mov_b32 s%d, 8" % sNp)
    a("s_branch L_attn_item")
    a.label("L_attn_r12")
    a("s_sub_u32 s%d, 22, s%d" % (sQb, sT0))
    a("s_mov_b32 s%d, s%d" % (sNp, sQb))

    O, S0, S1, P, T = 0, 128, 160, 192, 208
    vm, vl, vq, vNeg = 220, 221, 222, 223
    vKR, vVR, vOK, vOV = 224, 232, 236, 244
    vLane, vHi, vL31, vmc = 252, 253, 254, 255
    QA, RING = 0, 64
    Sx = [S0, S1]
    t = T
    a.label("L_attn_item")
    def stamp(i):
        if os.environ.get("EXP_STAMP2"):
            a("s_memtime s[%d:%d]" % (64 + 2 * i, 65 + 2 * i))
    stamp(0)
    a("v_mbcnt_lo_u32_b32 v%d, -1, 0" % vLane)
    a("v_mbcnt_hi_u32_b32 v%d, -1, v%d" % (vLane, vLane))
    a("v_lshrrev_b32 v%d, 5, v%d" % (vHi, vLane))
    a("v_and_b32 v%d, 31, v%d" % (vL31, vLane))
    a("s_lshl_b32 s%d, s%d, 7" % (sT0, sQb))
    a("s_lshl_b32 s%d, s%d, 5" % (sT1, sW))
    a("s_add_u32 s%d, s%d, s%d" % (sT0, sT0, sT1))
    a("v_add_u32 v%d, s%d, v%d" % (t, sT0, vL31))
    a("v_lshlrev_b32 v%d, 13, v%d" % (t, t))
    a("v_lshl_add_u32 v%d, v%d, 4, v%d" % (t, vHi, t))
    a("s_lshl_b32 s%d, s%d, 9" % (sT1, sH))
    for j in range(16):
        a("buffer_load_dwordx4 %s, v%d, %s, s%d offen offset:%d" % (ar(QA + 4 * j, 4), t, sr(SQ, 4), sT1, 32 * j))
    a("s_lshl_b32 s%d, s%d, 1" % (sT0, sNp))
    a("s_add_u32 s%d, s%d, s%d" % (sT0, sT0, sStart))
    a("s_lshl_b32 s%d, s%d, 1" % (sT1, sQb))
    a("s_sub_u32 s%d, s%d, s%d" % (sT0, sT1, sT0))
    a("s_lshl_b32 s%d, s%d, 6" % (sT0, sT0))
    a("s_lshl_b32 s%d, s%d, 5" % (sT1, sW))
    a("s_add_u32 s%d, s%d, s%d" % (sT0, sT0, sT1))
    a("v_add_u32 v%d, s%d, v%d" % (vq, sT0, vL31))
    a("v_lshlrev_b32 v%d, 2, v%d" % (t + 1, vHi))
    a("v_sub_u32 v%d, v%d, v%d" % (vq, vq, t + 1))
    a("v_mov_b32 v%d, 0x%08x" % (vNeg, f32bits(-1.6e10)))
    a("v_mov_b32 v%d, 0x%08x" % (vm, f32bits(-1e30)))
    a("v_mov_b32 v%d, 0" % vl)
    a("v_mov_b32 v%d, 0" % vmc)
    a("s_lshl_b32 s%d, s%d, 4" % (sT0, sW))
    a("s_lshl_b32 s%d, s%d, 9" % (sT1, sH))
    for n in range(8):
        a("v_add_u32 v%d, %d, v%d" % (t, 2 * n, vHi))
        a("v_xor_b32 v%d, v%d, v%d" % (t + 1, t, vL31))
        a("v_add_u32 v%d, s%d, v%d" % (t, sT0, t))
        a("v_lshlrev_b32 v%d, 13, v%d" % (t, t))
        a("v_lshl_add_u32 v%d, v%d, 4, v%d" % (t, t + 1, t))
        a("v_add_u32 v%d, s%d, v%d" % (vOK + n, sT1, t))
    a("s_lshl_b32 s%d, s%d, 8" % (sT0, sH))
    a("s_lshl_b32 s%d, s%d, 6" % (sT1, sW))
    a("s_add_u32 s%d, s%d, s%d" % (sT0, sT0, sT1))
    a("v_lshrrev_b32 v%d, 3, v%d" % (t, vLane))
    a("v_add_u32 v%d, s%d, v%d" % (t, sT0, t))
    a("v_lshlrev_b32 v%d, 12, v%d" % (t, t))
    a("v_and_b32 v%d, 7, v%d" % (t + 1, vLane))
    a("v_lshrrev_b32 v%d, 4, v%d" % (t + 2, vLane))
    a("v_xor_b32 v%d, v%d, v%d" % (t + 1, t + 1, t + 2))
    a("v_xor_b32 v%d, 4, v%d" % (t + 2, t + 1))
    a("v_lshlrev_b32 v%d, 4, v%d" % (t + 1, t + 1))
    a("v_lshlrev_b32 v%d, 4, v%d" % (t + 2, t + 2))
    for n in range(8):
        a("v_add_u32 v%d, v%d, v%d" % (vOV + n, t, t + 1 + (n & 1)))
        if n < 7:
            a("v_add_u32 v%d, 0x8000, v%d" % (t, t))
    a("v_and_b32 v%d, 15, v%d" % (t, vLane))
    a("v_xor_b32 v%d, v%d, v%d" % (t, t, vHi))
    a("v_lshlrev_b32 v%d, 9, v%d" % (t + 1, vL31))
    for j in range(8):
        a("v_xor_b32 v%d, %d, v%d" % (t + 2, 2 * j, t))
        a("v_lshl_add_u32 v%d, v%d, 4, v%d" % (vKR + j, t + 2, t + 1))
    a("v_bfe_u32 v%d, v%d, 1, 3" % (t, vLane))
    a("v_xor_b32 v%d, v%d, v%d" % (t, t, vHi))
    a("v_lshlrev_b32 v%d, 7, v%d" % (t + 1, vL31))
    a("v_add_u32 v%d, 0x10000, v%d" % (t + 1, t + 1))
    for kk in range(4):
        a("v_xor_b32 v%d, %d, v%d" % (t + 2, 2 * kk, t))
        a("v_lshl_add_u32 v%d, v%d, 4, v%d" % (vVR + kk, t + 2, t + 1))
    a("s_lshl_b32 s%d, s%d, 13" % (sMK, sW))
    a("s_lshl_b32 s%d, s%d, 19" % (sKo, sStart))
    a("s_lshl_b32 s%d, s%d, 7" % (sVo, sStart))

    def dmaK(buf):
        l = []
        for n in range(8):
            l.append(["s_add_u32 m0, s%d, %d" % (sMK, buf * 32768 + n * 1024),
                      "buffer_load_dwordx4 v%d, %s, s%d offen lds" % (vOK + n, sr(SK, 4), sKo)])
        l.append("s_add_u32 s%d, s%d, 0x80000" % (sKo, sKo))
        return l

    def dmaV(buf):
        l = []
        for n in range(8):
            l.append(["s_add_u32 m0, s%d, %d" % (sMK, 65536 + buf * 32768 + n * 1024),
                      "buffer_load_dwordx4 v%d, %s, s%d offen lds" % (vOV + n, sr(SV, 4), sVo)])
        l.append("s_add_u32 s%d, s%d, 128" % (sVo, sVo))
        return l

    def flat(l):
        o = []
        for x in l:
            o.extend(x if isinstance(x, list) else [x])
        return o

    def qk_items(buf, sset):
        it = []
        for jd in range(16):
            for kt in range(2):
                rd = "ds_read_b128 %%s, v%d offset:%d" % (vKR + (jd & 7), buf * 32768 + kt * 16384 + (jd >> 3) * 256)
                acc = vr(Sx[sset] + 16 * kt, 16)
                mf = "v_mfma_f32_32x32x16_bf16 %s, %%s, %s, %s" % (acc, ar(QA + 4 * jd, 4), "0" if jd == 0 else acc)
                it.append((rd, mf))
        return it

    def pv_items(buf):
        it = []
        for kk in range(4):
            for dt in range(8):
                rd = "ds_read_b128 %%s, v%d offset:%d" % (vVR + kk, buf * 32768 + dt * 4096)
                acc = vr(O + 16 * dt, 16)
                mf = "v_mfma_f32_32x32x16_bf16 %s, %%s, %s, %s" % (acc, vr(P + 4 * kk, 4), acc)
                it.append((rd, mf))
        return it

    D = 6
    uid = [0]
    rare = []

    def sm_max(sset, masked, tblk):
        S = Sx[sset]
        l = []
        if masked:
            idx = []
            for kt in range(2):
                for g in range(4):
                    for e in range(4):
                        idx.append((S + 16 * kt + 4 * g + e, 32 * kt + 8 * g + e + 64 * tblk))
            for i, (r, cst) in enumerate(idx):
                if cst <= 64:
                    l.append("v_cmp_gt_i32 %s, %d, v%d" % (sr(sCmp + 2 * (i % 4), 2), cst, vq))
                else:
                    l.append(["s_mov_b32 s%d, %d" % (sT0, cst),
                              "v_cmp_gt_i32 %s, s%d, v%d" % (sr(sCmp + 2 * (i % 4), 2), sT0, vq)])
                if i >= 3:
                    r2 = idx[i - 3][0]
                    l.append("v_cndmask_b32 v%d, v%d, v%d, %s" % (r2, r2, vNeg, sr(sCmp + 2 * ((i - 3) % 4), 2)))
            l.append("s_nop 1")
            for i in range(len(idx) - 3, len(idx)):
                r2 = idx[i][0]
                l.append("v_cndmask_b32 v%d, v%d, v%d, %s" % (r2, r2, vNeg, sr(sCmp + 2 * (i % 4), 2)))
        for c in range(4):
            b = S + 8 * c
            l.append("v_max3_f32 v%d, v%d, v%d, v%d" % (T + c, b, b + 1, b + 2))
        for c in range(4):
            b = S + 8 * c
            l.append("v_max3_f32 v%d, v%d, v%d, v%d" % (T + c, T + c, b + 3, b + 4))
        for c in range(4):
            b = S + 8 * c
            l.append("v_max3_f32 v%d, v%d, v%d, v%d" % (T + c, T + c, b + 5, b + 6))
        l.append("v_max3_f32 v%d, v%d, v%d, v%d" % (T, T, S + 7, S + 15))
        l.append("v_max3_f32 v%d, v%d, v%d, v%d" % (T + 2, T + 2, S + 23, S + 31))
        l.append("v_max3_f32 v%d, v%d, v%d, v%d" % (T, T, T + 1, T + 3))
        l.append("v_max_f32 v%d, v%d, v%d" % (T, T, T + 2))
        uid[0] += 1
        lab = "L_attn_rs%d" % uid[0]
        l.append(["v_mov_b32 v%d, v%d" % (T + 1, T), "s_nop 1", "v_permlane32_swap_b32 v%d, v%d" % (T, T + 1),
                  "v_max_f32 v%d, v%d, v%d" % (T, T, T + 1),
                  "v_sub_f32 v%d, v%d, v%d" % (T + 1, T, vm),
                  "v_cmp_lt_f32 vcc, s%d, v%d" % (sThr, T + 1), "s_nop 4",
                  "s_cbranch_vccnz %s" % lab, "LABEL " + lab + "_ret"])
        r = ["LABEL " + lab,
             "v_max_f32 v%d, v%d, v%d" % (T, T, vm),
             "v_sub_f32 v%d, v%d, v%d" % (T + 1, vm, T),
             "v_mul_f32 v%d, s%d, v%d" % (T + 1, sC, T + 1),
             "v_exp_f32 v%d, v%d" % (T + 1, T + 1),
             "v_mov_b32 v%d, v%d" % (vm, T),
             "v_mul_f32 v%d, s%d, v%d" % (vmc, sC, T),
             "v_mul_f32 v%d, v%d, v%d" % (vl, vl, T + 1)]
        for i in range(128):
            r.append("v_mul_f32 v%d, v%d, v%d" % (O + i, O + i, T + 1))
        r.append("s_branch " + lab + "_ret")
        rare.extend(r)
        return l

    def sm_grp(sset, kk):
        S = Sx[sset] + 8 * kk
        l = []
        for i in range(8):
            l.append("v_fma_f32 v%d, v%d, s%d, -v%d" % (S + i, S + i, sC, vmc))
        for i in range(8):
            l.append("v_exp_f32 v%d, v%d" % (S + i, S + i))
        l.append("v_add_f32 v%d, v%d, v%d" % (T + 4, S, S + 1))
        l.append("v_add_f32 v%d, v%d, v%d" % (T + 5, S + 2, S + 3))
        l.append("v_cvt_pk_bf16_f32 v%d, v%d, v%d" % (P + 4 * kk, S, S + 1))
        l.append("v_cvt_pk_bf16_f32 v%d, v%d, v%d" % (P + 4 * kk + 1, S + 2, S + 3))
        l.append("v_add_f32 v%d, v%d, v%d" % (T + 4, T + 4, S + 4))
        l.append("v_add_f32 v%d, v%d, v%d" % (T + 5, T + 5, S + 5))
        l.append("v_cvt_pk_bf16_f32 v%d, v%d, v%d" % (P + 4 * kk + 2, S + 4, S + 5))
        l.append("v_add_f32 v%d, v%d, v%d" % (T + 4, T + 4, S + 6))
        l.append("v_add_f32 v%d, v%d, v%d" % (T + 5, T + 5, S + 7))
        l.append("v_cvt_pk_bf16_f32 v%d, v%d, v%d" % (P + 4 * kk + 3, S + 6, S + 7))
        l.append("v_add_f32 v%d, v%d, v%d" % (vl, vl, T + 4))
        l.append("v_add_f32 v%d, v%d, v%d" % (vl, vl, T + 5))
        return l

    def emit(x):
        if x.startswith("LABEL "):
            a.label(x[6:])
        else:
            a(x)

    def run_stream(items, fills, pre=None):
        n = len(items)
        for i in range(min(D, n)):
            a(items[i][0] % ar(RING + 4 * (i % 8), 4))
        for x in (pre or []):
            emit(x)
        for i in range(n):
            a("s_waitcnt lgkmcnt(%d)" % min(D - 1, n - 1 - i))
            a(items[i][1] % ar(RING + 4 * (i % 8), 4))
            if i + D < n:
                a(items[i + D][0] % ar(RING + 4 * ((i + D) % 8), 4))
            for x in fills.get(i, []):
                emit(x)

    BUD = int(os.environ.get("ATT_BUD", "18"))

    def iteration(par, masked, tblk, dK, dV, doqk, novm=False):
        a("s_waitcnt vmcnt(%d)" % (17 if novm else 0))
        if not os.environ.get("EXP_A_NOBAR"):
            a("s_barrier")
        dma = (dmaK(par) if dK else []) + (dmaV(par ^ 1) if dV else [])
        if os.environ.get("EXP_A_NODMA"):
            dma = []
        if doqk:
            items = qk_items(par ^ 1, par ^ 1) + pv_items(par)
            seq = sm_max(par, masked, tblk) + sm_grp(par, 0) + sm_grp(par, 1) + sm_grp(par, 2) + sm_grp(par, 3)
            if os.environ.get("EXP_A_NOSM"):
                seq = [x for x in seq if not isinstance(x, list) and x.startswith("v_cvt_pk")]
            if dma:
                nfirst = len(sm_max.__name__) * 0 + 40
                merged = []
                di = 0
                for i, x in enumerate(seq):
                    while di < len(dma) and di * nfirst <= i * len(dma):
                        merged.append(dma[di]); di += 1
                    merged.append(x)
                merged.extend(dma[di:])
                seq = merged
            bud = BUD
            while True:
                fl = spread(seq, 64, bud)
                ok = True
                for kk in range(4):
                    last = "v_cvt_pk_bf16_f32 v%d," % (P + 4 * kk + 3)
                    sl = [sidx for sidx, v in fl.items() if any(y.startswith(last) for y in v)][0]
                    if sl > 32 + 8 * kk - 2:
                        ok = False
                if ok:
                    break
                bud += 2
            run_stream(items, fl)
        else:
            items = pv_items(par)
            pre = flat(dma + sm_max(par, masked, tblk) + sm_grp(par, 0)) + ["s_nop 1"]
            seq = sm_grp(par, 1) + sm_grp(par, 2) + sm_grp(par, 3)
            fl = spread(seq, 32, 28)
            for kk in range(1, 4):
                last = "v_cvt_pk_bf16_f32 v%d," % (P + 4 * kk + 3)
                sl = [sidx for sidx, v in fl.items() if any(y.startswith(last) for y in v)][0]
                assert sl <= 8 * kk - 2, (kk, sl)
            run_stream(items, fl, pre)

    for x in flat(dmaK(0) + dmaV(0) + dmaK(1)):
        a(x)
    for i in range(128):
        a("v_mov_b32 v%d, 0" % (O + i))
    a("s_waitcnt vmcnt(16)")
    a("s_cmp_lt_i32 s%d, 0" % sItem2)
    a("s_cbranch_scc1 L_attn_go")
    a("s_lshl_b32 s%d, s%d, 7" % (sT0, sItem2))
    a("s_lshl_b32 s%d, s%d, 5" % (sT1, sW))
    a("s_add_u32 s%d, s%d, s%d" % (sT0, sT0, sT1))
    a("v_add_u32 v%d, s%d, v%d" % (t, sT0, vL31))
    a("v_lshlrev_b32 v%d, 13, v%d" % (t, t))
    a("v_lshl_add_u32 v%d, v%d, 4, v%d" % (t, vHi, t))
    a("s_lshl_b32 s%d, s%d, 9" % (sT1, sH))
    for j in range(16):
        a("buffer_load_dwordx4 %s, v%d, %s, s%d offen offset:%d" % (ar(96 + 4 * j, 4), t, sr(SQ, 4), sT1, 32 * j))
    a.label("L_attn_go")
    a("s_barrier")
    stamp(1)
    run_stream(qk_items(0, 0), {})
    a("s_nop 15")
    stamp(2)
    a("s_mov_b32 s%d, s%d" % (sCnt, sNp))
    a("s_cmp_eq_u32 s%d, 0" % sCnt)
    a("s_cbranch_scc1 L_attn_tail")
    a.label("L_attn_loop")
    iteration(0, False, 0, True, True, True)
    iteration(1, False, 0, True, True, True)
    a("s_sub_u32 s%d, s%d, 1" % (sCnt, sCnt))
    a("s_cmp_lg_u32 s%d, 0" % sCnt)
    a("s_cbranch_scc1 L_attn_loop")
    a.label("L_attn_tail")
    stamp(3)
    sTk, sPi, sSlot, sMg = 60, 61, 62, 63
    OA = 96
    a("s_mul_i32 s%d, s%d, 7" % (sPi, sH))
    a("s_add_u32 s%d, s%d, 15" % (sPi, sPi))
    a("s_sub_u32 s%d, s%d, s%d" % (sPi, sPi, sQb))
    a("s_mov_b32 s%d, s%d" % (sMg, sPart))
    a("s_cmp_lt_u32 s%d, 9" % sQb)
    a("s_cbranch_scc1 L_attn_t0")
    a("s_cmp_eq_u32 s%d, 1" % sPart)
    a("s_cbranch_scc1 L_attn_t0")
    a("s_mov_b32 s%d, 2" % sMg)
    a("s_lshr_b32 s%d, s%d, 5" % (sT1, sPi))
    a("s_lshl_b32 s%d, s%d, 2" % (sT1, sT1))
    a("v_mov_b32 v%d, 0" % (T + 11))
    a("buffer_load_dword v%d, v%d, %s, s%d offen sc1" % (T + 10, T + 11, sr(SWO, 4), sT1))
    a.label("L_attn_t0")
    a("s_mov_b32 s%d, 0" % sKo)
    iteration(0, True, 0, True, True, True)
    a("s_mov_b32 s%d, 0" % sVo)

    def other_loads():
        a("s_lshl_b32 s%d, s%d, 7" % (sT0, sQb))
        a("s_lshl_b32 s%d, s%d, 5" % (sT1, sW))
        a("s_add_u32 s%d, s%d, s%d" % (sT0, sT0, sT1))
        a("v_add_u32 v%d, s%d, v%d" % (T + 10, sT0, vL31))
        a("v_lshlrev_b32 v%d, 3, v%d" % (T + 11, T + 10))
        a("s_add_u32 s%d, s%d, 16" % (sT0, sH))
        a("s_lshl_b32 s%d, s%d, 14" % (sT0, sT0))
        a("buffer_load_dwordx2 %s, v%d, %s, s%d offen sc1" % (ar(OA + 64, 2), T + 11, sr(SML, 4), sT0))
        a("v_lshlrev_b32 v%d, 4, v%d" % (T + 10, vLane))
        a("s_lshl_b32 s%d, s%d, 2" % (sT0, sPi))
        a("s_add_u32 s%d, s%d, s%d" % (sT0, sT0, sW))
        a("s_lshl_b32 s%d, s%d, 14" % (sT0, sT0))
        a("s_add_u32 s%d, s%d, 0x1000000" % (sT0, sT0))
        for k in range(16):
            if k and k % 4 == 0:
                a("s_add_u32 s%d, s%d, 4096" % (sT0, sT0))
            a("buffer_load_dwordx4 %s, v%d, %s, s%d offen offset:%d sc1" % (ar(OA + 4 * k, 4), T + 10, sr(SP, 4), sT0, 1024 * (k % 4)))
    a("s_waitcnt vmcnt(0)")
    a("s_cmp_lg_u32 s%d, 2" % sMg)
    a("s_cbranch_scc1 L_attn_t1")
    a("v_readfirstlane_b32 s%d, v%d" % (sT0, T + 10))
    a("s_and_b32 s%d, s%d, 31" % (sT1, sPi))
    a("s_lshr_b32 s%d, s%d, s%d" % (sT0, sT0, sT1))
    a("s_and_b32 s%d, s%d, 1" % (sT0, sT0))
    a("s_cbranch_scc0 L_attn_t1")
    a("s_mov_b32 s%d, 3" % sMg)
    other_loads()
    a.label("L_attn_t1")
    iteration(1, True, 1, True, True, False, novm=True)
    stamp(4)

    a("s_nop 15")
    a("v_mov_b32 v%d, v%d" % (T, vl))
    a("s_nop 1")
    a("v_permlane32_swap_b32 v%d, v%d" % (T, vl))
    a("v_add_f32 v%d, v%d, v%d" % (T + 1, T, vl))
    a("v_rcp_f32 v%d, v%d" % (T + 2, T + 1))
    a("v_mov_b32 v%d, v%d" % (T, vmc))
    a("s_mov_b32 s%d, s%d" % (sSlot, sPart))
    a("s_cmp_eq_u32 s%d, 0" % sMg)
    a("s_cbranch_scc1 L_attn_store")
    a("s_cmp_eq_u32 s%d, 1" % sMg)
    a("s_cbranch_scc1 L_attn_first")
    a("s_cmp_eq_u32 s%d, 3" % sMg)
    a("s_cbranch_scc1 L_attn_merge")
    a("s_lshr_b32 s%d, s%d, 5" % (sT1, sPi))
    a("s_lshl_b32 s%d, s%d, 2" % (sT1, sT1))
    a("s_and_b32 s%d, s%d, 31" % (sT0, sPi))
    a("v_mov_b32 v%d, 0" % (T + 11))
    a.label("L_attn_poll")
    a("buffer_load_dword v%d, v%d, %s, s%d offen sc1" % (T + 10, T + 11, sr(SWO, 4), sT1))
    a("s_waitcnt vmcnt(0)")
    a("v_readfirstlane_b32 s%d, v%d" % (sTk, T + 10))
    a("s_nop 3")
    a("s_lshr_b32 s%d, s%d, s%d" % (sTk, sTk, sT0))
    a("s_and_b32 s%d, s%d, 1" % (sTk, sTk))
    a("s_cbranch_scc1 L_attn_pl1")
    a("s_sleep 4")
    a("s_branch L_attn_poll")
    a.label("L_attn_pl1")
    other_loads()
    a.label("L_attn_merge")
    a("s_waitcnt vmcnt(0)")
    a("v_accvgpr_read_b32 v%d, a%d" % (T + 6, OA + 64))
    a("v_accvgpr_read_b32 v%d, a%d" % (T + 7, OA + 65))
    a("v_max_f32 v%d, v%d, v%d" % (T + 8, T, T + 6))
    a("v_sub_f32 v%d, v%d, v%d" % (T + 9, T, T + 8))
    a("v_sub_f32 v%d, v%d, v%d" % (T + 10, T + 6, T + 8))
    a("v_exp_f32 v%d, v%d" % (T + 9, T + 9))
    a("v_exp_f32 v%d, v%d" % (T + 10, T + 10))
    a("s_nop 0")
    a("v_mul_f32 v%d, v%d, v%d" % (T + 10, T + 10, T + 7))
    a("v_fma_f32 v%d, v%d, v%d, v%d" % (T + 8, T + 9, T + 1, T + 10))
    a("v_rcp_f32 v%d, v%d" % (T + 8, T + 8))
    a("s_nop 0")
    a("v_mul_f32 v%d, v%d, v%d" % (T + 9, T + 9, T + 8))
    a("v_mul_f32 v%d, v%d, v%d" % (T + 10, T + 10, T + 8))
    a("v_mov_b32 v%d, 1.0" % (T + 2))
    for i in range(64):
        a("v_accvgpr_read_b32 v%d, a%d" % (S0 + i, OA + i))
    for i in range(128):
        a("v_mul_f32 v%d, v%d, v%d" % (O + i, O + i, T + 9))
    for k4 in range(0, 64, 4):
        for d in range(4):
            a("v_lshlrev_b32 v%d, 16, v%d" % (P + 2 * d, S0 + k4 + d))
            a("v_and_b32 v%d, 0xffff0000, v%d" % (P + 2 * d + 1, S0 + k4 + d))
        for d in range(8):
            o = O + 2 * k4 + d
            a("v_fma_f32 v%d, v%d, v%d, v%d" % (o, P + d, T + 10, o))
    a("s_branch L_attn_store")
    a.label("L_attn_first")
    a("s_lshl_b32 s%d, s%d, 4" % (sT0, sPart))
    a("s_add_u32 s%d, s%d, s%d" % (sT0, sT0, sH))
    a("s_lshl_b32 s%d, s%d, 11" % (sT0, sT0))
    a("s_lshl_b32 s%d, s%d, 7" % (sT1, sQb))
    a("s_add_u32 s%d, s%d, s%d" % (sT0, sT0, sT1))
    a("s_lshl_b32 s%d, s%d, 5" % (sT1, sW))
    a("s_add_u32 s%d, s%d, s%d" % (sT0, sT0, sT1))
    a("s_lshl_b32 s%d, s%d, 3" % (sT0, sT0))
    a("v_lshlrev_b32 v%d, 3, v%d" % (T + 3, vL31))
    a("buffer_store_dwordx2 %s, v%d, %s, s%d offen sc1" % (vr(T, 2), T + 3, sr(SML, 4), sT0))
    a("v_lshlrev_b32 v%d, 4, v%d" % (T + 10, vLane))
    a("s_lshl_b32 s%d, s%d, 2" % (sT0, sPi))
    a("s_add_u32 s%d, s%d, s%d" % (sT0, sT0, sW))
    a("s_lshl_b32 s%d, s%d, 14" % (sT0, sT0))
    a("s_add_u32 s%d, s%d, 0x1000000" % (sT0, sT0))
    for k in range(16):
        if k and k % 4 == 0:
            a("s_add_u32 s%d, s%d, 4096" % (sT0, sT0))
        for j in range(8):
            a("v_mul_f32 v%d, v%d, v%d" % (O + 8 * k + j, O + 8 * k + j, T + 2))
        for j in range(4):
            a("v_cvt_pk_bf16_f32 v%d, v%d, v%d" % (S0 + 4 * k + j, O + 8 * k + 2 * j, O + 8 * k + 2 * j + 1))
        a("buffer_store_dwordx4 %s, v%d, %s, s%d offen offset:%d" % (vr(S0 + 4 * k, 4), T + 10, sr(SP, 4), sT0, 1024 * (k % 4)))
    a("s_branch L_attn_stored")
    a.label("L_attn_store")
    stamp(5)
    vTw, vTr, vPo = T + 4, T + 5, T + 6
    a("s_lshl_b32 s%d, s%d, 13" % (sT0, sW))
    a("s_add_u32 s%d, s%d, 0x20000" % (sT0, sT0))
    a("v_lshlrev_b32 v%d, 8, v%d" % (vTw, vL31))
    a("v_lshl_add_u32 v%d, v%d, 3, v%d" % (vTw, vHi, vTw))
    a("v_add_u32 v%d, s%d, v%d" % (vTw, sT0, vTw))
    a("v_and_b32 v%d, 15, v%d" % (T + 7, vL31))
    a("v_lshlrev_b32 v%d, 4, v%d" % (T + 7, T + 7))
    a("v_lshrrev_b32 v%d, 4, v%d" % (vTr, vLane))
    a("v_and_b32 v%d, 15, v%d" % (vPo, vLane))
    a("s_lshl_b32 s%d, s%d, 7" % (sT1, sQb))
    a("s_lshl_b32 s%d, s%d, 5" % (sPoff, sW))
    a("s_add_u32 s%d, s%d, s%d" % (sT1, sT1, sPoff))
    a("s_lshl_b32 s%d, s%d, 13" % (sT1, sT1))
    a("s_lshl_b32 s%d, s%d, 9" % (sPoff, sH))
    a("s_add_u32 s%d, s%d, s%d" % (sT1, sT1, sPoff))
    a("s_lshl_b32 s%d, s%d, 24" % (sPoff, sSlot))
    a("s_add_u32 s%d, s%d, s%d" % (sPoff, sPoff, sT1))
    a("v_lshlrev_b32 v%d, 13, v%d" % (T + 8, vTr))
    a("v_lshl_add_u32 v%d, v%d, 4, v%d" % (T + 8, vPo, T + 8))
    for hf in range(2):
        k = 0
        for dt in range(4):
            for g in range(4):
                r = O + 16 * (4 * hf + dt) + 4 * g
                c = P + 2 * (k % 8)
                k += 1
                for e in range(4):
                    a("v_mul_f32 v%d, v%d, v%d" % (r + e, r + e, T + 2))
                a("v_cvt_pk_bf16_f32 v%d, v%d, v%d" % (c, r, r + 1))
                a("v_cvt_pk_bf16_f32 v%d, v%d, v%d" % (c + 1, r + 2, r + 3))
                a("v_xor_b32 v%d, %d, v%d" % (T + 9, 16 * (4 * dt + g), T + 7))
                a("v_add_u32 v%d, v%d, v%d" % (T + 9, T + 9, vTw))
                a("ds_write_b64 v%d, %s" % (T + 9, vr(c, 2)))
        a("s_waitcnt lgkmcnt(0)")
        for i in range(8):
            a("v_add_u32 v%d, %d, v%d" % (T + 9, 4 * i, vTr))
            a("v_and_b32 v%d, 15, v%d" % (T + 10, T + 9))
            a("v_xor_b32 v%d, v%d, v%d" % (T + 10, T + 10, vPo))
            a("v_lshlrev_b32 v%d, 8, v%d" % (T + 9, T + 9))
            a("v_lshl_add_u32 v%d, v%d, 4, v%d" % (T + 9, T + 10, T + 9))
            a("v_add_u32 v%d, s%d, v%d" % (T + 9, sT0, T + 9))
            a("ds_read_b128 %s, v%d" % (vr(S0 + 4 * i, 4), T + 9))
        for i in range(8):
            a("s_waitcnt lgkmcnt(%d)" % (7 - i))
            a("s_add_u32 s%d, s%d, %d" % (sT1, sPoff, i * 4 * 8192 + hf * 256))
            a("buffer_store_dwordx4 %s, v%d, %s, s%d offen" % (vr(S0 + 4 * i, 4), T + 8, sr(SP, 4), sT1))
    a.label("L_attn_stored")
    a("s_cmp_lg_u32 s%d, 1" % sMg)
    a("s_cbranch_scc1 L_attn_nopub")
    a("s_waitcnt vmcnt(0)")
    a("s_barrier")
    a("s_cmp_lg_u32 s%d, 0" % sW)
    a("s_cbranch_scc1 L_attn_nopub")
    a("s_and_b32 s%d, s%d, 31" % (sT0, sPi))
    a("s_lshl_b32 s%d, 1, s%d" % (sT0, sT0))
    a("v_mov_b32 v%d, s%d" % (T + 4, sT0))
    a("v_mov_b32 v%d, 0" % (T + 3))
    a("s_lshr_b32 s%d, s%d, 5" % (sT1, sPi))
    a("s_lshl_b32 s%d, s%d, 2" % (sT1, sT1))
    a("s_mov_b64 s[46:47], exec")
    a("s_mov_b64 exec, 1")
    a("buffer_atomic_or v%d, v%d, %s, s%d offen" % (T + 4, T + 3, sr(SWO, 4), sT1))
    a("s_mov_b64 exec, s[46:47]")
    a.label("L_attn_nopub")
    stamp(6)
    stamp(7)
    if os.environ.get("EXP_STAMP2"):
        a("s_waitcnt vmcnt(0)")
        a("s_memtime s[80:81]")
        a("s_memrealtime s[82:83]")
        a("s_waitcnt lgkmcnt(0)")
        a("s_add_u32 s84, s50, 0x%x" % (200 * MB))
        a("s_addc_u32 s85, s51, 0")
        make_srd(a, 88, 84, 85, MB)
        for i in range(20):
            a("v_mov_b32 v%d, s%d" % (8 + i, 64 + i))
        a("s_lshl_b32 s86, s2, 8")
        a("s_lshl_b32 s87, s%d, 7" % sPart)
        a("s_add_u32 s86, s86, s87")
        a("v_mov_b32 v40, 0")
        a("s_nop 4")
        for i in range(5):
            a("buffer_store_dwordx4 v[%d:%d], v40, s[88:91], s86 offen offset:%d" % (8 + 4 * i, 11 + 4 * i, 16 * i))
    a("s_cmp_lt_i32 s%d, 0" % sItem2)
    a("s_cbranch_scc1 L_attn_end")
    a("s_mov_b32 s%d, s%d" % (sQb, sItem2))
    a("s_mov_b32 s%d, s%d" % (sNp, sItem2))
    a("s_mov_b32 s%d, 0" % sStart)
    a("s_mov_b32 s%d, 0" % sPart)
    a("s_mov_b32 s%d, -1" % sItem2)
    a("s_lshl_b32 s%d, s%d, 5" % (sT1, sW))
    a("v_add_u32 v%d, s%d, v%d" % (vq, sT1, vL31))
    a("v_lshlrev_b32 v%d, 2, v%d" % (t + 1, vHi))
    a("v_sub_u32 v%d, v%d, v%d" % (vq, vq, t + 1))
    a("v_mov_b32 v%d, 0x%08x" % (vm, f32bits(-1e30)))
    a("v_mov_b32 v%d, 0" % vl)
    a("v_mov_b32 v%d, 0" % vmc)
    for i in range(64):
        a("v_accvgpr_mov_b32 a%d, a%d" % (i, 96 + i))
    for i in range(128):
        a("v_mov_b32 v%d, 0" % (O + i))
    a("s_waitcnt vmcnt(0)")
    a("s_branch L_attn_go")
    a.label("L_attn_end")
    signal_done(a, sW, 88, T, "L_attn_sig", 16, 480)
    tl_end(a, 202)
    a("s_endpgm")
    for x in rare:
        emit(x)
    a.label("L_attn_conv")
    a("s_sub_u32 s2, s2, 256")
    a("s_cmp_ge_u32 s2, 224")
    a("s_cbranch_scc1 L_attn_final")
    gen_conv(a)
    a.label("L_attn_final")
    a("s_sub_u32 s2, s2, 224")
    gen_final(a)
    return kernel_desc(name, 512, 256)


SPLIT_ROW = 1280

def gen_rowwork(a):
    SX, SG, SC, SML, SGT = 60, 64, 68, 72, 76
    sW, sT0, sT1, sR = 80, 81, 82, 83
    a("s_load_dwordx2 s[84:85], s[0:1], %d" % KA['A_q'])
    a("s_load_dwordx2 s[86:87], s[0:1], %d" % KA['gate_w'])
    a("s_load_dwordx2 s[88:89], s[0:1], %d" % KA['ws'])
    a("v_lshrrev_b32 v1, 6, v0")
    a("s_nop 0")
    a("v_readfirstlane_b32 s%d, v1" % sW)
    a("s_waitcnt lgkmcnt(0)")
    make_srd(a, SX, 84, 85, 2048 * 896)
    make_srd(a, SG, 86, 87, 896)
    a("s_add_u32 s90, s88, 0x%x" % WS_PART)
    a("s_addc_u32 s91, s89, 0")
    make_srd(a, SC, 90, 91, 32 * MB)
    a("s_add_u32 s90, s88, 0x%x" % WS_ML)
    a("s_addc_u32 s91, s89, 0")
    make_srd(a, SML, 90, 91, 2 * 16 * 2048 * 8)
    a("s_add_u32 s90, s88, 0x%x" % WS_GT)
    a("s_addc_u32 s91, s89, 0")
    make_srd(a, SGT, 90, 91, 2048 * 8)
    vLane, vA, vB, t = 1, 2, 3, 4
    CA, CB, MLr, GX, GW = 16, 40, 64, 88, 96
    a("v_and_b32 v%d, 63, v0" % vLane)
    a("s_mul_i32 s%d, s2, 3" % sR)
    a("s_add_u32 s%d, s%d, %d" % (sR, sR, SPLIT_ROW))
    a("v_lshlrev_b32 v%d, 4, v0" % vA)
    a("v_lshrrev_b32 v%d, 5, v0" % vB)
    a("v_lshlrev_b32 v%d, 14, v%d" % (vB, vB))
    for r in range(3):
        a("s_add_u32 s%d, s%d, %d" % (sT0, sR, r))
        a("s_lshl_b32 s%d, s%d, 13" % (sT1, sT0))
        for c in range(2):
            a("buffer_load_dwordx4 %s, v%d, %s, s%d offen" % (vr(CA + 8 * r + 4 * c, 4), vA, sr(SC, 4), sT1))
            a("s_add_u32 s%d, s%d, 0x1000" % (sT1, sT1))
        a("s_add_u32 s%d, s%d, 0x%x" % (sT1, sT1, 0x1000000 - 0x2000))
        for c in range(2):
            a("buffer_load_dwordx4 %s, v%d, %s, s%d offen" % (vr(CB + 8 * r + 4 * c, 4), vA, sr(SC, 4), sT1))
            a("s_add_u32 s%d, s%d, 0x1000" % (sT1, sT1))
        a("s_lshl_b32 s%d, s%d, 3" % (sT1, sT0))
        for c in range(2):
            for part in range(2):
                a("s_add_u32 s%d, s%d, %d" % (sT0, sT1, c * 8 * 16384 + part * 16 * 16384))
                a("buffer_load_dwordx2 %s, v%d, %s, s%d offen" % (vr(MLr + 8 * r + 4 * c + 2 * part, 2), vB, sr(SML, 4), sT0))
    a("v_cmp_gt_u32 vcc, 56, v%d" % vLane)
    a("s_and_saveexec_b64 s[92:93], vcc")
    a("v_lshlrev_b32 v%d, 4, v%d" % (t, vLane))
    a("s_lshl_b32 s%d, s2, 3" % sT0)
    a("s_lshl_b32 s%d, s%d, 1" % (sT1, sW))
    a("s_add_u32 s%d, s%d, s%d" % (sT0, sT0, sT1))
    a("s_mul_i32 s%d, s%d, 896" % (sT1, sT0))
    a("buffer_load_dwordx4 %s, v%d, %s, 0 offen" % (vr(GW, 4), t, sr(SG, 4)))
    a("buffer_load_dwordx4 %s, v%d, %s, s%d offen" % (vr(GX, 4), t, sr(SX, 4), sT1))
    a("buffer_load_dwordx4 %s, v%d, %s, s%d offen offset:896" % (vr(GX + 4, 4), t, sr(SX, 4), sT1))
    a("s_waitcnt vmcnt(0)")
    Z = 100
    for r in range(2):
        z = Z + r
        a("v_mov_b32 v%d, 0" % z)
        for i in range(4):
            a("v_lshlrev_b32 v%d, 16, v%d" % (t, GX + 4 * r + i))
            a("v_and_b32 v%d, 0xffff0000, v%d" % (t + 1, GX + 4 * r + i))
            a("v_lshlrev_b32 v%d, 16, v%d" % (t + 2, GW + i))
            a("v_and_b32 v%d, 0xffff0000, v%d" % (t + 3, GW + i))
            a("v_mul_f32 v%d, v%d, v%d" % (t, t, t + 2))
            a("v_mul_f32 v%d, v%d, v%d" % (t + 1, t + 1, t + 3))
            a("v_cvt_pk_bf16_f32 v%d, v%d, v%d" % (t + 2, t, t + 1))
            a("v_lshlrev_b32 v%d, 16, v%d" % (t, t + 2))
            a("v_and_b32 v%d, 0xffff0000, v%d" % (t + 1, t + 2))
            a("v_add_f32 v%d, v%d, v%d" % (z, z, t))
            a("v_add_f32 v%d, v%d, v%d" % (z, z, t + 1))
    a("s_mov_b64 exec, s[92:93]")
    a("s_nop 1")
    for r in range(2):
        a("v_cndmask_b32 v%d, 0, v%d, vcc" % (Z + r, Z + r))
    for off in (0x041F, 0x081F, 0x101F, 0x201F, 0x401F):
        for r in range(2):
            a("ds_swizzle_b32 v%d, v%d offset:0x%x" % (Z + 2 + r, Z + r, off))
        a("s_waitcnt lgkmcnt(0)")
        for r in range(2):
            a("v_add_f32 v%d, v%d, v%d" % (Z + r, Z + r, Z + 2 + r))
    for r in range(2):
        a("v_mov_b32 v%d, v%d" % (Z + 2 + r, Z + r))
    a("s_nop 1")
    for r in range(2):
        a("v_permlane32_swap_b32 v%d, v%d" % (Z + 2 + r, Z + r))
    for r in range(2):
        a("v_add_f32 v%d, v%d, v%d" % (Z + r, Z + r, Z + 2 + r))
    a("v_cmp_eq_u32 vcc, 1, v%d" % vLane)
    a("s_nop 1")
    z, p = t, t + 1
    a("v_cndmask_b32 v%d, v%d, v%d, vcc" % (z, Z, Z + 1))
    a("v_cvt_pk_bf16_f32 v%d, v%d, v%d" % (p, z, z))
    a("v_lshlrev_b32 v%d, 16, v%d" % (z, p))
    a("v_mul_f32 v%d, 0x%08x, v%d" % (z, f32bits(-LOG2E), z))
    a("v_exp_f32 v%d, v%d" % (z, z))
    a("s_nop 0")
    a("v_add_f32 v%d, 1.0, v%d" % (z, z))
    a("v_rcp_f32 v%d, v%d" % (z, z))
    a("s_nop 0")
    a("v_cvt_pk_bf16_f32 v%d, v%d, v%d" % (p, z, z))
    a("v_lshlrev_b32 v%d, 16, v%d" % (t + 2, p))
    a("v_sub_f32 v%d, 1.0, v%d" % (z, t + 2))
    a("v_cvt_pk_bf16_f32 v%d, v%d, v%d" % (p, z, z))
    a("v_lshlrev_b32 v%d, 16, v%d" % (t + 3, p))
    a("v_lshlrev_b32 v%d, 3, v%d" % (t + 4, vLane))
    a("s_lshl_b32 s%d, s%d, 3" % (sT0, sT0))
    a("v_cmp_gt_u32 vcc, 2, v%d" % vLane)
    a("s_and_saveexec_b64 s[92:93], vcc")
    a("buffer_store_dwordx2 %s, v%d, %s, s%d offen" % (vr(t + 2, 2), t + 4, sr(SGT, 4), sT0))
    a("s_mov_b64 exec, s[92:93]")
    W = 104
    for k in range(6):
        mA, lA, mB, lB = MLr + 4 * k, MLr + 4 * k + 1, MLr + 4 * k + 2, MLr + 4 * k + 3
        a("v_max_f32 v%d, v%d, v%d" % (t, mA, mB))
        a("v_sub_f32 v%d, v%d, v%d" % (mA, mA, t))
        a("v_sub_f32 v%d, v%d, v%d" % (mB, mB, t))
        a("v_exp_f32 v%d, v%d" % (mA, mA))
        a("v_exp_f32 v%d, v%d" % (mB, mB))
        a("s_nop 0")
        a("v_mul_f32 v%d, v%d, v%d" % (mA, mA, lA))
        a("v_mul_f32 v%d, v%d, v%d" % (mB, mB, lB))
        a("v_add_f32 v%d, v%d, v%d" % (t, mA, mB))
        a("v_rcp_f32 v%d, v%d" % (t, t))
        a("s_nop 0")
        a("v_mul_f32 v%d, v%d, v%d" % (W + 2 * k, mA, t))
        a("v_mul_f32 v%d, v%d, v%d" % (W + 2 * k + 1, mB, t))
    U = 116
    for k in range(6):
        ra, rb = CA + 4 * k, CB + 4 * k
        for d in range(4):
            a("v_lshlrev_b32 v%d, 16, v%d" % (U + 4 * d, ra + d))
            a("v_and_b32 v%d, 0xffff0000, v%d" % (U + 4 * d + 1, ra + d))
            a("v_lshlrev_b32 v%d, 16, v%d" % (U + 4 * d + 2, rb + d))
            a("v_and_b32 v%d, 0xffff0000, v%d" % (U + 4 * d + 3, rb + d))
        for d in range(4):
            a("v_mul_f32 v%d, v%d, v%d" % (U + 4 * d, U + 4 * d, W + 2 * k))
            a("v_mul_f32 v%d, v%d, v%d" % (U + 4 * d + 1, U + 4 * d + 1, W + 2 * k))
        for d in range(4):
            a("v_fma_f32 v%d, v%d, v%d, v%d" % (U + 4 * d, U + 4 * d + 2, W + 2 * k + 1, U + 4 * d))
            a("v_fma_f32 v%d, v%d, v%d, v%d" % (U + 4 * d + 1, U + 4 * d + 3, W + 2 * k + 1, U + 4 * d + 1))
        for d in range(4):
            a("v_cvt_pk_bf16_f32 v%d, v%d, v%d" % (ra + d, U + 4 * d, U + 4 * d + 1))
        r, c = k // 2, k % 2
        a("s_add_u32 s%d, s%d, %d" % (sT0, sR, r))
        a("s_lshl_b32 s%d, s%d, 13" % (sT0, sT0))
        a("s_add_u32 s%d, s%d, %d" % (sT0, sT0, c * 0x1000))
        a("buffer_store_dwordx4 %s, v%d, %s, s%d offen" % (vr(ra, 4), vA, sr(SC, 4), sT0))
    a("s_nop 1")


def gen_conv(a):
    RS = 5952
    WSZ = 8 * RS
    HOFF = WSZ
    YOFF = WSZ + 4640
    CST = 56576
    SU, SH, SY = 4, 12, 16
    sW, sD0, sT0, sT1 = 20, 21, 22, 23
    sDD = 32
    a("s_cmp_ge_u32 s2, 224")
    a("s_cbranch_scc1 L_conv_end")
    a("s_load_dwordx2 s[46:47], s[0:1], %d" % KA['ssm_k'])
    a("s_load_dwordx2 s[48:49], s[0:1], %d" % KA['ssm_D'])
    a("s_load_dwordx2 s[50:51], s[0:1], %d" % KA['ws'])
    a("v_lshrrev_b32 v1, 6, v0")
    a("s_nop 0")
    a("v_readfirstlane_b32 s%d, v1" % sW)
    a("s_lshl_b32 s%d, s2, 1" % sD0)
    a("s_waitcnt lgkmcnt(0)")
    make_srd(a, SH, 46, 47, 448 * 4096)
    a("s_add_u32 s52, s50, 0x%x" % WS_UT)
    a("s_addc_u32 s53, s51, 0")
    make_srd(a, SU, 52, 53, 448 * 4096)
    a("s_add_u32 s50, s50, 0x%x" % WS_A)
    a("s_addc_u32 s51, s51, 0")
    make_srd(a, SY, 50, 51, 448 * 4096)
    vTid = 0
    vt = 140
    H, UO, UP = 144, 152, 160
    a("v_lshlrev_b32 v%d, 4, v%d" % (vt, vTid))
    a("s_lshl_b32 s%d, s2, 2" % sT0)
    a("s_load_dword s56, s[48:49], s%d" % sT0)
    a("v_subrev_u32 v%d, 16, v%d" % (vt + 1, vt))
    a("v_max_i32 v%d, 0, v%d" % (vt + 1, vt + 1))
    for c in range(2):
        a("s_add_u32 s%d, s%d, %d" % (sT1, sD0, c))
        a("s_lshl_b32 s%d, s%d, 12" % (sT1, sT1))
        a("buffer_load_dwordx4 %s, v%d, %s, s%d offen" % (vr(H + 4 * c, 4), vt, sr(SH, 4), sT1))
        a("buffer_load_dwordx4 %s, v%d, %s, s%d offen" % (vr(UO + 4 * c, 4), vt, sr(SU, 4), sT1))
        a("buffer_load_dwordx4 %s, v%d, %s, s%d offen" % (vr(UP + 4 * c, 4), vt + 1, sr(SU, 4), sT1))
    for i in range(4):
        a("v_mov_b32 v%d, 0" % (168 + i))
    a("v_add_u32 v%d, %d, v%d" % (vt + 2, 14 * 4096, vt))
    for i in range(28):
        a("ds_write_b128 v%d, v[168:171] offset:%d" % (vt if i < 14 else vt + 2, (i % 14) * 4096))
    a("s_waitcnt vmcnt(0) lgkmcnt(0)")
    a("s_lshl_b32 s%d, s56, 16" % sDD)
    a("s_and_b32 s%d, s56, 0xffff0000" % (sDD + 1))
    a("s_barrier")
    a("v_cmp_eq_u32 vcc, 0, v%d" % vTid)
    a("s_nop 1")
    for i in range(8):
        a("v_cndmask_b32 v%d, v%d, 0, vcc" % (UP + i, UP + i))
    a("v_add_u32 v%d, %d, v%d" % (vt + 2, CST, vt))
    a("ds_write_b128 v%d, %s offset:%d" % (vt, vr(H, 4), HOFF + 512))
    a("ds_write_b128 v%d, %s offset:%d" % (vt + 2, vr(H + 4, 4), HOFF + 512))
    x0, x1, p, y0, y1 = 104, 105, 106, 107, 108
    a("v_lshlrev_b32 v%d, 3, v%d" % (x0, vTid))
    a("v_sub_u32 v%d, 2048, v%d" % (x0, x0))
    a("v_lshrrev_b32 v%d, 8, v%d" % (x1, x0))
    a("v_lshlrev_b32 v%d, 1, v%d" % (x0, x0))
    a("v_lshl_add_u32 v%d, v%d, 4, v%d" % (x0, x1, x0))
    a("v_add_u32 v%d, %d, v%d" % (x1, CST, x0))
    a("s_mov_b32 s57, 0xffff")

    def build(prev, own, dst, r):
        d = lambda j: (prev + j) if j < 4 else (own + j - 4)
        for k in range(4):
            j = 8 + r - 2 * k
            if j & 1:
                a("v_alignbit_b32 v%d, v%d, v%d, 16" % (dst + k, d((j - 1) // 2), d((j - 1) // 2)))
            else:
                a("v_bfi_b32 v%d, s57, v%d, v%d" % (dst + k, d(j // 2), d(j // 2 - 1)))
    k = 0
    for c in range(2):
        for r in range(8):
            dst = 112 + 4 * (k % 4)
            k += 1
            build(UP + 4 * c, UO + 4 * c, dst, r)
            a("ds_write_b128 v%d, %s offset:%d" % (x0 if c == 0 else x1, vr(dst, 4), r * RS))
    a("v_cmp_eq_u32 vcc, 255, v%d" % vTid)
    a("s_and_saveexec_b64 s[58:59], vcc")
    a("v_mov_b32 v%d, 0" % y0)
    a("v_mov_b32 v%d, %d" % (y1, CST))
    for c in range(2):
        for r in range(7):
            dst = 112 + 4 * (k % 4)
            k += 1
            build(UO + 4 * c, 168, dst, r)
            a("ds_write_b128 v%d, %s offset:%d" % (y0 if c == 0 else y1, vr(dst, 4), r * RS))
    a("s_mov_b64 exec, s[58:59]")
    a("s_waitcnt lgkmcnt(0)")
    a("s_barrier")
    vLane, vHi, vL31, vA, vB, vY = 128, 129, 130, 131, 132, 133
    a("v_and_b32 v%d, 63, v%d" % (vLane, vTid))
    a("v_lshrrev_b32 v%d, 5, v%d" % (vHi, vLane))
    a("v_and_b32 v%d, 31, v%d" % (vL31, vLane))
    a("s_lshr_b32 s%d, s%d, 1" % (sT0, sW))
    a("s_mul_i32 s%d, s%d, %d" % (sT0, sT0, CST))
    a("s_and_b32 s%d, s%d, 1" % (sT1, sW))
    a("v_add_u32 v%d, v%d, v%d" % (vA, vL31, vHi))
    a("v_lshlrev_b32 v%d, 4, v%d" % (vA, vA))
    a("v_add_u32 v%d, s%d, v%d" % (vA, sT0, vA))
    a("v_lshrrev_b32 v%d, 2, v%d" % (vB, vL31))
    a("v_mul_u32_u24 v%d, %d, v%d" % (vB, RS, vB))
    a("v_and_b32 v%d, 3, v%d" % (x0, vL31))
    a("s_lshl_b32 s%d, s%d, 2" % (34, sT1))
    a("v_add_u32 v%d, s34, v%d" % (x0, x0))
    a("v_mul_u32_u24 v%d, 528, v%d" % (x1, x0))
    a("v_sub_u32 v%d, v%d, v%d" % (vB, vB, x1))
    a("v_lshl_add_u32 v%d, v%d, 4, v%d" % (vB, vHi, vB))
    a("s_add_u32 s35, s%d, %d" % (sT0, 3584 + 112))
    a("v_add_u32 v%d, s35, v%d" % (vB, vB))
    a("v_lshlrev_b32 v%d, 8, v%d" % (vY, x0))
    a("v_lshl_add_u32 v%d, v%d, 5, v%d" % (vY, vHi, vY))
    a("v_lshrrev_b32 v%d, 2, v%d" % (x1, vL31))
    a("v_add_u32 v%d, v%d, v%d" % (vY, vY, x1))
    a("v_lshlrev_b32 v%d, 1, v%d" % (vY, vY))
    a("v_add_u32 v%d, s%d, v%d" % (vY, sT0, vY))
    ACC, RA, RB = 16, 32, 64
    DD = 6

    def loop(nsteps):
        def rd(n):
            a("ds_read_b128 %s, v%d offset:%d" % (vr(RA + 4 * (n % 8), 4), vA, HOFF + 32 * n))
            a("ds_read_b128 %s, v%d offset:%d" % (vr(RB + 4 * (n % 8), 4), vB, 32 * n + 16 * (n >> 4)))
        for n in range(DD):
            rd(n)
        for n in range(nsteps):
            a("s_waitcnt lgkmcnt(%d)" % (2 * min(DD - 1, nsteps - 1 - n)))
            acc = vr(ACC, 16)
            a("v_mfma_f32_32x32x16_bf16 %s, %s, %s, %s" % (acc, vr(RA + 4 * (n % 8), 4), vr(RB + 4 * (n % 8), 4), "0" if n == 0 else acc))
            if n + DD < nsteps:
                rd(n + DD)
    a("s_cmp_eq_u32 s%d, 1" % sT1)
    a("s_cbranch_scc1 L_conv_nt1")
    loop(65)
    a("s_branch L_conv_join")
    a.label("L_conv_nt1")
    loop(129)
    a.label("L_conv_join")
    a("s_nop 15")
    for g in range(4):
        for e in range(0, 4, 2):
            r = ACC + 4 * g + e
            a("v_cvt_pk_bf16_f32 v%d, v%d, v%d" % (p, r, r + 1))
            a("ds_write_b16 v%d, v%d offset:%d" % (vY, p, YOFF + 16 * (8 * g + e)))
            a("ds_write_b16_d16_hi v%d, v%d offset:%d" % (vY, p, YOFF + 16 * (8 * g + e + 1)))
    a("s_waitcnt lgkmcnt(0)")
    a("s_barrier")
    a("ds_read_b128 v[64:67], v%d offset:%d" % (vt, YOFF))
    a("ds_read_b128 v[72:75], v%d offset:%d" % (vt + 2, YOFF))
    a("s_waitcnt lgkmcnt(0)")

    def rnd():
        a("v_cvt_pk_bf16_f32 v%d, v%d, v%d" % (p, x0, x1))
        a("v_lshlrev_b32 v%d, 16, v%d" % (x0, p))
        a("v_and_b32 v%d, 0xffff0000, v%d" % (x1, p))
    for c in range(2):
        Y, Uu = 64 + 8 * c, UO + 4 * c
        for i in range(4):
            a("v_lshlrev_b32 v%d, 16, v%d" % (x0, Uu + i))
            a("v_and_b32 v%d, 0xffff0000, v%d" % (x1, Uu + i))
            a("v_mul_f32 v%d, s%d, v%d" % (x0, sDD + c, x0))
            a("v_mul_f32 v%d, s%d, v%d" % (x1, sDD + c, x1))
            rnd()
            a("v_lshlrev_b32 v%d, 16, v%d" % (y0, Y + i))
            a("v_and_b32 v%d, 0xffff0000, v%d" % (y1, Y + i))
            a("v_add_f32 v%d, v%d, v%d" % (x0, x0, y0))
            a("v_add_f32 v%d, v%d, v%d" % (x1, x1, y1))
            a("v_cvt_pk_bf16_f32 v%d, v%d, v%d" % (Y + i, x0, x1))
        a("s_add_u32 s%d, s%d, %d" % (sT0, sD0, c))
        a("s_lshl_b32 s%d, s%d, 12" % (sT0, sT0))
        a("buffer_store_dwordx4 %s, v%d, %s, s%d offen" % (vr(Y, 4), vt, sr(SY, 4), sT0))
    signal_done(a, sW, 88, 100, "L_conv_sig", 16, 480)
    tl_end(a, 202)
    a.label("L_conv_end")
    a("s_endpgm")


SPLIT_ROW = 1280


def gen_final(a):
    SX, SGT, SC, SY, SO, SWO = 4, 8, 12, 16, 20, 36
    sW, sQ0, sM0, sT0, sT1, sKA, sKB, sMB, sCnt = 24, 25, 26, 27, 28, 29, 30, 31, 52
    a("s_cmp_ge_u32 s2, 224")
    a("s_cbranch_scc1 L_fin_end")
    a("s_load_dwordx2 s[40:41], s[0:1], %d" % KA['A_q'])
    a("s_load_dwordx2 s[44:45], s[0:1], %d" % KA['ws'])
    a("s_load_dwordx2 s[46:47], s[0:1], %d" % KA['out'])
    a("s_load_dwordx2 s[50:51], s[0:1], %d" % KA['w_o'])
    a("v_lshrrev_b32 v1, 6, v0")
    a("s_nop 0")
    a("v_readfirstlane_b32 s%d, v1" % sW)
    a("s_and_b32 s%d, s2, 7" % sT0)
    a("s_lshr_b32 s%d, s2, 3" % sT1)
    a("s_and_b32 s%d, s%d, 3" % (sQ0, sT1))
    a("s_lshl_b32 s%d, s%d, 3" % (sQ0, sQ0))
    a("s_add_u32 s%d, s%d, s%d" % (sQ0, sQ0, sT0))
    a("s_lshl_b32 s%d, s%d, 6" % (sQ0, sQ0))
    a("s_lshr_b32 s%d, s%d, 2" % (sM0, sT1))
    a("s_lshl_b32 s%d, s%d, 6" % (sM0, sM0))
    a("s_waitcnt lgkmcnt(0)")
    make_srd(a, SX, 40, 41, 2048 * 896)
    a("s_add_u32 s48, s44, 0x%x" % WS_PART)
    a("s_addc_u32 s49, s45, 0")
    make_srd(a, SC, 48, 49, 16 * MB)
    a("s_add_u32 s48, s44, 0x%x" % WS_A)
    a("s_addc_u32 s49, s45, 0")
    make_srd(a, SY, 48, 49, 448 * 4096)
    a("s_add_u32 s48, s44, 0x%x" % WS_GT)
    a("s_addc_u32 s49, s45, 0")
    make_srd(a, SGT, 48, 49, 2048 * 8)
    make_srd(a, SO, 46, 47, 2048 * 896)
    make_srd(a, SWO, 50, 51, 4096 * 896)
    NS = 4
    FC, FW = [0, 32], [16, 48]
    vAg, vBg, vCr, vWr = 64, 68, 72, 76
    vLane, vHi, vL31 = 80, 81, 82
    t = 84
    a("v_and_b32 v%d, 63, v0" % vLane)
    a("v_lshrrev_b32 v%d, 5, v%d" % (vHi, vLane))
    a("v_and_b32 v%d, 31, v%d" % (vL31, vLane))
    a("v_lshrrev_b32 v%d, 4, v%d" % (t, vLane))
    a("v_and_b32 v%d, 15, v%d" % (t + 1, vLane))
    a("s_lshl_b32 s%d, s%d, 4" % (sT0, sW))
    a("s_add_u32 s%d, s%d, s%d" % (sT0, sT0, sQ0))
    for n in range(4):
        a("v_add_u32 v%d, %d, v%d" % (t + 2, 4 * n, t))
        a("v_xor_b32 v%d, v%d, v%d" % (t + 3, t + 2, t + 1))
        a("v_add_u32 v%d, s%d, v%d" % (t + 2, sT0, t + 2))
        a("v_lshlrev_b32 v%d, 13, v%d" % (t + 2, t + 2))
        a("v_lshl_add_u32 v%d, v%d, 4, v%d" % (vAg + n, t + 3, t + 2))
    a("v_lshrrev_b32 v%d, 3, v%d" % (t, vLane))
    a("s_lshl_b32 s%d, s%d, 5" % (sT0, sW))
    a("v_add_u32 v%d, s%d, v%d" % (t, sT0, t))
    a("v_mul_u32_u24 v%d, 896, v%d" % (t, t))
    a("v_bfe_u32 v%d, v%d, 4, 1" % (t + 1, vLane))
    a("v_lshlrev_b32 v%d, 2, v%d" % (t + 1, t + 1))
    a("v_and_b32 v%d, 7, v%d" % (t + 2, vLane))
    a("v_xor_b32 v%d, v%d, v%d" % (t + 1, t + 1, t + 2))
    a("v_lshl_add_u32 v%d, v%d, 4, v%d" % (t, t + 1, t))
    a("s_lshl_b32 s%d, s%d, 1" % (sT0, sM0))
    a("v_add_u32 v%d, s%d, v%d" % (t, sT0, t))
    for n in range(4):
        a("v_add_u32 v%d, %d, v%d" % (vBg + n, n * 8 * 896, t))
    a("s_lshl_b32 s%d, s%d, 1" % (sT0, sW))
    a("v_add_u32 v%d, s%d, v%d" % (t, sT0, vHi))
    a("v_and_b32 v%d, 15, v%d" % (t + 1, vL31))
    a("v_xor_b32 v%d, v%d, v%d" % (t, t, t + 1))
    a("v_lshlrev_b32 v%d, 8, v%d" % (t + 2, vL31))
    a("v_lshl_add_u32 v%d, v%d, 4, v%d" % (vCr, t, t + 2))
    a("v_xor_b32 v%d, 8, v%d" % (t, t))
    a("v_lshl_add_u32 v%d, v%d, 4, v%d" % (vCr + 1, t, t + 2))
    a("v_add_u32 v%d, 0x10000, v%d" % (vCr + 2, vCr))
    a("v_add_u32 v%d, 0x10000, v%d" % (vCr + 3, vCr + 1))
    a("v_bfe_u32 v%d, v%d, 2, 2" % (t, vLane))
    a("v_lshl_add_u32 v%d, v%d, 3, v%d" % (t, vHi, t))
    a("s_lshl_b32 s%d, s%d, 4" % (sT0, sW))
    a("v_add_u32 v%d, s%d, v%d" % (t, sT0, t))
    a("v_lshlrev_b32 v%d, 7, v%d" % (t, t))
    a("v_bfe_u32 v%d, v%d, 3, 1" % (t + 1, vLane))
    a("v_lshl_add_u32 v%d, v%d, 6, v%d" % (t, t + 1, t))
    a("v_bfe_u32 v%d, v%d, 4, 1" % (t + 1, vLane))
    a("v_lshl_add_u32 v%d, v%d, 5, v%d" % (t, t + 1, t))
    a("v_and_b32 v%d, 3, v%d" % (t + 1, vLane))
    a("v_lshl_add_u32 v%d, v%d, 3, v%d" % (t, t + 1, t))
    a("v_add_u32 v%d, 0x4000, v%d" % (vWr, t))
    a("v_xor_b32 v%d, 64, v%d" % (vWr + 1, vWr))
    a("v_add_u32 v%d, 0x10000, v%d" % (vWr + 2, vWr))
    a("v_add_u32 v%d, 0x10000, v%d" % (vWr + 3, vWr + 1))
    a("s_lshl_b32 s%d, s%d, 12" % (sMB, sW))
    a("s_mov_b32 s%d, 0" % sKA)
    a("s_mov_b32 s%d, 0" % sKB)

    vm = []

    def issueA(tile):
        st = tile % NS
        l = []
        for n in range(4):
            l.append("s_add_u32 m0, s%d, %d" % (sMB, st * 32768 + n * 1024))
            l.append("buffer_load_dwordx4 v%d, %s, s%d offen lds" % (vAg + n, sr(SC, 4), sKA))
            vm.append(tile)
        l.append("s_add_u32 s%d, s%d, 256" % (sKA, sKA))
        return l

    def issueB(tile):
        st = tile % NS
        l = []
        for n in range(4):
            l.append("s_add_u32 m0, s%d, %d" % (sMB, st * 32768 + 16384 + n * 1024))
            l.append("buffer_load_dwordx4 v%d, %s, s%d offen lds" % (vBg + n, sr(SWO, 4), sKB))
            vm.append(tile)
        l.append("s_add_u32 s%d, s%d, %d" % (sKB, sKB, 128 * 896))
        return l

    def issue(tile):
        return issueA(tile) + issueB(tile)

    def need(tile):
        last = max(i for i, t_ in enumerate(vm) if t_ == tile)
        return min(63, len(vm) - 1 - last)

    def reads(tile):
        st = tile % NS
        fs = tile & 1
        hi2 = 2 * (st >> 1)
        l = []
        for k2 in range(2):
            for qh in range(2):
                l.append("ds_read_b128 %s, v%d offset:%d" % (vr(FC[fs] + 8 * k2 + 4 * qh, 4), vCr + hi2 + k2, (st & 1) * 32768 + qh * 8192))
            for mh in range(2):
                for j in range(2):
                    l.append("ds_read_b64_tr_b16 %s, v%d offset:%d" % (vr(FW[fs] + 8 * k2 + 4 * mh + 2 * j, 2), vWr + hi2 + mh, (st & 1) * 32768 + k2 * 8192 + j * 512))
        return l

    def mf(tile, first):
        fs = tile & 1
        l = []
        for k2 in range(2):
            for mh in range(2):
                for qh in range(2):
                    acc = ar(16 * (2 * mh + qh), 16)
                    l.append("v_mfma_f32_32x32x16_bf16 %s, %s, %s, %s" % (acc, vr(FW[fs] + 8 * k2 + 4 * mh, 4), vr(FC[fs] + 8 * k2 + 4 * qh, 4), "0" if (first and k2 == 0) else acc))
        return l
    def stamp(i):
        if os.environ.get("EXP_STAMP3"):
            a("s_memtime s[%d:%d]" % (64 + 2 * i, 65 + 2 * i))
    for tl in range(3):
        for x in issueB(tl):
            a(x)
    a("s_lshr_b32 s%d, s%d, 1" % (sT0, sW))
    a("s_lshl_b32 s%d, s%d, 5" % (sT0, sT0))
    a("s_add_u32 s%d, s%d, s%d" % (sT0, sT0, sM0))
    a("s_and_b32 s%d, s%d, 1" % (sT1, sW))
    a("s_lshl_b32 s%d, s%d, 5" % (sT1, sT1))
    a("s_add_u32 s%d, s%d, s%d" % (sT1, sT1, sQ0))
    a("v_add_u32 v%d, s%d, v%d" % (t, sT1, vL31))
    a("v_lshlrev_b32 v%d, 3, v%d" % (t + 5, t))
    XR, YR, GG = 96, 104, 120
    a("buffer_load_dwordx2 %s, v%d, %s, 0 offen" % (vr(GG, 2), t + 5, sr(SGT, 4)))
    a("v_mul_u32_u24 v%d, 896, v%d" % (t + 1, t))
    a("v_lshl_add_u32 v%d, v%d, 3, v%d" % (t + 1, vHi, t + 1))
    a("s_lshl_b32 s54, s%d, 1" % sT0)
    for g in range(4):
        a("buffer_load_dwordx2 %s, v%d, %s, s54 offen offset:%d" % (vr(XR + 2 * g, 2), t + 1, sr(SX, 4), 16 * g))
    a("v_lshlrev_b32 v%d, 1, v%d" % (t + 2, t))
    a("v_lshl_add_u32 v%d, v%d, 14, v%d" % (t + 2, vHi, t + 2))
    a("s_lshl_b32 s55, s%d, 12" % sT0)
    wait_count(a, sW, 88, t + 6, "L_fin_poll", 40, 1)
    tl_mid(a)

    def stamp(i):
        if os.environ.get("EXP_STAMP3"):
            a("s_memtime s[%d:%d]" % (64 + 2 * i, 65 + 2 * i))
    vm.clear()
    for tl in range(3):
        for x in issueA(tl):
            a(x)
    for g in range(4):
        for e in range(4):
            a("s_add_u32 s53, s55, %d" % ((8 * g + e) * 4096))
            a("buffer_load_ushort v%d, v%d, %s, s53 offen" % (YR + 4 * g + e, t + 2, sr(SY, 4)))
            vm.append(-1)
    NT = 32
    a("s_waitcnt vmcnt(%d)" % need(0))
    a("s_barrier")
    for x in reads(0):
        a(x)
    for tl in range(NT):
        if tl in (8, 16, 24):
            stamp(1 + tl // 8)
        fill = []
        a("s_waitcnt lgkmcnt(0)")
        if tl + 1 < NT:
            a("s_waitcnt vmcnt(%d)" % need(tl + 1))
            a("s_barrier")
            fill += reads(tl + 1)
            if tl + 3 < NT:
                fill += issue(tl + 3)
        for x in interleave(mf(tl, tl == 0), fill, per=4):
            a(x)
    stamp(5)
    a("s_barrier")
    a("s_nop 7")
    a("s_lshl_b32 s%d, s%d, 14" % (sT0, sW))
    a("v_lshlrev_b32 v%d, 4, v%d" % (t + 3, vLane))
    a("v_add_u32 v%d, s%d, v%d" % (t + 4, sT0, t + 3))
    for q4 in range(16):
        a("ds_write_b128 v%d, %s offset:%d" % (t + 4, ar(4 * q4, 4), q4 * 1024))
    a("s_waitcnt lgkmcnt(0)")
    a("s_barrier")
    a("s_lshl_b32 s%d, s%d, 12" % (sT0, sW))
    a("v_add_u32 v%d, s%d, v%d" % (t + 4, sT0, t + 3))
    for w2 in range(4):
        for r4 in range(4):
            a("ds_read_b128 %s, v%d offset:%d" % (vr(16 * w2 + 4 * r4, 4), t + 4, w2 * 16384 + r4 * 1024))
    a("s_waitcnt lgkmcnt(0)")
    for r in range(16):
        a("v_add_f32 v%d, v%d, v%d" % (r, r, 16 + r))
        a("v_add_f32 v%d, v%d, v%d" % (32 + r, 32 + r, 48 + r))
        a("v_add_f32 v%d, v%d, v%d" % (r, r, 32 + r))
    gg, omg = GG, GG + 1
    X0, X1, PP, Y0, Y1 = 122, 130, 138, 146, 154
    ch = [(g, e) for g in range(4) for e in (0, 2)]

    def st(fmt):
        for k, (g, e) in enumerate(ch):
            a(fmt(k, g, e))
    st(lambda k, g, e: "v_lshlrev_b32 v%d, 16, v%d" % (X0 + k, XR + 2 * g + e // 2))
    st(lambda k, g, e: "v_and_b32 v%d, 0xffff0000, v%d" % (X1 + k, XR + 2 * g + e // 2))
    st(lambda k, g, e: "v_lshlrev_b32 v%d, 16, v%d" % (Y0 + k, YR + 4 * g + e))
    st(lambda k, g, e: "v_lshlrev_b32 v%d, 16, v%d" % (Y1 + k, YR + 4 * g + e + 1))
    st(lambda k, g, e: "v_mul_f32 v%d, v%d, v%d" % (X0 + k, X0 + k, Y0 + k))
    st(lambda k, g, e: "v_mul_f32 v%d, v%d, v%d" % (X1 + k, X1 + k, Y1 + k))
    st(lambda k, g, e: "v_cvt_pk_bf16_f32 v%d, v%d, v%d" % (PP + k, X0 + k, X1 + k))
    st(lambda k, g, e: "v_lshlrev_b32 v%d, 16, v%d" % (X0 + k, PP + k))
    st(lambda k, g, e: "v_and_b32 v%d, 0xffff0000, v%d" % (X1 + k, PP + k))
    st(lambda k, g, e: "v_mul_f32 v%d, v%d, v%d" % (X0 + k, X0 + k, gg))
    st(lambda k, g, e: "v_mul_f32 v%d, v%d, v%d" % (X1 + k, X1 + k, gg))
    st(lambda k, g, e: "v_cvt_pk_bf16_f32 v%d, v%d, v%d" % (PP + k, X0 + k, X1 + k))
    st(lambda k, g, e: "v_lshlrev_b32 v%d, 16, v%d" % (Y0 + k, PP + k))
    st(lambda k, g, e: "v_and_b32 v%d, 0xffff0000, v%d" % (Y1 + k, PP + k))
    st(lambda k, g, e: "v_cvt_pk_bf16_f32 v%d, v%d, v%d" % (PP + k, 4 * g + e, 4 * g + e + 1))
    st(lambda k, g, e: "v_lshlrev_b32 v%d, 16, v%d" % (X0 + k, PP + k))
    st(lambda k, g, e: "v_and_b32 v%d, 0xffff0000, v%d" % (X1 + k, PP + k))
    st(lambda k, g, e: "v_mul_f32 v%d, v%d, v%d" % (X0 + k, X0 + k, omg))
    st(lambda k, g, e: "v_mul_f32 v%d, v%d, v%d" % (X1 + k, X1 + k, omg))
    st(lambda k, g, e: "v_cvt_pk_bf16_f32 v%d, v%d, v%d" % (PP + k, X0 + k, X1 + k))
    st(lambda k, g, e: "v_lshlrev_b32 v%d, 16, v%d" % (X0 + k, PP + k))
    st(lambda k, g, e: "v_and_b32 v%d, 0xffff0000, v%d" % (X1 + k, PP + k))
    st(lambda k, g, e: "v_add_f32 v%d, v%d, v%d" % (X0 + k, X0 + k, Y0 + k))
    st(lambda k, g, e: "v_add_f32 v%d, v%d, v%d" % (X1 + k, X1 + k, Y1 + k))
    st(lambda k, g, e: "v_cvt_pk_bf16_f32 v%d, v%d, v%d" % (PP + k, X0 + k, X1 + k))
    for g in range(4):
        a("buffer_store_dwordx2 %s, v%d, %s, s54 offen offset:%d" % (vr(PP + 2 * g, 2), t + 1, sr(SO, 4), 16 * g))
    if os.environ.get("EXP_STAMP3"):
        a("s_waitcnt vmcnt(0)")
        a("s_memtime s[76:77]")
        a("s_memrealtime s[78:79]")
        a("s_waitcnt lgkmcnt(0)")
        a("s_add_u32 s84, s44, 0x%x" % (200 * MB))
        a("s_addc_u32 s85, s45, 0")
        make_srd(a, 88, 84, 85, MB)
        for i in range(20):
            a("v_mov_b32 v%d, s%d" % (8 + i, 64 + i))
        a("s_lshl_b32 s86, s2, 8")
        a("v_mov_b32 v40, 0")
        a("s_nop 4")
        for i in range(5):
            a("buffer_store_dwordx4 v[%d:%d], v40, s[88:91], s86 offen offset:%d" % (8 + 4 * i, 11 + 4 * i, 16 * i))
    tl_end(a, 202)
    a.label("L_fin_end")
    a("s_endpgm")


def f32bits(x):
    import struct
    return struct.unpack("<I", struct.pack("<f", x))[0]


def main():
    a = Asm()
    launches = []
    descs = []
    launches.append("; @launch kernel=proj_kernel grid=(256,1,1) block=(256,1,1) lds=163840")
    body = Asm()
    descs.append(gen_proj(body))
    launches.append("; @launch kernel=attn_kernel grid=(704,1,1) block=(256,1,1) lds=163840")
    descs.append(gen_attn(body))
    hdr = "\n".join(launches) + "\n" + '.amdgcn_target "amdgcn-amd-amdhsa--gfx950"\n'
    txt = body.text()
    fl = os.environ.get("ST_FLAGS", "sc1")
    if fl:
        import re
        txt = re.sub(r"(buffer_store_dwordx4 [^\n]*)", lambda m: m.group(1) + " " + fl, txt)
    with open(OUT, "w") as f:
        f.write(hdr + txt + "".join(descs))
    print("wrote", OUT, len(body.lines), "lines")


if __name__ == "__main__":
    main()
```

```python
import sys, os

OUT = os.environ.get("GEN_OUT", "gated_mix__ssm_conv_h3__compressed_kv_cla__prompt.s")

KA = dict(A_q=0, A_k=8, A_v=16, shift_k=24, ssm_k=32, ssm_D=40, B_x=48, c_kv=56, w_q=64,
          w_uk=72, w_uv=80, w_o=88, gate_w=96, out=104, dbg=112, ws=120)
MB = 1 << 20
WS_Q = 0
WS_K = 16 * MB
WS_VT = 32 * MB
WS_PART = 48 * MB
PART_SZ = 2048 * 448 * 4
WS_A = 160 * MB
WS_ML = 170 * MB
WS_UT = 174 * MB
WS_GT = 172 * MB


class Asm:
    def __init__(self):
        self.lines = []
        self.n = 0

    def __call__(self, s):
        self.lines.append("    " + s)

    def label(self, l):
        self.lines.append(l + ":")

    def c(self, s):
        self.lines.append("    ; " + s)

    def raw(self, s):
        self.lines.append(s)

    def text(self):
        return "\n".join(self.lines) + "\n"


def vr(b, n):
    return "v[%d:%d]" % (b, b + n - 1)


def ar(b, n):
    return "a[%d:%d]" % (b, b + n - 1)


def sr(b, n):
    return "s[%d:%d]" % (b, b + n - 1)


def kernel_begin(a, name):
    a.raw(".text")
    a.raw(".globl %s" % name)
    a.raw(".p2align 8")
    a.raw(".type %s,@function" % name)
    a.label(name)


def kernel_desc(name, vgpr, accum, sgpr=102):
    return """.section .rodata,"a"
.p2align 6
.amdhsa_kernel %s
  .amdhsa_next_free_vgpr %d
  .amdhsa_next_free_sgpr %d
  .amdhsa_accum_offset %d
  .amdhsa_group_segment_fixed_size 0
  .amdhsa_kernarg_size 128
  .amdhsa_user_sgpr_count 2
  .amdhsa_user_sgpr_kernarg_segment_ptr 1
  .amdhsa_system_sgpr_workgroup_id_x 1
.end_amdhsa_kernel
""" % (name, vgpr, sgpr, accum)


def make_srd(a, d, lo, hi, nbytes):
    a("s_mov_b32 s%d, s%d" % (d, lo))
    a("s_and_b32 s%d, s%d, 0xffff" % (d + 1, hi))
    a("s_mov_b32 s%d, 0x%x" % (d + 2, nbytes))
    a("s_mov_b32 s%d, 0x00020000" % (d + 3))


def signal_done(a, sW, srd_lo, tmpv, lab, word, target):
    a("s_waitcnt vmcnt(0)")
    a("s_barrier")
    a("s_cmp_lg_u32 s%d, 0" % sW)
    a("s_cbranch_scc1 %s" % lab)
    a("s_load_dwordx2 s[46:47], s[0:1], %d" % KA['dbg'])
    a("s_waitcnt lgkmcnt(0)")
    make_srd(a, srd_lo, 46, 47, 256)
    a("v_mov_b32 v%d, 1" % tmpv)
    a("v_mov_b32 v%d, %d" % (tmpv + 1, 4 * word))
    a("s_mov_b64 exec, 1")
    a("buffer_atomic_add v%d, v%d, %s, 0 offen sc0" % (tmpv, tmpv + 1, sr(srd_lo, 4)))
    a("s_waitcnt vmcnt(0)")
    a("v_readfirstlane_b32 s46, v%d" % tmpv)
    a("s_nop 3")
    a("s_cmp_lg_u32 s46, %d" % (target - 1))
    a("s_cbranch_scc1 %s" % lab)
    a("v_mov_b32 v%d, 1" % tmpv)
    a("v_mov_b32 v%d, 160" % (tmpv + 1))
    a("buffer_store_dword v%d, v%d, %s, 0 offen sc1" % (tmpv, tmpv + 1, sr(srd_lo, 4)))
    a.label(lab)


def wait_count(a, sW, srd_lo, tmpv, lab, word, target):
    a("s_cmp_lg_u32 s%d, 0" % sW)
    a("s_cbranch_scc1 %s_done" % lab)
    a("s_load_dwordx2 s[46:47], s[0:1], %d" % KA['dbg'])
    a("s_waitcnt lgkmcnt(0)")
    make_srd(a, srd_lo, 46, 47, 256)
    a("v_mov_b32 v%d, %d" % (tmpv + 1, 4 * word))
    a.label(lab)
    a("buffer_load_dword v%d, v%d, %s, 0 offen sc1" % (tmpv, tmpv + 1, sr(srd_lo, 4)))
    a("s_waitcnt vmcnt(0)")
    a("v_readfirstlane_b32 s46, v%d" % tmpv)
    a("s_nop 3")
    a("s_cmp_ge_u32 s46, %d" % target)
    a("s_cbranch_scc1 %s_done" % lab)
    a("s_sleep 16")
    a("s_branch %s" % lab)
    a.label(lab + "_done")
    a("s_barrier")


def tl_begin(a):
    if os.environ.get("EXP_TL"):
        a("s_memrealtime s[98:99]")
        a("s_mov_b32 s97, s2")


def tl_mid(a):
    if os.environ.get("EXP_TL"):
        a("s_memrealtime s[94:95]")


def tl_end(a, base):
    if os.environ.get("EXP_TL"):
        a("s_mov_b64 exec, -1")
        a("s_waitcnt vmcnt(0)")
        a("s_memrealtime s[100:101]")
        a("s_load_dwordx2 s[84:85], s[0:1], %d" % KA['ws'])
        a("s_waitcnt lgkmcnt(0)")
        a("s_add_u32 s84, s84, 0x%x" % (base * MB))
        a("s_addc_u32 s85, s85, 0")
        make_srd(a, 88, 84, 85, MB)
        for i in range(4):
            a("v_mov_b32 v%d, s%d" % (8 + i, 98 + i))
        a("v_mov_b32 v12, s94")
        a("v_mov_b32 v13, s95")
        a("s_lshl_b32 s86, s97, 5")
        a("v_mov_b32 v40, 0")
        a("s_nop 4")
        a("buffer_store_dwordx4 v[8:11], v40, s[88:91], s86 offen")
        a("buffer_store_dwordx2 v[12:13], v40, s[88:91], s86 offen offset:16")


def interleave(main, fill, start=0, per=1):
    out = []
    fi = 0
    for i, m in enumerate(main):
        out.append(m)
        if i >= start:
            for _ in range(per):
                if fi < len(fill):
                    out.append(fill[fi])
                    fi += 1
    out.extend(fill[fi:])
    return out


def gen_ujob(a, sW, sT0, sT1):
    SK, SV, SS, SU, SX, SG, SGT = 60, 64, 68, 72, 48, 88, 92
    a("s_load_dwordx2 s[76:77], s[0:1], %d" % KA['A_k'])
    a("s_load_dwordx2 s[78:79], s[0:1], %d" % KA['A_v'])
    a("s_load_dwordx2 s[80:81], s[0:1], %d" % KA['shift_k'])
    a("s_load_dwordx2 s[82:83], s[0:1], %d" % KA['gate_w'])
    a("s_waitcnt lgkmcnt(0)")
    make_srd(a, SK, 76, 77, 2048 * 896)
    make_srd(a, SV, 78, 79, 2048 * 896)
    make_srd(a, SS, 80, 81, 448 * 8)
    make_srd(a, SG, 82, 83, 896)
    a("s_add_u32 s82, s42, 0x%x" % WS_UT)
    a("s_addc_u32 s83, s43, 0")
    make_srd(a, SU, 82, 83, 448 * 4096)
    a("s_add_u32 s82, s42, 0x%x" % WS_GT)
    a("s_addc_u32 s83, s43, 0")
    make_srd(a, SGT, 82, 83, 2048 * 8)
    vL, vo, vs = 106, 107, 108
    KR, VR, SR = 110, 130, 138
    KF, VF, SF = 154, 194, 210
    GX, GW, Z = 4, 12, 16
    X0, X1, Y0, Y1, PP = 24, 32, 40, 48, 56
    OUT = 248
    a("v_mbcnt_lo_u32_b32 v%d, -1, 0" % vL)
    a("v_mbcnt_hi_u32_b32 v%d, -1, v%d" % (vL, vL))
    a("v_cmp_gt_u32 vcc, 56, v%d" % vL)
    a("s_and_saveexec_b64 s[84:85], vcc")
    a("s_lshl_b32 s%d, s2, 3" % sT0)
    a("s_lshl_b32 s%d, s%d, 1" % (sT1, sW))
    a("s_add_u32 s86, s%d, s%d" % (sT0, sT1))
    a("v_lshlrev_b32 v%d, 4, v%d" % (vo, vL))
    for i in range(3):
        a("s_sub_u32 s%d, s86, %d" % (sT0, 3 - i))
        a("s_mul_i32 s%d, s%d, 896" % (sT0, sT0))
        a("v_add_u32 v%d, s%d, v%d" % (vs, sT0, vo))
        a("buffer_load_dwordx4 %s, v%d, %s, 0 offen" % (vr(KR + 4 * i, 4), vs, sr(SK, 4)))
    a("s_mul_i32 s%d, s86, 896" % sT0)
    a("buffer_load_dwordx4 %s, v%d, %s, s%d offen" % (vr(KR + 12, 4), vo, sr(SK, 4), sT0))
    a("buffer_load_dwordx4 %s, v%d, %s, s%d offen offset:896" % (vr(KR + 16, 4), vo, sr(SK, 4), sT0))
    a("buffer_load_dwordx4 %s, v%d, %s, s%d offen" % (vr(VR, 4), vo, sr(SV, 4), sT0))
    a("buffer_load_dwordx4 %s, v%d, %s, s%d offen offset:896" % (vr(VR + 4, 4), vo, sr(SV, 4), sT0))
    a("v_lshlrev_b32 v%d, 6, v%d" % (vs, vL))
    for i in range(4):
        a("buffer_load_dwordx4 %s, v%d, %s, 0 offen offset:%d" % (vr(SR + 4 * i, 4), vs, sr(SS, 4), 16 * i))
    a("buffer_load_dwordx4 %s, v%d, %s, s%d offen" % (vr(GX, 4), vo, sr(SX, 4), sT0))
    a("buffer_load_dwordx4 %s, v%d, %s, s%d offen offset:896" % (vr(GX + 4, 4), vo, sr(SX, 4), sT0))
    a("buffer_load_dwordx4 %s, v%d, %s, 0 offen" % (vr(GW, 4), vo, sr(SG, 4)))
    a("s_waitcnt vmcnt(0)")

    def st(fmt, n=8):
        for c in range(n):
            a(fmt(c))

    def rnd():
        st(lambda c: "v_cvt_pk_bf16_f32 v%d, v%d, v%d" % (PP + c, X0 + c, X1 + c))
        st(lambda c: "v_lshlrev_b32 v%d, 16, v%d" % (X0 + c, PP + c))
        st(lambda c: "v_and_b32 v%d, 0xffff0000, v%d" % (X1 + c, PP + c))
    st(lambda c: "v_lshlrev_b32 v%d, 16, v%d" % (X0 + c, GX + c))
    st(lambda c: "v_and_b32 v%d, 0xffff0000, v%d" % (X1 + c, GX + c))
    st(lambda c: "v_lshlrev_b32 v%d, 16, v%d" % (Y0 + c, GW + c), 4)
    st(lambda c: "v_and_b32 v%d, 0xffff0000, v%d" % (Y1 + c, GW + c), 4)
    st(lambda c: "v_mul_f32 v%d, v%d, v%d" % (X0 + c, X0 + c, Y0 + c % 4))
    st(lambda c: "v_mul_f32 v%d, v%d, v%d" % (X1 + c, X1 + c, Y1 + c % 4))
    rnd()
    st(lambda c: "v_add_f32 v%d, v%d, v%d" % (X0 + c, X0 + c, X1 + c))
    for r in range(2):
        a("v_add_f32 v%d, v%d, v%d" % (X1 + 2 * r, X0 + 4 * r, X0 + 4 * r + 1))
        a("v_add_f32 v%d, v%d, v%d" % (X1 + 2 * r + 1, X0 + 4 * r + 2, X0 + 4 * r + 3))
    for r in range(2):
        a("v_add_f32 v%d, v%d, v%d" % (Z + r, X1 + 2 * r, X1 + 2 * r + 1))
    for i in range(20):
        a("v_lshlrev_b32 v%d, 16, v%d" % (KF + 2 * i, KR + i))
        a("v_and_b32 v%d, 0xffff0000, v%d" % (KF + 2 * i + 1, KR + i))
    for i in range(8):
        a("v_lshlrev_b32 v%d, 16, v%d" % (VF + 2 * i, VR + i))
        a("v_and_b32 v%d, 0xffff0000, v%d" % (VF + 2 * i + 1, VR + i))
    for i in range(16):
        a("v_lshlrev_b32 v%d, 16, v%d" % (SF + 2 * i, SR + i))
        a("v_and_b32 v%d, 0xffff0000, v%d" % (SF + 2 * i + 1, SR + i))
    kf = lambda row, c: KF + 8 * row + c
    sk = lambda j, c: SF + 4 * c + j
    st(lambda c: "v_mul_f32 v%d, v%d, v%d" % (X0 + c, kf(0, c), sk(3, c)))
    st(lambda c: "v_mul_f32 v%d, v%d, v%d" % (X1 + c, kf(1, c), sk(3, c)))
    rnd()
    for j in range(1, 4):
        st(lambda c: "v_mov_b32 v%d, v%d" % (Y0 + c, X0 + c))
        st(lambda c: "v_mov_b32 v%d, v%d" % (Y1 + c, X1 + c))
        st(lambda c: "v_mul_f32 v%d, v%d, v%d" % (X0 + c, kf(j, c), sk(3 - j, c)))
        st(lambda c: "v_mul_f32 v%d, v%d, v%d" % (X1 + c, kf(j + 1, c), sk(3 - j, c)))
        rnd()
        st(lambda c: "v_add_f32 v%d, v%d, v%d" % (X0 + c, Y0 + c, X0 + c))
        st(lambda c: "v_add_f32 v%d, v%d, v%d" % (X1 + c, Y1 + c, X1 + c))
        rnd()
    st(lambda c: "v_mul_f32 v%d, v%d, v%d" % (X0 + c, X0 + c, VF + c))
    st(lambda c: "v_mul_f32 v%d, v%d, v%d" % (X1 + c, X1 + c, VF + 8 + c))
    st(lambda c: "v_cvt_pk_bf16_f32 v%d, v%d, v%d" % (OUT + c, X0 + c, X1 + c))
    a("v_lshlrev_b32 v%d, 15, v%d" % (vs, vL))
    a("s_lshl_b32 s%d, s86, 1" % sT0)
    for c in range(8):
        a("s_add_u32 s%d, s%d, %d" % (sT1, sT0, c * 4096))
        a("buffer_store_dword v%d, v%d, %s, s%d offen" % (OUT + c, vs, sr(SU, 4), sT1))
    a("s_mov_b64 exec, s[84:85]")
    a("v_cmp_gt_u32 vcc, 56, v%d" % vL)
    a("s_nop 1")
    for r in range(2):
        a("v_cndmask_b32 v%d, 0, v%d, vcc" % (Z + r, Z + r))
    for off in (0x041F, 0x081F, 0x101F, 0x201F, 0x401F):
        for r in range(2):
            a("ds_swizzle_b32 v%d, v%d offset:0x%x" % (Z + 2 + r, Z + r, off))
        a("s_waitcnt lgkmcnt(0)")
        for r in range(2):
            a("v_add_f32 v%d, v%d, v%d" % (Z + r, Z + r, Z + 2 + r))
    for r in range(2):
        a("v_mov_b32 v%d, v%d" % (Z + 2 + r, Z + r))
    a("s_nop 1")
    for r in range(2):
        a("v_permlane32_swap_b32 v%d, v%d" % (Z + 2 + r, Z + r))
    for r in range(2):
        a("v_add_f32 v%d, v%d, v%d" % (Z + r, Z + r, Z + 2 + r))
    a("v_cmp_eq_u32 vcc, 1, v%d" % vL)
    a("s_nop 1")
    z, p, y0, y1 = X0, PP, Y0, Y0 + 1
    a("v_cndmask_b32 v%d, v%d, v%d, vcc" % (z, Z, Z + 1))
    a("v_cvt_pk_bf16_f32 v%d, v%d, v%d" % (p, z, z))
    a("v_lshlrev_b32 v%d, 16, v%d" % (z, p))
    a("v_mul_f32 v%d, 0x%08x, v%d" % (z, f32bits(-1.4426950408889634), z))
    a("v_exp_f32 v%d, v%d" % (z, z))
    a("s_nop 0")
    a("v_add_f32 v%d, 1.0, v%d" % (z, z))
    a("v_rcp_f32 v%d, v%d" % (z, z))
    a("s_nop 0")
    a("v_cvt_pk_bf16_f32 v%d, v%d, v%d" % (p, z, z))
    a("v_lshlrev_b32 v%d, 16, v%d" % (y0, p))
    a("v_sub_f32 v%d, 1.0, v%d" % (z, y0))
    a("v_cvt_pk_bf16_f32 v%d, v%d, v%d" % (p, z, z))
    a("v_lshlrev_b32 v%d, 16, v%d" % (y1, p))
    a("v_lshlrev_b32 v%d, 3, v%d" % (vs, vL))
    a("s_lshl_b32 s%d, s86, 3" % sT0)
    a("v_cmp_gt_u32 vcc, 2, v%d" % vL)
    a("s_and_saveexec_b64 s[84:85], vcc")
    a("buffer_store_dwordx2 %s, v%d, %s, s%d offen" % (vr(y0, 2), vs, sr(SGT, 4), sT0))
    a("s_mov_b64 exec, s[84:85]")


def gen_proj(a):
    name = "proj_kernel"
    kernel_begin(a, name)
    tl_begin(a)
    SA, SB, SO = 4, 8, 12
    SA2, SB2, SO2 = 48, 52, 56
    sW, sM0, sKA, sKB, sCnt, sMode = 16, 17, 18, 19, 20, 21
    sMb, sNb, sNq, sT0, sT1, sNt, sMq, sKA2, sKB2, sSt = 22, 23, 24, 25, 26, 27, 28, 29, 30, 31
    a("s_cmp_ge_u32 s2, 256")
    a("s_cbranch_scc1 L_proj_end")
    a("s_load_dwordx2 s[32:33], s[0:1], %d" % KA['A_q'])
    a("s_load_dwordx2 s[34:35], s[0:1], %d" % KA['c_kv'])
    a("s_load_dwordx2 s[36:37], s[0:1], %d" % KA['w_q'])
    a("s_load_dwordx2 s[38:39], s[0:1], %d" % KA['w_uk'])
    a("s_load_dwordx2 s[40:41], s[0:1], %d" % KA['w_uv'])
    a("s_load_dwordx2 s[42:43], s[0:1], %d" % KA['ws'])
    a("v_lshrrev_b32 v1, 6, v0")
    a("v_and_b32 v0, 63, v0")
    a("s_nop 0")
    a("v_readfirstlane_b32 s%d, v1" % sW)
    a("s_and_b32 s%d, s2, 7" % sT0)
    a("s_lshr_b32 s%d, s2, 3" % sT1)
    a("s_and_b32 s%d, s%d, 7" % (sMb, sT1))
    a("s_lshr_b32 s%d, s%d, 3" % (sT1, sT1))
    a("s_lshl_b32 s%d, s%d, 2" % (sT0, sT0))
    a("s_add_u32 s%d, s%d, s%d" % (sNt, sT0, sT1))
    a("s_lshl_b32 s%d, s%d, 8" % (sMb, sMb))
    a("s_waitcnt lgkmcnt(0)")
    make_srd(a, SA, 34, 35, 2048 * 2048)
    a("s_cmp_ge_u32 s%d, 16" % sNt)
    a("s_cselect_b32 s44, s40, s38")
    a("s_cselect_b32 s45, s41, s39")
    a("s_cselect_b32 s%d, 1, 0" % sMode)
    make_srd(a, SB, 44, 45, 1024 * 8192)
    a("s_and_b32 s%d, s%d, 15" % (sNb, sNt))
    a("s_lshl_b32 s%d, s%d, 8" % (sNb, sNb))
    a("s_lshl_b32 s%d, s%d, 24" % (sT0, sMode))
    a("s_add_u32 s%d, s%d, 0x%x" % (sT0, sT0, WS_K))
    a("s_add_u32 s46, s42, s%d" % sT0)
    a("s_addc_u32 s47, s43, 0")
    make_srd(a, SO, 46, 47, 16 * MB)
    make_srd(a, SA2, 32, 33, 2048 * 896)
    make_srd(a, SB2, 36, 37, 448 * 8192)
    make_srd(a, SO2, 42, 43, 16 * MB)
    a("s_lshl_b32 s%d, s%d, 7" % (sNq, sNt))
    a("s_lshl_b32 s%d, s%d, 12" % (sMq, sW))
    a("s_lshl_b32 s%d, s%d, 13" % (sM0, sW))
    for r in (sKA, sKB, sKA2, sKB2):
        a("s_mov_b32 s%d, 0" % r)

    FA = [0, 32]
    FB = [16, 48]
    vLane, vHi, vL31 = 64, 65, 66
    vOA, vOB, vRA, vRB = 68, 76, 84, 88
    vOA2, vOB2, vRB2 = 92, 100, 104
    vT = 106
    QACC = 128
    a("v_mov_b32 v%d, v0" % vLane)
    a("v_lshrrev_b32 v%d, 5, v0" % vHi)
    a("v_and_b32 v%d, 31, v0" % vL31)

    def setupA(dst, lda):
        a("v_lshrrev_b32 v%d, 3, v%d" % (vT, vLane))
        a("s_lshl_b32 s%d, s%d, 6" % (sT0, sW))
        a("s_add_u32 s%d, s%d, s%d" % (sT0, sT0, sMb))
        a("v_add_u32 v%d, s%d, v%d" % (vT, sT0, vT))
        a("v_mul_u32_u24 v%d, %d, v%d" % (vT, lda, vT))
        a("v_and_b32 v%d, 7, v%d" % (vT + 1, vLane))
        a("v_lshrrev_b32 v%d, 4, v%d" % (vT + 2, vLane))
        a("v_xor_b32 v%d, v%d, v%d" % (vT + 3, vT + 1, vT + 2))
        a("v_xor_b32 v%d, 4, v%d" % (vT + 4, vT + 3))
        a("v_lshlrev_b32 v%d, 4, v%d" % (vT + 3, vT + 3))
        a("v_lshlrev_b32 v%d, 4, v%d" % (vT + 4, vT + 4))
        for n in range(8):
            a("v_add_u32 v%d, v%d, v%d" % (dst + n, vT, vT + 3 + (n & 1)))
            if n < 7:
                a("v_add_u32 v%d, %d, v%d" % (vT, 8 * lda, vT))
    setupA(vOA, 2048)
    a("s_lshl_b32 s%d, s%d, 4" % (sT0, sW))
    a("v_add_u32 v%d, s%d, v%d" % (vT, sT0, vHi))
    a("v_lshlrev_b32 v%d, 13, v%d" % (vT, vT))
    a("s_lshl_b32 s%d, s%d, 1" % (sT0, sNb))
    a("v_add_u32 v%d, s%d, v%d" % (vT, sT0, vT))
    a("v_lshlrev_b32 v%d, 2, v%d" % (vT + 1, vHi))
    a("v_xor_b32 v%d, v%d, v%d" % (vT + 3, vL31, vT + 1))
    a("v_xor_b32 v%d, 8, v%d" % (vT + 4, vT + 3))
    a("v_lshlrev_b32 v%d, 4, v%d" % (vT + 3, vT + 3))
    a("v_lshlrev_b32 v%d, 4, v%d" % (vT + 4, vT + 4))
    for n in range(8):
        a("v_add_u32 v%d, v%d, v%d" % (vOB + n, vT, vT + 3 + (n & 1)))
        if n < 7:
            a("v_add_u32 v%d, 0x4000, v%d" % (vT, vT))

    sW8 = 45
    a("s_lshl_b32 s%d, s%d, 13" % (sW8, sW))

    def dmaA(q, tile=0):
        l = []
        for n in range(8):
            if q:
                l.append(["s_add_u32 m0, s%d, %d" % (sW8, (tile % 3) * 49152 + n * 1024),
                          "buffer_load_dwordx4 v%d, %s, s%d offen lds ;T%d" % (vOA2 + n, sr(SA2, 4), sKA2, tile)])
            else:
                l.append(["s_add_u32 m0, s%d, %d" % (sM0, n * 1024),
                          "buffer_load_dwordx4 v%d, %s, s%d offen lds" % (vOA + n, sr(SA, 4), sKA)])
        l.append(["s_add_u32 s%d, s%d, 128" % ((sKA2, sKA2) if q else (sKA, sKA))])
        return l

    def dmaB(q, tile=0):
        l = []
        if q:
            for n in range(4):
                l.append(["s_add_u32 m0, s%d, %d" % (sMq, (tile % 3) * 49152 + 32768 + n * 1024),
                          "buffer_load_dwordx4 v%d, %s, s%d offen lds ;T%d" % (vOB2 + n, sr(SB2, 4), sKB2, tile)])
            l.append(["s_add_u32 s%d, s%d, 0x80000" % (sKB2, sKB2)])
        else:
            for n in range(8):
                l.append(["s_add_u32 m0, s%d, %d" % (sM0, 32768 + n * 1024),
                          "buffer_load_dwordx4 v%d, %s, s%d offen lds" % (vOB + n, sr(SB, 4), sKB)])
            l.append(["s_add_u32 s%d, s%d, 0x80000" % (sKB, sKB), "s_xor_b32 s%d, s%d, 0x10000" % (sM0, sM0)])
        return l

    def flat(l):
        o = []
        for x in l:
            o.extend(x)
        return o
    for x in flat(dmaA(False) + dmaB(False) + dmaA(False)):
        a(x)
    setupA(vOA2, 896)
    a("v_lshrrev_b32 v%d, 4, v%d" % (vT + 1, vLane))
    a("s_lshl_b32 s%d, s%d, 4" % (sT0, sW))
    a("v_add_u32 v%d, s%d, v%d" % (vT, sT0, vT + 1))
    a("v_lshlrev_b32 v%d, 13, v%d" % (vT, vT))
    a("s_lshl_b32 s%d, s%d, 1" % (sT0, sNq))
    a("v_add_u32 v%d, s%d, v%d" % (vT, sT0, vT))
    a("v_lshlrev_b32 v%d, 2, v%d" % (vT + 1, vT + 1))
    a("v_and_b32 v%d, 15, v%d" % (vT + 2, vLane))
    a("v_xor_b32 v%d, v%d, v%d" % (vT + 1, vT + 1, vT + 2))
    a("v_lshl_add_u32 v%d, v%d, 4, v%d" % (vT, vT + 1, vT))
    for n in range(4):
        a("v_add_u32 v%d, %d, v%d" % (vOB2 + n, n * 0x8000, vT))
    a("s_and_b32 s%d, s%d, 1" % (sT0, sW))
    a("s_lshr_b32 s%d, s%d, 1" % (sT1, sW))
    a("s_lshl_b32 s%d, s%d, 14" % (sT0, sT0))
    a("v_lshlrev_b32 v%d, 7, v%d" % (vT, vL31))
    a("v_add_u32 v%d, s%d, v%d" % (vT, sT0, vT))
    a("v_bfe_u32 v%d, v%d, 1, 3" % (vT + 1, vLane))
    a("v_xor_b32 v%d, v%d, v%d" % (vT + 1, vT + 1, vHi))
    for ks in range(4):
        a("v_xor_b32 v%d, %d, v%d" % (vT + 2, 2 * ks, vT + 1))
        a("v_lshl_add_u32 v%d, v%d, 4, v%d" % (vRA + ks, vT + 2, vT))
    a("v_bfe_u32 v%d, v%d, 2, 2" % (vT, vLane))
    a("v_lshl_add_u32 v%d, v%d, 3, v%d" % (vT + 1, vHi, vT))
    a("v_bfe_u32 v%d, v%d, 4, 1" % (vT + 2, vLane))
    a("v_lshlrev_b32 v%d, 5, v%d" % (vT + 3, vT + 2))
    a("v_bfe_u32 v%d, v%d, 1, 1" % (vT + 2, vLane))
    a("v_lshl_add_u32 v%d, v%d, 4, v%d" % (vT + 3, vT + 2, vT + 3))
    a("v_and_b32 v%d, 1, v%d" % (vT + 2, vLane))
    a("v_lshl_add_u32 v%d, v%d, 3, v%d" % (vT + 3, vT + 2, vT + 3))
    a("v_add_u32 v%d, 0x8000, v%d" % (vT + 3, vT + 3))
    a("v_lshl_add_u32 v%d, v%d, 9, v%d" % (vT + 4, vT + 1, vT + 3))
    a("s_lshl_b32 s%d, s%d, 8" % (sT0, sT1))
    a("v_add_u32 v%d, s%d, v%d" % (vT + 4, sT0, vT + 4))
    for nt in range(4):
        a("v_xor_b32 v%d, %d, v%d" % (vT + 2, nt, vT))
        a("v_lshl_add_u32 v%d, v%d, 6, v%d" % (vRB + nt, vT + 2, vT + 4))
    a("v_lshl_add_u32 v%d, v%d, 8, v%d" % (vT + 4, vT + 1, vT + 3))
    a("s_lshl_b32 s%d, s%d, 1" % (sT1, sT1))
    for nt in range(2):
        a("v_mov_b32 v%d, s%d" % (vT + 5, sT1))
        a("v_add_u32 v%d, %d, v%d" % (vT + 5, nt, vT + 5))
        a("v_xor_b32 v%d, v%d, v%d" % (vT + 2, vT + 5, vT))
        a("v_lshl_add_u32 v%d, v%d, 6, v%d" % (vRB2 + nt, vT + 2, vT + 4))

    def frag_reads(st, ks, q):
        A = ["ds_read_b128 %s, v%d offset:%d" % (vr(FA[st] + 4 * mt, 4), vRA + ks, mt * 4096) for mt in range(4)]
        B = []
        pitch = 256 if q else 512
        for nt in range(2 if q else 4):
            for j in range(2):
                B.append("ds_read_b64_tr_b16 %s, v%d offset:%d" % (vr(FB[st] + 4 * nt + 2 * j, 2), (vRB2 if q else vRB) + nt, (ks * 16 + j * 4) * pitch))
        if q:
            return [A[0], B[0], B[1], B[2], B[3], A[1], A[2], A[3]]
        return [A[0], B[0], B[1], B[2], B[3], A[1], B[4], B[5], B[6], B[7], A[2], A[3]]

    def mfmas(st, mode, q, first):
        l = []
        nn = 2 if q else 4
        for mt in range(4):
            for nt in range(nn):
                acc = vr(QACC + (mt * nn + nt) * 16, 16) if q else ar((mt * nn + nt) * 16, 16)
                A = vr(FA[st] + 4 * mt, 4)
                B = vr(FB[st] + 4 * nt, 4)
                c = "0" if first else acc
                if q or mode == 0:
                    l.append("v_mfma_f32_32x32x16_bf16 %s, %s, %s, %s" % (acc, B, A, c))
                else:
                    l.append("v_mfma_f32_32x32x16_bf16 %s, %s, %s, %s" % (acc, A, B, c))
        return l

    def tog(regs):
        return ["v_xor_b32 v%d, 0x10000, v%d" % (r, r) for r in regs]

    def weave(mf, reads, groups, extra=()):
        n = len(mf)
        slots = [[] for _ in range(n)]
        for i, r in enumerate(reads):
            slots[min(n - 1, i * n // len(reads) if len(reads) > n else i)].append(r)
        for i, g in enumerate(groups):
            slots[min(n - 1, (i * n) // max(1, len(groups)))].extend(g)
        for i, g in enumerate(extra):
            slots[min(n - 1, (i * n) // max(1, len(extra)))].append(g)
        out = []
        for i in range(n):
            out.append(mf[i])
            out.extend(slots[i])
        return out

    def body(out, mode, q, h2, h1, nxt, first=False, nextq=None, extras=None, hm=(), tile=None):
        if nextq is None:
            nextq = q
        ex = extras or [[], [], [], []]
        for ks in range(3):
            out.append("s_waitcnt lgkmcnt(0)")
            out.extend(weave(mfmas(ks & 1, mode, q, first and ks == 0), frag_reads((ks + 1) & 1, ks + 1, q), h2 if ks == 0 else (list(hm) if ks == 1 else []), ex[ks]))
        out.append("s_waitcnt lgkmcnt(0)")
        rd = []
        if nxt:
            out.append("VMWAIT" if tile is None else "VMWAIT T%d" % (tile + 1))
            out.append("s_barrier")
            if q:
                dl = 49152 if (tile + 1) % 3 else -98304
                rd = ["v_add_u32 v%d, 0x%x, v%d" % (r, dl & 0xffffffff, r) for r in list(range(vRA, vRA + 4)) + [vRB2, vRB2 + 1]]
            else:
                regs = list(range(vRA, vRA + 4))
                if nextq == q:
                    regs += list(range(vRB, vRB + 4))
                rd = tog(regs)
            rd = rd + frag_reads(0, 0, nextq)
        out.extend(weave(mfmas(1, mode, q, False), rd, h1, ex[3]))

    hist = []

    def flush(out):
        for x in out:
            if x.startswith("VMWAIT"):
                cnt = 0
                tag = x.split()[1] if " " in x else None
                for y in reversed(hist):
                    if (tag is None and y.split(";")[0].strip().endswith("lds")) or (tag and y.endswith(";" + tag)):
                        break
                    cnt += 1
                a("s_waitcnt vmcnt(%d)" % cnt)
                continue
            if x.startswith("buffer_"):
                hist.append(x)
            a(x)

    def kv_epilogue_stream(mode):
        TB, RB = 68, 88
        return None

    def stamp(i):
        if os.environ.get("EXP_STAMP"):
            a("s_memtime s[%d:%d]" % (88 + 2 * i, 89 + 2 * i) if i < 7 else "s_memrealtime s[60:61]")
    stamp(0)
    if os.environ.get("EXP_STAMP"):
        a("s_memrealtime s[46:47]")
    if not os.environ.get("NO_PREFETCH"):
        a("s_load_dwordx2 s[76:77], s[0:1], %d" % KA['w_o'])
        a("s_load_dwordx2 s[78:79], s[0:1], %d" % KA['ssm_k'])
        a("s_waitcnt lgkmcnt(0)")
        make_srd(a, 60, 76, 77, 4096 * 896)
        make_srd(a, 64, 78, 79, 448 * 4096)
        a("v_lshlrev_b32 v%d, 7, v%d" % (vT, vLane))
        a("s_lshl_b32 s%d, s%d, 13" % (sT0, sW))
        a("v_add_u32 v%d, s%d, v%d" % (vT, sT0, vT))
        a("s_mul_i32 s%d, s2, 14336" % sT0)
        a("v_cmp_gt_u32 vcc, 14336, v%d" % vT)
        a("s_and_saveexec_b64 s[84:85], vcc")
        a("s_cbranch_execz L_pf0")
        a("buffer_load_dword v%d, v%d, %s, s%d offen" % (0, vT, sr(SB2, 4), sT0))
        a("buffer_load_dword v%d, v%d, s[60:63], s%d offen" % (1, vT, sT0))
        a.label("L_pf0")
        a("s_mov_b64 exec, s[84:85]")
        a("s_mul_i32 s%d, s2, 7168" % sT0)
        a("v_cmp_gt_u32 vcc, 7168, v%d" % vT)
        a("s_and_saveexec_b64 s[84:85], vcc")
        a("s_cbranch_execz L_pf1")
        a("buffer_load_dword v%d, v%d, s[64:67], s%d offen" % (2, vT, sT0))
        a.label("L_pf1")
        a("s_mov_b64 exec, s[84:85]")
    gen_ujob(a, sW, sT0, sT1)
    a("s_waitcnt vmcnt(9)")
    a("s_barrier")
    stamp(1)
    for x in frag_reads(0, 0, False):
        a(x)
    a("s_cmp_eq_u32 s%d, 1" % sMode)
    a("s_cbranch_scc1 L_proj_m1")
    for mode in range(2):
        if mode:
            a.label("L_proj_m1")
        o = []
        body(o, mode, False, dmaB(False), dmaA(False), True, first=True)
        flush(o)
        a("s_mov_b32 s%d, 13" % sCnt)
        a.label("L_proj_loop%d" % mode)
        o = []
        body(o, mode, False, dmaB(False), dmaA(False), True)
        flush(o)
        a("s_sub_u32 s%d, s%d, 1" % (sCnt, sCnt))
        a("s_cmp_lg_u32 s%d, 0" % sCnt)
        a("s_cbranch_scc1 L_proj_loop%d" % mode)
        o = []
        body(o, mode, False, dmaB(False), dmaA(True, 0), True)
        body(o, mode, False, dmaB(True, 0), dmaA(True, 1) + dmaB(True, 1), True, nextq=True)
        flush(o)
        stamp(2)
        TBS = [68, 74, 122]
        vw, vrd, vo, vx = 88, 89, 90, 91
        RB = 106
        pre = []
        pre.append("s_and_b32 s%d, s%d, 1" % (sT0, sW))
        pre.append("s_lshr_b32 s%d, s%d, 1" % (sT1, sW))
        pre.append("s_lshl_b32 s%d, s%d, 7" % (sT0, sT0))
        pre.append("s_lshl_b32 s%d, s%d, 7" % (sT1, sT1))
        pre.append("s_add_u32 s%d, s%d, s%d" % (sT0, sT0, sMb))
        pre.append("s_add_u32 s%d, s%d, s%d" % (sT1, sT1, sNb))
        pre.append("s_add_u32 s%d, s%d, 147456" % (sSt, sMq))
        pre.append("v_and_b32 v%d, 7, v%d" % (vw, vL31))
        if mode == 1:
            pre.append("v_xor_b32 v%d, v%d, v%d" % (vw, vw, vHi))
        pre.append("v_lshlrev_b32 v%d, 4, v%d" % (vw, vw))
        pre.append("v_lshl_add_u32 v%d, v%d, 7, v%d" % (vw, vL31, vw))
        if mode == 0:
            pre.append("v_lshl_add_u32 v%d, v%d, 3, v%d" % (vw, vHi, vw))
        pre.append("v_add_u32 v%d, s%d, v%d" % (vw, sSt, vw))
        pre.append("v_lshrrev_b32 v%d, 3, v%d" % (vrd, vLane))
        pre.append("v_and_b32 v%d, 7, v%d" % (vo, vLane))
        pre.append("v_xor_b32 v%d, v%d, v%d" % (vx, vrd, vo))
        pre.append("v_lshlrev_b32 v%d, 4, v%d" % (vx, vx))
        pre.append("v_lshl_add_u32 v%d, v%d, 7, v%d" % (vx, vrd, vx))
        rs = 13 if mode == 0 else 12
        r0, c0 = (sT0, sT1) if mode == 0 else (sT1, sT0)
        pre.append("v_add_u32 v%d, s%d, v%d" % (vrd, r0, vrd))
        pre.append("v_lshlrev_b32 v%d, %d, v%d" % (vrd, rs, vrd))
        pre.append("v_lshl_add_u32 v%d, v%d, 4, v%d" % (vo, vo, vrd))
        pre.append("s_lshl_b32 s%d, s%d, 1" % (c0, c0))
        pre.append("v_add_u32 v%d, s%d, v%d" % (vo, c0, vo))
        pre.append("v_add_u32 v%d, s%d, v%d" % (vrd, sSt, vx))
        segs = [[] for _ in range(28)]
        segs[0].extend(pre)
        k = 0
        for rnd_ in range(8):
            r, c = rnd_ // 2, rnd_ % 2
            wr = []
            for u in range(8):
                o2, g = 2 * c + u // 4, u % 4
                mt, nt = (r, o2) if mode == 0 else (o2, r)
                t = TBS[k % 3]
                k += 1
                base = (mt * 4 + nt) * 16 + 4 * g
                for e in range(4):
                    wr.append("v_accvgpr_read_b32 v%d, a%d" % (t + e, base + e))
                wr.append("v_cvt_pk_bf16_f32 v%d, v%d, v%d" % (t + 4, t, t + 1))
                wr.append("v_cvt_pk_bf16_f32 v%d, v%d, v%d" % (t + 5, t + 2, t + 3))
                if mode == 0:
                    wr.append("v_xor_b32 v%d, %d, v%d" % (t, 16 * (4 * (nt & 1) + g), vw))
                    wr.append("ds_write_b64 v%d, %s" % (t, vr(t + 4, 2)))
                else:
                    wr.append("v_xor_b32 v%d, %d, v%d" % (t, 16 * (4 * (mt & 1) + 2 * (g >> 1)), vw))
                    wr.append("ds_write_b64 v%d, %s offset:%d" % (t, vr(t + 4, 2), 8 * (g & 1)))
            s0 = 1 + 3 * rnd_
            for i, x in enumerate(wr):
                segs[s0 + i * 2 // len(wr)].append(x)
            st = []
            for i in range(4):
                segs[s0 + 2].append("ds_read_b128 %s, v%d offset:%d" % (vr(RB + 4 * i, 4), vrd, i * 1024))
                st.append("s_mov_b32 s%d, %d" % (sCnt, ((32 * r + 8 * i) << rs) + 128 * c))
                st.append("buffer_store_dwordx4 %s, v%d, %s, s%d offen" % (vr(RB + 4 * i, 4), vo, sr(SO, 4), sCnt))
            segs[s0 + 3] = st + segs[s0 + 3]
        o = []
        for tl in range(7):
            h2 = dmaA(True, 2) if tl == 0 else (dmaB(True, tl + 2) if tl + 2 < 7 else [])
            hm = dmaB(True, 2) if tl == 0 else []
            h1 = dmaA(True, tl + 3) if tl + 3 < 7 else []
            body(o, mode, True, h2, h1, tl + 1 < 7, first=(tl == 0), extras=segs[4 * tl:4 * tl + 4], hm=hm, tile=tl)
        flush(o)
        stamp(3)
        stamp(4)
        a("s_barrier")
        a("s_nop 7")
        a("s_and_b32 s%d, s%d, 1" % (sT0, sW))
        a("s_lshr_b32 s%d, s%d, 1" % (sT1, sW))
        a("s_lshl_b32 s%d, s%d, 7" % (sT0, sT0))
        a("s_lshl_b32 s%d, s%d, 6" % (sT1, sT1))
        a("s_add_u32 s%d, s%d, s%d" % (sT0, sT0, sMb))
        a("s_add_u32 s%d, s%d, s%d" % (sT1, sT1, sNq))
        a("s_mul_i32 s%d, s%d, %d" % (sSt, sW, 128 * 144))
        a("v_mul_u32_u24 v%d, 144, v%d" % (vw, vL31))
        a("v_lshl_add_u32 v%d, v%d, 3, v%d" % (vw, vHi, vw))
        a("v_add_u32 v%d, s%d, v%d" % (vw, sSt, vw))
        a("v_lshrrev_b32 v%d, 3, v%d" % (vrd, vLane))
        a("v_mul_u32_u24 v%d, 144, v%d" % (vrd, vrd))
        a("v_and_b32 v%d, 7, v%d" % (vo, vLane))
        a("v_lshl_add_u32 v%d, v%d, 4, v%d" % (vrd, vo, vrd))
        a("v_add_u32 v%d, s%d, v%d" % (vrd, sSt, vrd))
        a("v_lshrrev_b32 v%d, 3, v%d" % (vx, vLane))
        a("v_add_u32 v%d, s%d, v%d" % (vx, sT0, vx))
        a("v_lshlrev_b32 v%d, 13, v%d" % (vx, vx))
        a("v_lshl_add_u32 v%d, v%d, 4, v%d" % (vo, vo, vx))
        a("s_lshl_b32 s%d, s%d, 1" % (sT1, sT1))
        a("v_add_u32 v%d, s%d, v%d" % (vo, sT1, vo))
        k = 0
        for mt in range(4):
            for nt in range(2):
                for g in range(4):
                    t = 2 * (k % 16)
                    k += 1
                    base = QACC + (mt * 2 + nt) * 16 + 4 * g
                    a("v_cvt_pk_bf16_f32 v%d, v%d, v%d" % (t, base, base + 1))
                    a("v_cvt_pk_bf16_f32 v%d, v%d, v%d" % (t + 1, base + 2, base + 3))
                    a("ds_write_b64 v%d, %s offset:%d" % (vw, vr(t, 2), mt * 32 * 144 + 64 * nt + 16 * g))
        a("s_waitcnt lgkmcnt(0)")
        for i in range(16):
            a("ds_read_b128 %s, v%d offset:%d" % (vr(QACC + 4 * i, 4), vrd, i * 8 * 144))
        for j in range(16):
            a("s_waitcnt lgkmcnt(%d)" % (15 - j))
            a("s_mov_b32 s%d, %d" % (sT0, (j * 8) << 13))
            a("buffer_store_dwordx4 %s, v%d, %s, s%d offen" % (vr(QACC + 4 * j, 4), vo, sr(SO2, 4), sT0))
        stamp(5)
        if os.environ.get("EXP_STAMP"):
            a("s_waitcnt vmcnt(0)")
            stamp(6)
            stamp(7)
            a("s_waitcnt lgkmcnt(0)")
            a("s_mov_b32 s62, s46")
            a("s_mov_b32 s63, s47")
            a("s_add_u32 s64, s42, 0x%x" % (200 * MB))
            a("s_addc_u32 s65, s43, 0")
            make_srd(a, 68, 64, 65, MB)
            for i in range(14):
                a("v_mov_b32 v%d, s%d" % (8 + i, 88 + i))
            for i in range(4):
                a("v_mov_b32 v%d, s%d" % (24 + i, 60 + i))
            a("s_lshl_b32 s66, s2, 7")
            a("v_mov_b32 v40, 0")
            a("s_nop 4")
            for i in range(5):
                a("buffer_store_dwordx4 v[%d:%d], v40, s[68:71], s66 offen offset:%d" % (8 + 4 * i, 11 + 4 * i, 16 * i))
        tl_end(a, 201)
        a("s_endpgm")
    a.label("L_proj_end")
    a("s_endpgm")
    return kernel_desc(name, 512, 256)


LOG2E = 1.4426950408889634
PART2_ROWS = 768
WS_PART2 = WS_PART + 16 * PART_SZ
PART_TOTAL = 16 * PART_SZ + 16 * PART2_ROWS * 1792
RESC_T = 8.0


def cost(x):
    if x.startswith("v_exp") or x.startswith("v_rcp"):
        return 8
    if x.startswith("buffer_load"):
        return 12
    if x.startswith("s_nop"):
        return 4 * (int(x.split()[1]) + 1)
    return 4


def spread(fills, nslots, budget):
    out = {}
    slot = 0
    acc = 0
    for x in fills:
        if isinstance(x, list):
            c = sum(cost(y) for y in x)
        else:
            c = cost(x)
        if acc + c > budget and acc > 0 and slot < nslots - 1:
            slot += 1
            acc = 0
        out.setdefault(slot, []).extend(x if isinstance(x, list) else [x])
        acc += c
    return out


def gen_attn(a):
    name = "attn_kernel"
    kernel_begin(a, name)
    tl_begin(a)
    SQ, SK, SV, SWO, SP, SML = 4, 8, 12, 16, 20, 56
    sW, sH, sQb, sCnt, sKo, sVo, sT0, sT1, sMK, sC = 24, 25, 26, 27, 28, 29, 30, 31, 32, 34
    sStart, sNp, sPart, sItem2, sPoff, sWoff, sThr = 35, 36, 37, 38, 39, 48, 49
    sCmp = 40
    a("s_cmp_ge_u32 s2, 256")
    a("s_cbranch_scc1 L_attn_conv")
    a("s_load_dwordx2 s[50:51], s[0:1], %d" % KA['ws'])
    a("s_load_dwordx2 s[52:53], s[0:1], %d" % KA['dbg'])
    a("v_lshrrev_b32 v1, 6, v0")
    a("v_and_b32 v0, 63, v0")
    a("s_nop 0")
    a("v_readfirstlane_b32 s%d, v1" % sW)
    a("s_and_b32 s%d, s2, 7" % sT0)
    a("s_lshl_b32 s%d, s%d, 1" % (sT0, sT0))
    a("s_bfe_u32 s%d, s2, 0x10003" % sT1)
    a("s_add_u32 s%d, s%d, s%d" % (sH, sT0, sT1))
    a("s_lshr_b32 s%d, s2, 4" % sT0)
    a("s_waitcnt lgkmcnt(0)")
    make_srd(a, SQ, 50, 51, 16 * MB)
    a("s_add_u32 s54, s50, 0x%x" % WS_K)
    a("s_addc_u32 s55, s51, 0")
    make_srd(a, SK, 54, 55, 16 * MB)
    a("s_add_u32 s54, s50, 0x%x" % WS_VT)
    a("s_addc_u32 s55, s51, 0")
    make_srd(a, SV, 54, 55, 16 * MB)
    make_srd(a, SWO, 52, 53, 256)
    a("s_add_u32 s54, s50, 0x%x" % WS_PART)
    a("s_addc_u32 s55, s51, 0")
    make_srd(a, SP, 54, 55, 32 * MB)
    a("s_add_u32 s54, s50, 0x%x" % WS_ML)
    a("s_addc_u32 s55, s51, 0")
    make_srd(a, SML, 54, 55, 2 * 16 * 2048 * 8)
    a("s_mov_b32 s%d, 0x%08x" % (sC, f32bits(LOG2E / 16.0)))
    a("s_mov_b32 s%d, 0x%08x" % (sThr, f32bits(RESC_T * 16.0 / LOG2E)))
    a("s_mov_b32 s%d, -1" % sItem2)
    a("s_mov_b32 s%d, 0" % sStart)
    a("s_mov_b32 s%d, 0" % sPart)
    a("s_cmp_ge_u32 s%d, 7" % sT0)
    a("s_cbranch_scc1 L_attn_r6")
    a("s_mov_b32 s%d, s%d" % (sItem2, sT0))
    a("s_sub_u32 s%d, 15, s%d" % (sQb, sItem2))
    a("s_mov_b32 s%d, 18" % sStart)
    a("s_sub_u32 s%d, 6, s%d" % (sNp, sItem2))
    a("s_mov_b32 s%d, 1" % sPart)
    a("s_branch L_attn_item")
    a.label("L_attn_r6")
    a("s_cmp_ge_u32 s%d, 14" % sT0)
    a("s_cbranch_scc1 L_attn_r12")
    a("s_sub_u32 s%d, 22, s%d" % (sQb, sT0))
    a("s_mov_b32 s%d, 8" % sNp)
    a("s_branch L_attn_item")
    a.label("L_attn_r12")
    a("s_sub_u32 s%d, 22, s%d" % (sQb, sT0))
    a("s_mov_b32 s%d, s%d" % (sNp, sQb))

    O, S0, S1, P, T = 0, 128, 160, 192, 208
    vm, vl, vq, vNeg = 220, 221, 222, 223
    vKR, vVR, vOK, vOV = 224, 232, 236, 244
    vLane, vHi, vL31, vmc = 252, 253, 254, 255
    QA, RING = 0, 64
    Sx = [S0, S1]
    t = T
    a.label("L_attn_item")
    def stamp(i):
        if os.environ.get("EXP_STAMP2"):
            a("s_memtime s[%d:%d]" % (64 + 2 * i, 65 + 2 * i))
    stamp(0)
    a("v_mbcnt_lo_u32_b32 v%d, -1, 0" % vLane)
    a("v_mbcnt_hi_u32_b32 v%d, -1, v%d" % (vLane, vLane))
    a("v_lshrrev_b32 v%d, 5, v%d" % (vHi, vLane))
    a("v_and_b32 v%d, 31, v%d" % (vL31, vLane))
    a("s_lshl_b32 s%d, s%d, 7" % (sT0, sQb))
    a("s_lshl_b32 s%d, s%d, 5" % (sT1, sW))
    a("s_add_u32 s%d, s%d, s%d" % (sT0, sT0, sT1))
    a("v_add_u32 v%d, s%d, v%d" % (t, sT0, vL31))
    a("v_lshlrev_b32 v%d, 13, v%d" % (t, t))
    a("v_lshl_add_u32 v%d, v%d, 4, v%d" % (t, vHi, t))
    a("s_lshl_b32 s%d, s%d, 9" % (sT1, sH))
    for j in range(16):
        a("buffer_load_dwordx4 %s, v%d, %s, s%d offen offset:%d" % (ar(QA + 4 * j, 4), t, sr(SQ, 4), sT1, 32 * j))
    a("s_lshl_b32 s%d, s%d, 1" % (sT0, sNp))
    a("s_add_u32 s%d, s%d, s%d" % (sT0, sT0, sStart))
    a("s_lshl_b32 s%d, s%d, 1" % (sT1, sQb))
    a("s_sub_u32 s%d, s%d, s%d" % (sT0, sT1, sT0))
    a("s_lshl_b32 s%d, s%d, 6" % (sT0, sT0))
    a("s_lshl_b32 s%d, s%d, 5" % (sT1, sW))
    a("s_add_u32 s%d, s%d, s%d" % (sT0, sT0, sT1))
    a("v_add_u32 v%d, s%d, v%d" % (vq, sT0, vL31))
    a("v_lshlrev_b32 v%d, 2, v%d" % (t + 1, vHi))
    a("v_sub_u32 v%d, v%d, v%d" % (vq, vq, t + 1))
    a("v_mov_b32 v%d, 0x%08x" % (vNeg, f32bits(-1.6e10)))
    a("v_mov_b32 v%d, 0x%08x" % (vm, f32bits(-1e30)))
    a("v_mov_b32 v%d, 0" % vl)
    a("v_mov_b32 v%d, 0" % vmc)
    a("s_lshl_b32 s%d, s%d, 4" % (sT0, sW))
    a("s_lshl_b32 s%d, s%d, 9" % (sT1, sH))
    for n in range(8):
        a("v_add_u32 v%d, %d, v%d" % (t, 2 * n, vHi))
        a("v_xor_b32 v%d, v%d, v%d" % (t + 1, t, vL31))
        a("v_add_u32 v%d, s%d, v%d" % (t, sT0, t))
        a("v_lshlrev_b32 v%d, 13, v%d" % (t, t))
        a("v_lshl_add_u32 v%d, v%d, 4, v%d" % (t, t + 1, t))
        a("v_add_u32 v%d, s%d, v%d" % (vOK + n, sT1, t))
    a("s_lshl_b32 s%d, s%d, 8" % (sT0, sH))
    a("s_lshl_b32 s%d, s%d, 6" % (sT1, sW))
    a("s_add_u32 s%d, s%d, s%d" % (sT0, sT0, sT1))
    a("v_lshrrev_b32 v%d, 3, v%d" % (t, vLane))
    a("v_add_u32 v%d, s%d, v%d" % (t, sT0, t))
    a("v_lshlrev_b32 v%d, 12, v%d" % (t, t))
    a("v_and_b32 v%d, 7, v%d" % (t + 1, vLane))
    a("v_lshrrev_b32 v%d, 4, v%d" % (t + 2, vLane))
    a("v_xor_b32 v%d, v%d, v%d" % (t + 1, t + 1, t + 2))
    a("v_xor_b32 v%d, 4, v%d" % (t + 2, t + 1))
    a("v_lshlrev_b32 v%d, 4, v%d" % (t + 1, t + 1))
    a("v_lshlrev_b32 v%d, 4, v%d" % (t + 2, t + 2))
    for n in range(8):
        a("v_add_u32 v%d, v%d, v%d" % (vOV + n, t, t + 1 + (n & 1)))
        if n < 7:
            a("v_add_u32 v%d, 0x8000, v%d" % (t, t))
    a("v_and_b32 v%d, 15, v%d" % (t, vLane))
    a("v_xor_b32 v%d, v%d, v%d" % (t, t, vHi))
    a("v_lshlrev_b32 v%d, 9, v%d" % (t + 1, vL31))
    for j in range(8):
        a("v_xor_b32 v%d, %d, v%d" % (t + 2, 2 * j, t))
        a("v_lshl_add_u32 v%d, v%d, 4, v%d" % (vKR + j, t + 2, t + 1))
    a("v_bfe_u32 v%d, v%d, 1, 3" % (t, vLane))
    a("v_xor_b32 v%d, v%d, v%d" % (t, t, vHi))
    a("v_lshlrev_b32 v%d, 7, v%d" % (t + 1, vL31))
    a("v_add_u32 v%d, 0x10000, v%d" % (t + 1, t + 1))
    for kk in range(4):
        a("v_xor_b32 v%d, %d, v%d" % (t + 2, 2 * kk, t))
        a("v_lshl_add_u32 v%d, v%d, 4, v%d" % (vVR + kk, t + 2, t + 1))
    a("s_lshl_b32 s%d, s%d, 13" % (sMK, sW))
    a("s_lshl_b32 s%d, s%d, 19" % (sKo, sStart))
    a("s_lshl_b32 s%d, s%d, 7" % (sVo, sStart))

    def dmaK(buf):
        l = []
        for n in range(8):
            l.append(["s_add_u32 m0, s%d, %d" % (sMK, buf * 32768 + n * 1024),
                      "buffer_load_dwordx4 v%d, %s, s%d offen lds" % (vOK + n, sr(SK, 4), sKo)])
        l.append("s_add_u32 s%d, s%d, 0x80000" % (sKo, sKo))
        return l

    def dmaV(buf):
        l = []
        for n in range(8):
            l.append(["s_add_u32 m0, s%d, %d" % (sMK, 65536 + buf * 32768 + n * 1024),
                      "buffer_load_dwordx4 v%d, %s, s%d offen lds" % (vOV + n, sr(SV, 4), sVo)])
        l.append("s_add_u32 s%d, s%d, 128" % (sVo, sVo))
        return l

    def flat(l):
        o = []
        for x in l:
            o.extend(x if isinstance(x, list) else [x])
        return o

    def qk_items(buf, sset):
        it = []
        for jd in range(16):
            for kt in range(2):
                rd = "ds_read_b128 %%s, v%d offset:%d" % (vKR + (jd & 7), buf * 32768 + kt * 16384 + (jd >> 3) * 256)
                acc = vr(Sx[sset] + 16 * kt, 16)
                mf = "v_mfma_f32_32x32x16_bf16 %s, %%s, %s, %s" % (acc, ar(QA + 4 * jd, 4), "0" if jd == 0 else acc)
                it.append((rd, mf))
        return it

    def pv_items(buf):
        it = []
        for kk in range(4):
            for dt in range(8):
                rd = "ds_read_b128 %%s, v%d offset:%d" % (vVR + kk, buf * 32768 + dt * 4096)
                acc = vr(O + 16 * dt, 16)
                mf = "v_mfma_f32_32x32x16_bf16 %s, %%s, %s, %s" % (acc, vr(P + 4 * kk, 4), acc)
                it.append((rd, mf))
        return it

    D = 6
    uid = [0]
    rare = []

    def sm_max(sset, masked, tblk):
        S = Sx[sset]
        l = []
        if masked:
            idx = []
            for kt in range(2):
                for g in range(4):
                    for e in range(4):
                        idx.append((S + 16 * kt + 4 * g + e, 32 * kt + 8 * g + e + 64 * tblk))
            for i, (r, cst) in enumerate(idx):
                if cst <= 64:
                    l.append("v_cmp_gt_i32 %s, %d, v%d" % (sr(sCmp + 2 * (i % 4), 2), cst, vq))
                else:
                    l.append(["s_mov_b32 s%d, %d" % (sT0, cst),
                              "v_cmp_gt_i32 %s, s%d, v%d" % (sr(sCmp + 2 * (i % 4), 2), sT0, vq)])
                if i >= 3:
                    r2 = idx[i - 3][0]
                    l.append("v_cndmask_b32 v%d, v%d, v%d, %s" % (r2, r2, vNeg, sr(sCmp + 2 * ((i - 3) % 4), 2)))
            l.append("s_nop 1")
            for i in range(len(idx) - 3, len(idx)):
                r2 = idx[i][0]
                l.append("v_cndmask_b32 v%d, v%d, v%d, %s" % (r2, r2, vNeg, sr(sCmp + 2 * (i % 4), 2)))
        for c in range(4):
            b = S + 8 * c
            l.append("v_max3_f32 v%d, v%d, v%d, v%d" % (T + c, b, b + 1, b + 2))
        for c in range(4):
            b = S + 8 * c
            l.append("v_max3_f32 v%d, v%d, v%d, v%d" % (T + c, T + c, b + 3, b + 4))
        for c in range(4):
            b = S + 8 * c
            l.append("v_max3_f32 v%d, v%d, v%d, v%d" % (T + c, T + c, b + 5, b + 6))
        l.append("v_max3_f32 v%d, v%d, v%d, v%d" % (T, T, S + 7, S + 15))
        l.append("v_max3_f32 v%d, v%d, v%d, v%d" % (T + 2, T + 2, S + 23, S + 31))
        l.append("v_max3_f32 v%d, v%d, v%d, v%d" % (T, T, T + 1, T + 3))
        l.append("v_max_f32 v%d, v%d, v%d" % (T, T, T + 2))
        uid[0] += 1
        lab = "L_attn_rs%d" % uid[0]
        l.append(["v_mov_b32 v%d, v%d" % (T + 1, T), "s_nop 1", "v_permlane32_swap_b32 v%d, v%d" % (T, T + 1),
                  "v_max_f32 v%d, v%d, v%d" % (T, T, T + 1),
                  "v_sub_f32 v%d, v%d, v%d" % (T + 1, T, vm),
                  "v_cmp_lt_f32 vcc, s%d, v%d" % (sThr, T + 1), "s_nop 4",
                  "s_cbranch_vccnz %s" % lab, "LABEL " + lab + "_ret"])
        r = ["LABEL " + lab,
             "v_max_f32 v%d, v%d, v%d" % (T, T, vm),
             "v_sub_f32 v%d, v%d, v%d" % (T + 1, vm, T),
             "v_mul_f32 v%d, s%d, v%d" % (T + 1, sC, T + 1),
             "v_exp_f32 v%d, v%d" % (T + 1, T + 1),
             "v_mov_b32 v%d, v%d" % (vm, T),
             "v_mul_f32 v%d, s%d, v%d" % (vmc, sC, T),
             "v_mul_f32 v%d, v%d, v%d" % (vl, vl, T + 1)]
        for i in range(128):
            r.append("v_mul_f32 v%d, v%d, v%d" % (O + i, O + i, T + 1))
        r.append("s_branch " + lab + "_ret")
        rare.extend(r)
        return l

    def sm_grp(sset, kk):
        S = Sx[sset] + 8 * kk
        l = []
        for i in range(8):
            l.append("v_fma_f32 v%d, v%d, s%d, -v%d" % (S + i, S + i, sC, vmc))
        for i in range(8):
            l.append("v_exp_f32 v%d, v%d" % (S + i, S + i))
        l.append("v_add_f32 v%d, v%d, v%d" % (T + 4, S, S + 1))
        l.append("v_add_f32 v%d, v%d, v%d" % (T + 5, S + 2, S + 3))
        l.append("v_cvt_pk_bf16_f32 v%d, v%d, v%d" % (P + 4 * kk, S, S + 1))
        l.append("v_cvt_pk_bf16_f32 v%d, v%d, v%d" % (P + 4 * kk + 1, S + 2, S + 3))
        l.append("v_add_f32 v%d, v%d, v%d" % (T + 4, T + 4, S + 4))
        l.append("v_add_f32 v%d, v%d, v%d" % (T + 5, T + 5, S + 5))
        l.append("v_cvt_pk_bf16_f32 v%d, v%d, v%d" % (P + 4 * kk + 2, S + 4, S + 5))
        l.append("v_add_f32 v%d, v%d, v%d" % (T + 4, T + 4, S + 6))
        l.append("v_add_f32 v%d, v%d, v%d" % (T + 5, T + 5, S + 7))
        l.append("v_cvt_pk_bf16_f32 v%d, v%d, v%d" % (P + 4 * kk + 3, S + 6, S + 7))
        l.append("v_add_f32 v%d, v%d, v%d" % (vl, vl, T + 4))
        l.append("v_add_f32 v%d, v%d, v%d" % (vl, vl, T + 5))
        return l

    def emit(x):
        if x.startswith("LABEL "):
            a.label(x[6:])
        else:
            a(x)

    def run_stream(items, fills, pre=None):
        n = len(items)
        for i in range(min(D, n)):
            a(items[i][0] % ar(RING + 4 * (i % 8), 4))
        for x in (pre or []):
            emit(x)
        for i in range(n):
            a("s_waitcnt lgkmcnt(%d)" % min(D - 1, n - 1 - i))
            a(items[i][1] % ar(RING + 4 * (i % 8), 4))
            if i + D < n:
                a(items[i + D][0] % ar(RING + 4 * ((i + D) % 8), 4))
            for x in fills.get(i, []):
                emit(x)

    BUD = int(os.environ.get("ATT_BUD", "18"))

    def iteration(par, masked, tblk, dK, dV, doqk, novm=False):
        a("s_waitcnt vmcnt(%d)" % (17 if novm else 0))
        if not os.environ.get("EXP_A_NOBAR"):
            a("s_barrier")
        dma = (dmaK(par) if dK else []) + (dmaV(par ^ 1) if dV else [])
        if os.environ.get("EXP_A_NODMA"):
            dma = []
        if doqk:
            items = qk_items(par ^ 1, par ^ 1) + pv_items(par)
            seq = sm_max(par, masked, tblk) + sm_grp(par, 0) + sm_grp(par, 1) + sm_grp(par, 2) + sm_grp(par, 3)
            if os.environ.get("EXP_A_NOSM"):
                seq = [x for x in seq if not isinstance(x, list) and x.startswith("v_cvt_pk")]
            if dma:
                nfirst = len(sm_max.__name__) * 0 + 40
                merged = []
                di = 0
                for i, x in enumerate(seq):
                    while di < len(dma) and di * nfirst <= i * len(dma):
                        merged.append(dma[di]); di += 1
                    merged.append(x)
                merged.extend(dma[di:])
                seq = merged
            bud = BUD
            while True:
                fl = spread(seq, 64, bud)
                ok = True
                for kk in range(4):
                    last = "v_cvt_pk_bf16_f32 v%d," % (P + 4 * kk + 3)
                    sl = [sidx for sidx, v in fl.items() if any(y.startswith(last) for y in v)][0]
                    if sl > 32 + 8 * kk - 2:
                        ok = False
                if ok:
                    break
                bud += 2
            run_stream(items, fl)
        else:
            items = pv_items(par)
            pre = flat(dma + sm_max(par, masked, tblk) + sm_grp(par, 0)) + ["s_nop 1"]
            seq = sm_grp(par, 1) + sm_grp(par, 2) + sm_grp(par, 3)
            fl = spread(seq, 32, 28)
            for kk in range(1, 4):
                last = "v_cvt_pk_bf16_f32 v%d," % (P + 4 * kk + 3)
                sl = [sidx for sidx, v in fl.items() if any(y.startswith(last) for y in v)][0]
                assert sl <= 8 * kk - 2, (kk, sl)
            run_stream(items, fl, pre)

    for x in flat(dmaK(0) + dmaV(0) + dmaK(1)):
        a(x)
    for i in range(128):
        a("v_mov_b32 v%d, 0" % (O + i))
    a("s_waitcnt vmcnt(16)")
    a("s_cmp_lt_i32 s%d, 0" % sItem2)
    a("s_cbranch_scc1 L_attn_go")
    a("s_lshl_b32 s%d, s%d, 7" % (sT0, sItem2))
    a("s_lshl_b32 s%d, s%d, 5" % (sT1, sW))
    a("s_add_u32 s%d, s%d, s%d" % (sT0, sT0, sT1))
    a("v_add_u32 v%d, s%d, v%d" % (t, sT0, vL31))
    a("v_lshlrev_b32 v%d, 13, v%d" % (t, t))
    a("v_lshl_add_u32 v%d, v%d, 4, v%d" % (t, vHi, t))
    a("s_lshl_b32 s%d, s%d, 9" % (sT1, sH))
    for j in range(16):
        a("buffer_load_dwordx4 %s, v%d, %s, s%d offen offset:%d" % (ar(96 + 4 * j, 4), t, sr(SQ, 4), sT1, 32 * j))
    a.label("L_attn_go")
    a("s_barrier")
    stamp(1)
    run_stream(qk_items(0, 0), {})
    a("s_nop 15")
    stamp(2)
    a("s_mov_b32 s%d, s%d" % (sCnt, sNp))
    a("s_cmp_eq_u32 s%d, 0" % sCnt)
    a("s_cbranch_scc1 L_attn_tail")
    a.label("L_attn_loop")
    iteration(0, False, 0, True, True, True)
    iteration(1, False, 0, True, True, True)
    a("s_sub_u32 s%d, s%d, 1" % (sCnt, sCnt))
    a("s_cmp_lg_u32 s%d, 0" % sCnt)
    a("s_cbranch_scc1 L_attn_loop")
    a.label("L_attn_tail")
    stamp(3)
    sTk, sPi, sSlot, sMg = 60, 61, 62, 63
    OA = 96
    a("s_mul_i32 s%d, s%d, 7" % (sPi, sH))
    a("s_add_u32 s%d, s%d, 15" % (sPi, sPi))
    a("s_sub_u32 s%d, s%d, s%d" % (sPi, sPi, sQb))
    a("s_mov_b32 s%d, s%d" % (sMg, sPart))
    a("s_cmp_lt_u32 s%d, 9" % sQb)
    a("s_cbranch_scc1 L_attn_t0")
    a("s_cmp_eq_u32 s%d, 1" % sPart)
    a("s_cbranch_scc1 L_attn_t0")
    a("s_mov_b32 s%d, 2" % sMg)
    a("s_lshr_b32 s%d, s%d, 5" % (sT1, sPi))
    a("s_lshl_b32 s%d, s%d, 2" % (sT1, sT1))
    a("v_mov_b32 v%d, 0" % (T + 11))
    a("buffer_load_dword v%d, v%d, %s, s%d offen sc1" % (T + 10, T + 11, sr(SWO, 4), sT1))
    a.label("L_attn_t0")
    a("s_mov_b32 s%d, 0" % sKo)
    iteration(0, True, 0, True, True, True)
    a("s_mov_b32 s%d, 0" % sVo)

    def pub_base():
        a("s_mul_i32 s%d, s%d, 69632" % (sT0, sPi))
        a("s_add_u32 s%d, s%d, 0x1000000" % (sT0, sT0))
        a("s_lshl_b32 s%d, s%d, 8" % (sT1, sW))
        a("s_add_u32 s%d, s%d, s%d" % (sT1, sT1, sT0))
        a("s_add_u32 s%d, s%d, 65536" % (sT1, sT1))
        a("s_lshl_b32 s%d, s%d, 14" % (sTk, sW))
        a("s_add_u32 s%d, s%d, s%d" % (sT0, sT0, sTk))
        a("v_lshlrev_b32 v%d, 4, v%d" % (T + 10, vLane))
        a("v_lshlrev_b32 v%d, 3, v%d" % (T + 11, vL31))

    def other_loads():
        pub_base()
        a("buffer_load_dwordx2 %s, v%d, %s, s%d offen sc1" % (ar(OA + 64, 2), T + 11, sr(SP, 4), sT1))
        for k in range(16):
            if k and k % 4 == 0:
                a("s_add_u32 s%d, s%d, 4096" % (sT0, sT0))
            a("buffer_load_dwordx4 %s, v%d, %s, s%d offen offset:%d sc1" % (ar(OA + 4 * k, 4), T + 10, sr(SP, 4), sT0, 1024 * (k % 4)))
    a("s_waitcnt vmcnt(0)")
    a("s_cmp_lg_u32 s%d, 2" % sMg)
    a("s_cbranch_scc1 L_attn_t1")
    a("v_readfirstlane_b32 s%d, v%d" % (sT0, T + 10))
    a("s_and_b32 s%d, s%d, 31" % (sT1, sPi))
    a("s_lshr_b32 s%d, s%d, s%d" % (sT0, sT0, sT1))
    a("s_and_b32 s%d, s%d, 1" % (sT0, sT0))
    a("s_cbranch_scc0 L_attn_t1")
    a("s_mov_b32 s%d, 3" % sMg)
    other_loads()
    a.label("L_attn_t1")
    iteration(1, True, 1, True, True, False, novm=True)
    stamp(4)

    a("s_nop 15")
    a("v_mov_b32 v%d, v%d" % (T, vl))
    a("s_nop 1")
    a("v_permlane32_swap_b32 v%d, v%d" % (T, vl))
    a("v_add_f32 v%d, v%d, v%d" % (T + 1, T, vl))
    a("v_rcp_f32 v%d, v%d" % (T + 2, T + 1))
    a("v_mov_b32 v%d, v%d" % (T, vmc))
    a("s_mov_b32 s%d, s%d" % (sSlot, sPart))
    a("s_cmp_eq_u32 s%d, 0" % sMg)
    a("s_cbranch_scc1 L_attn_store")
    a("s_cmp_eq_u32 s%d, 1" % sMg)
    a("s_cbranch_scc1 L_attn_first")
    a("s_cmp_eq_u32 s%d, 3" % sMg)
    a("s_cbranch_scc1 L_attn_merge")
    a("s_lshr_b32 s%d, s%d, 5" % (sT1, sPi))
    a("s_lshl_b32 s%d, s%d, 2" % (sT1, sT1))
    a("s_and_b32 s%d, s%d, 31" % (sT0, sPi))
    a("v_mov_b32 v%d, 0" % (T + 11))
    a.label("L_attn_poll")
    a("buffer_load_dword v%d, v%d, %s, s%d offen sc1" % (T + 10, T + 11, sr(SWO, 4), sT1))
    a("s_waitcnt vmcnt(0)")
    a("v_readfirstlane_b32 s%d, v%d" % (sTk, T + 10))
    a("s_nop 3")
    a("s_lshr_b32 s%d, s%d, s%d" % (sTk, sTk, sT0))
    a("s_and_b32 s%d, s%d, 1" % (sTk, sTk))
    a("s_cbranch_scc1 L_attn_pl1")
    a("s_sleep 4")
    a("s_branch L_attn_poll")
    a.label("L_attn_pl1")
    other_loads()
    a.label("L_attn_merge")
    a("s_waitcnt vmcnt(0)")
    a("v_accvgpr_read_b32 v%d, a%d" % (T + 6, OA + 64))
    a("v_accvgpr_read_b32 v%d, a%d" % (T + 7, OA + 65))
    a("v_max_f32 v%d, v%d, v%d" % (T + 8, T, T + 6))
    a("v_sub_f32 v%d, v%d, v%d" % (T + 9, T, T + 8))
    a("v_sub_f32 v%d, v%d, v%d" % (T + 10, T + 6, T + 8))
    a("v_exp_f32 v%d, v%d" % (T + 9, T + 9))
    a("v_exp_f32 v%d, v%d" % (T + 10, T + 10))
    a("s_nop 0")
    a("v_mul_f32 v%d, v%d, v%d" % (T + 10, T + 10, T + 7))
    a("v_fma_f32 v%d, v%d, v%d, v%d" % (T + 8, T + 9, T + 1, T + 10))
    a("v_rcp_f32 v%d, v%d" % (T + 8, T + 8))
    a("s_nop 0")
    a("v_mul_f32 v%d, v%d, v%d" % (T + 9, T + 9, T + 8))
    a("v_mul_f32 v%d, v%d, v%d" % (T + 10, T + 10, T + 8))
    a("v_mov_b32 v%d, 1.0" % (T + 2))
    for i in range(64):
        a("v_accvgpr_read_b32 v%d, a%d" % (S0 + i, OA + i))
    for i in range(128):
        a("v_mul_f32 v%d, v%d, v%d" % (O + i, O + i, T + 9))
    for k4 in range(0, 64, 4):
        for d in range(4):
            a("v_lshlrev_b32 v%d, 16, v%d" % (P + 2 * d, S0 + k4 + d))
            a("v_and_b32 v%d, 0xffff0000, v%d" % (P + 2 * d + 1, S0 + k4 + d))
        for d in range(8):
            o = O + 2 * k4 + d
            a("v_fma_f32 v%d, v%d, v%d, v%d" % (o, P + d, T + 10, o))
    a("s_branch L_attn_store")
    a.label("L_attn_first")
    pub_base()
    a("buffer_store_dwordx2 %s, v%d, %s, s%d offen sc1" % (vr(T, 2), T + 11, sr(SP, 4), sT1))
    for k in range(16):
        if k and k % 4 == 0:
            a("s_add_u32 s%d, s%d, 4096" % (sT0, sT0))
        for j in range(8):
            a("v_mul_f32 v%d, v%d, v%d" % (O + 8 * k + j, O + 8 * k + j, T + 2))
        for j in range(4):
            a("v_cvt_pk_bf16_f32 v%d, v%d, v%d" % (S0 + 4 * k + j, O + 8 * k + 2 * j, O + 8 * k + 2 * j + 1))
        a("buffer_store_dwordx4 %s, v%d, %s, s%d offen offset:%d" % (vr(S0 + 4 * k, 4), T + 10, sr(SP, 4), sT0, 1024 * (k % 4)))
    a("s_branch L_attn_stored")
    a.label("L_attn_store")
    stamp(5)
    vTw, vTr, vPo = T + 4, T + 5, T + 6
    a("s_lshl_b32 s%d, s%d, 13" % (sT0, sW))
    a("s_add_u32 s%d, s%d, 0x20000" % (sT0, sT0))
    a("v_lshlrev_b32 v%d, 8, v%d" % (vTw, vL31))
    a("v_lshl_add_u32 v%d, v%d, 3, v%d" % (vTw, vHi, vTw))
    a("v_add_u32 v%d, s%d, v%d" % (vTw, sT0, vTw))
    a("v_and_b32 v%d, 15, v%d" % (T + 7, vL31))
    a("v_lshlrev_b32 v%d, 4, v%d" % (T + 7, T + 7))
    a("v_lshrrev_b32 v%d, 4, v%d" % (vTr, vLane))
    a("v_and_b32 v%d, 15, v%d" % (vPo, vLane))
    a("s_lshl_b32 s%d, s%d, 7" % (sT1, sQb))
    a("s_lshl_b32 s%d, s%d, 5" % (sPoff, sW))
    a("s_add_u32 s%d, s%d, s%d" % (sT1, sT1, sPoff))
    a("s_lshl_b32 s%d, s%d, 13" % (sT1, sT1))
    a("s_lshl_b32 s%d, s%d, 9" % (sPoff, sH))
    a("s_add_u32 s%d, s%d, s%d" % (sT1, sT1, sPoff))
    a("s_lshl_b32 s%d, s%d, 24" % (sPoff, sSlot))
    a("s_add_u32 s%d, s%d, s%d" % (sPoff, sPoff, sT1))
    a("v_lshlrev_b32 v%d, 13, v%d" % (T + 8, vTr))
    a("v_lshl_add_u32 v%d, v%d, 4, v%d" % (T + 8, vPo, T + 8))
    for hf in range(2):
        k = 0
        for dt in range(4):
            for g in range(4):
                r = O + 16 * (4 * hf + dt) + 4 * g
                c = P + 2 * (k % 8)
                k += 1
                for e in range(4):
                    a("v_mul_f32 v%d, v%d, v%d" % (r + e, r + e, T + 2))
                a("v_cvt_pk_bf16_f32 v%d, v%d, v%d" % (c, r, r + 1))
                a("v_cvt_pk_bf16_f32 v%d, v%d, v%d" % (c + 1, r + 2, r + 3))
                a("v_xor_b32 v%d, %d, v%d" % (T + 9, 16 * (4 * dt + g), T + 7))
                a("v_add_u32 v%d, v%d, v%d" % (T + 9, T + 9, vTw))
                a("ds_write_b64 v%d, %s" % (T + 9, vr(c, 2)))
        a("s_waitcnt lgkmcnt(0)")
        for i in range(8):
            a("v_add_u32 v%d, %d, v%d" % (T + 9, 4 * i, vTr))
            a("v_and_b32 v%d, 15, v%d" % (T + 10, T + 9))
            a("v_xor_b32 v%d, v%d, v%d" % (T + 10, T + 10, vPo))
            a("v_lshlrev_b32 v%d, 8, v%d" % (T + 9, T + 9))
            a("v_lshl_add_u32 v%d, v%d, 4, v%d" % (T + 9, T + 10, T + 9))
            a("v_add_u32 v%d, s%d, v%d" % (T + 9, sT0, T + 9))
            a("ds_read_b128 %s, v%d" % (vr(S0 + 4 * i, 4), T + 9))
        for i in range(8):
            a("s_waitcnt lgkmcnt(%d)" % (7 - i))
            a("s_add_u32 s%d, s%d, %d" % (sT1, sPoff, i * 4 * 8192 + hf * 256))
            a("buffer_store_dwordx4 %s, v%d, %s, s%d offen" % (vr(S0 + 4 * i, 4), T + 8, sr(SP, 4), sT1))
    a.label("L_attn_stored")
    a("s_cmp_lg_u32 s%d, 1" % sMg)
    a("s_cbranch_scc1 L_attn_nopub")
    a("s_waitcnt vmcnt(0)")
    a("s_barrier")
    a("s_cmp_lg_u32 s%d, 0" % sW)
    a("s_cbranch_scc1 L_attn_nopub")
    a("s_and_b32 s%d, s%d, 31" % (sT0, sPi))
    a("s_lshl_b32 s%d, 1, s%d" % (sT0, sT0))
    a("v_mov_b32 v%d, s%d" % (T + 4, sT0))
    a("v_mov_b32 v%d, 0" % (T + 3))
    a("s_lshr_b32 s%d, s%d, 5" % (sT1, sPi))
    a("s_lshl_b32 s%d, s%d, 2" % (sT1, sT1))
    a("s_mov_b64 s[46:47], exec")
    a("s_mov_b64 exec, 1")
    a("buffer_atomic_or v%d, v%d, %s, s%d offen" % (T + 4, T + 3, sr(SWO, 4), sT1))
    a("s_mov_b64 exec, s[46:47]")
    a.label("L_attn_nopub")
    stamp(6)
    stamp(7)
    if os.environ.get("EXP_STAMP2"):
        a("s_waitcnt vmcnt(0)")
        a("s_memtime s[80:81]")
        a("s_memrealtime s[82:83]")
        a("s_waitcnt lgkmcnt(0)")
        a("s_add_u32 s84, s50, 0x%x" % (200 * MB))
        a("s_addc_u32 s85, s51, 0")
        make_srd(a, 88, 84, 85, MB)
        for i in range(20):
            a("v_mov_b32 v%d, s%d" % (8 + i, 64 + i))
        a("s_lshl_b32 s86, s2, 8")
        a("s_lshl_b32 s87, s%d, 7" % sPart)
        a("s_add_u32 s86, s86, s87")
        a("v_mov_b32 v40, 0")
        a("s_nop 4")
        for i in range(5):
            a("buffer_store_dwordx4 v[%d:%d], v40, s[88:91], s86 offen offset:%d" % (8 + 4 * i, 11 + 4 * i, 16 * i))
    a("s_cmp_lt_i32 s%d, 0" % sItem2)
    a("s_cbranch_scc1 L_attn_end")
    a("s_mov_b32 s%d, s%d" % (sQb, sItem2))
    a("s_mov_b32 s%d, s%d" % (sNp, sItem2))
    a("s_mov_b32 s%d, 0" % sStart)
    a("s_mov_b32 s%d, 0" % sPart)
    a("s_mov_b32 s%d, -1" % sItem2)
    a("s_lshl_b32 s%d, s%d, 5" % (sT1, sW))
    a("v_add_u32 v%d, s%d, v%d" % (vq, sT1, vL31))
    a("v_lshlrev_b32 v%d, 2, v%d" % (t + 1, vHi))
    a("v_sub_u32 v%d, v%d, v%d" % (vq, vq, t + 1))
    a("v_mov_b32 v%d, 0x%08x" % (vm, f32bits(-1e30)))
    a("v_mov_b32 v%d, 0" % vl)
    a("v_mov_b32 v%d, 0" % vmc)
    for i in range(64):
        a("v_accvgpr_mov_b32 a%d, a%d" % (i, 96 + i))
    for i in range(128):
        a("v_mov_b32 v%d, 0" % (O + i))
    a("s_waitcnt vmcnt(0)")
    a("s_branch L_attn_go")
    a.label("L_attn_end")
    signal_done(a, sW, 88, T, "L_attn_sig", 16, 480)
    tl_end(a, 202)
    a("s_endpgm")
    for x in rare:
        emit(x)
    a.label("L_attn_conv")
    a("s_sub_u32 s2, s2, 256")
    a("s_cmp_ge_u32 s2, 224")
    a("s_cbranch_scc1 L_attn_final")
    gen_conv(a)
    a.label("L_attn_final")
    a("s_sub_u32 s2, s2, 224")
    gen_final(a)
    return kernel_desc(name, 512, 256)


SPLIT_ROW = 1280

def gen_rowwork(a):
    SX, SG, SC, SML, SGT = 60, 64, 68, 72, 76
    sW, sT0, sT1, sR = 80, 81, 82, 83
    a("s_load_dwordx2 s[84:85], s[0:1], %d" % KA['A_q'])
    a("s_load_dwordx2 s[86:87], s[0:1], %d" % KA['gate_w'])
    a("s_load_dwordx2 s[88:89], s[0:1], %d" % KA['ws'])
    a("v_lshrrev_b32 v1, 6, v0")
    a("s_nop 0")
    a("v_readfirstlane_b32 s%d, v1" % sW)
    a("s_waitcnt lgkmcnt(0)")
    make_srd(a, SX, 84, 85, 2048 * 896)
    make_srd(a, SG, 86, 87, 896)
    a("s_add_u32 s90, s88, 0x%x" % WS_PART)
    a("s_addc_u32 s91, s89, 0")
    make_srd(a, SC, 90, 91, 32 * MB)
    a("s_add_u32 s90, s88, 0x%x" % WS_ML)
    a("s_addc_u32 s91, s89, 0")
    make_srd(a, SML, 90, 91, 2 * 16 * 2048 * 8)
    a("s_add_u32 s90, s88, 0x%x" % WS_GT)
    a("s_addc_u32 s91, s89, 0")
    make_srd(a, SGT, 90, 91, 2048 * 8)
    vLane, vA, vB, t = 1, 2, 3, 4
    CA, CB, MLr, GX, GW = 16, 40, 64, 88, 96
    a("v_and_b32 v%d, 63, v0" % vLane)
    a("s_mul_i32 s%d, s2, 3" % sR)
    a("s_add_u32 s%d, s%d, %d" % (sR, sR, SPLIT_ROW))
    a("v_lshlrev_b32 v%d, 4, v0" % vA)
    a("v_lshrrev_b32 v%d, 5, v0" % vB)
    a("v_lshlrev_b32 v%d, 14, v%d" % (vB, vB))
    for r in range(3):
        a("s_add_u32 s%d, s%d, %d" % (sT0, sR, r))
        a("s_lshl_b32 s%d, s%d, 13" % (sT1, sT0))
        for c in range(2):
            a("buffer_load_dwordx4 %s, v%d, %s, s%d offen" % (vr(CA + 8 * r + 4 * c, 4), vA, sr(SC, 4), sT1))
            a("s_add_u32 s%d, s%d, 0x1000" % (sT1, sT1))
        a("s_add_u32 s%d, s%d, 0x%x" % (sT1, sT1, 0x1000000 - 0x2000))
        for c in range(2):
            a("buffer_load_dwordx4 %s, v%d, %s, s%d offen" % (vr(CB + 8 * r + 4 * c, 4), vA, sr(SC, 4), sT1))
            a("s_add_u32 s%d, s%d, 0x1000" % (sT1, sT1))
        a("s_lshl_b32 s%d, s%d, 3" % (sT1, sT0))
        for c in range(2):
            for part in range(2):
                a("s_add_u32 s%d, s%d, %d" % (sT0, sT1, c * 8 * 16384 + part * 16 * 16384))
                a("buffer_load_dwordx2 %s, v%d, %s, s%d offen" % (vr(MLr + 8 * r + 4 * c + 2 * part, 2), vB, sr(SML, 4), sT0))
    a("v_cmp_gt_u32 vcc, 56, v%d" % vLane)
    a("s_and_saveexec_b64 s[92:93], vcc")
    a("v_lshlrev_b32 v%d, 4, v%d" % (t, vLane))
    a("s_lshl_b32 s%d, s2, 3" % sT0)
    a("s_lshl_b32 s%d, s%d, 1" % (sT1, sW))
    a("s_add_u32 s%d, s%d, s%d" % (sT0, sT0, sT1))
    a("s_mul_i32 s%d, s%d, 896" % (sT1, sT0))
    a("buffer_load_dwordx4 %s, v%d, %s, 0 offen" % (vr(GW, 4), t, sr(SG, 4)))
    a("buffer_load_dwordx4 %s, v%d, %s, s%d offen" % (vr(GX, 4), t, sr(SX, 4), sT1))
    a("buffer_load_dwordx4 %s, v%d, %s, s%d offen offset:896" % (vr(GX + 4, 4), t, sr(SX, 4), sT1))
    a("s_waitcnt vmcnt(0)")
    Z = 100
    for r in range(2):
        z = Z + r
        a("v_mov_b32 v%d, 0" % z)
        for i in range(4):
            a("v_lshlrev_b32 v%d, 16, v%d" % (t, GX + 4 * r + i))
            a("v_and_b32 v%d, 0xffff0000, v%d" % (t + 1, GX + 4 * r + i))
            a("v_lshlrev_b32 v%d, 16, v%d" % (t + 2, GW + i))
            a("v_and_b32 v%d, 0xffff0000, v%d" % (t + 3, GW + i))
            a("v_mul_f32 v%d, v%d, v%d" % (t, t, t + 2))
            a("v_mul_f32 v%d, v%d, v%d" % (t + 1, t + 1, t + 3))
            a("v_cvt_pk_bf16_f32 v%d, v%d, v%d" % (t + 2, t, t + 1))
            a("v_lshlrev_b32 v%d, 16, v%d" % (t, t + 2))
            a("v_and_b32 v%d, 0xffff0000, v%d" % (t + 1, t + 2))
            a("v_add_f32 v%d, v%d, v%d" % (z, z, t))
            a("v_add_f32 v%d, v%d, v%d" % (z, z, t + 1))
    a("s_mov_b64 exec, s[92:93]")
    a("s_nop 1")
    for r in range(2):
        a("v_cndmask_b32 v%d, 0, v%d, vcc" % (Z + r, Z + r))
    for off in (0x041F, 0x081F, 0x101F, 0x201F, 0x401F):
        for r in range(2):
            a("ds_swizzle_b32 v%d, v%d offset:0x%x" % (Z + 2 + r, Z + r, off))
        a("s_waitcnt lgkmcnt(0)")
        for r in range(2):
            a("v_add_f32 v%d, v%d, v%d" % (Z + r, Z + r, Z + 2 + r))
    for r in range(2):
        a("v_mov_b32 v%d, v%d" % (Z + 2 + r, Z + r))
    a("s_nop 1")
    for r in range(2):
        a("v_permlane32_swap_b32 v%d, v%d" % (Z + 2 + r, Z + r))
    for r in range(2):
        a("v_add_f32 v%d, v%d, v%d" % (Z + r, Z + r, Z + 2 + r))
    a("v_cmp_eq_u32 vcc, 1, v%d" % vLane)
    a("s_nop 1")
    z, p = t, t + 1
    a("v_cndmask_b32 v%d, v%d, v%d, vcc" % (z, Z, Z + 1))
    a("v_cvt_pk_bf16_f32 v%d, v%d, v%d" % (p, z, z))
    a("v_lshlrev_b32 v%d, 16, v%d" % (z, p))
    a("v_mul_f32 v%d, 0x%08x, v%d" % (z, f32bits(-LOG2E), z))
    a("v_exp_f32 v%d, v%d" % (z, z))
    a("s_nop 0")
    a("v_add_f32 v%d, 1.0, v%d" % (z, z))
    a("v_rcp_f32 v%d, v%d" % (z, z))
    a("s_nop 0")
    a("v_cvt_pk_bf16_f32 v%d, v%d, v%d" % (p, z, z))
    a("v_lshlrev_b32 v%d, 16, v%d" % (t + 2, p))
    a("v_sub_f32 v%d, 1.0, v%d" % (z, t + 2))
    a("v_cvt_pk_bf16_f32 v%d, v%d, v%d" % (p, z, z))
    a("v_lshlrev_b32 v%d, 16, v%d" % (t + 3, p))
    a("v_lshlrev_b32 v%d, 3, v%d" % (t + 4, vLane))
    a("s_lshl_b32 s%d, s%d, 3" % (sT0, sT0))
    a("v_cmp_gt_u32 vcc, 2, v%d" % vLane)
    a("s_and_saveexec_b64 s[92:93], vcc")
    a("buffer_store_dwordx2 %s, v%d, %s, s%d offen" % (vr(t + 2, 2), t + 4, sr(SGT, 4), sT0))
    a("s_mov_b64 exec, s[92:93]")
    W = 104
    for k in range(6):
        mA, lA, mB, lB = MLr + 4 * k, MLr + 4 * k + 1, MLr + 4 * k + 2, MLr + 4 * k + 3
        a("v_max_f32 v%d, v%d, v%d" % (t, mA, mB))
        a("v_sub_f32 v%d, v%d, v%d" % (mA, mA, t))
        a("v_sub_f32 v%d, v%d, v%d" % (mB, mB, t))
        a("v_exp_f32 v%d, v%d" % (mA, mA))
        a("v_exp_f32 v%d, v%d" % (mB, mB))
        a("s_nop 0")
        a("v_mul_f32 v%d, v%d, v%d" % (mA, mA, lA))
        a("v_mul_f32 v%d, v%d, v%d" % (mB, mB, lB))
        a("v_add_f32 v%d, v%d, v%d" % (t, mA, mB))
        a("v_rcp_f32 v%d, v%d" % (t, t))
        a("s_nop 0")
        a("v_mul_f32 v%d, v%d, v%d" % (W + 2 * k, mA, t))
        a("v_mul_f32 v%d, v%d, v%d" % (W + 2 * k + 1, mB, t))
    U = 116
    for k in range(6):
        ra, rb = CA + 4 * k, CB + 4 * k
        for d in range(4):
            a("v_lshlrev_b32 v%d, 16, v%d" % (U + 4 * d, ra + d))
            a("v_and_b32 v%d, 0xffff0000, v%d" % (U + 4 * d + 1, ra + d))
            a("v_lshlrev_b32 v%d, 16, v%d" % (U + 4 * d + 2, rb + d))
            a("v_and_b32 v%d, 0xffff0000, v%d" % (U + 4 * d + 3, rb + d))
        for d in range(4):
            a("v_mul_f32 v%d, v%d, v%d" % (U + 4 * d, U + 4 * d, W + 2 * k))
            a("v_mul_f32 v%d, v%d, v%d" % (U + 4 * d + 1, U + 4 * d + 1, W + 2 * k))
        for d in range(4):
            a("v_fma_f32 v%d, v%d, v%d, v%d" % (U + 4 * d, U + 4 * d + 2, W + 2 * k + 1, U + 4 * d))
            a("v_fma_f32 v%d, v%d, v%d, v%d" % (U + 4 * d + 1, U + 4 * d + 3, W + 2 * k + 1, U + 4 * d + 1))
        for d in range(4):
            a("v_cvt_pk_bf16_f32 v%d, v%d, v%d" % (ra + d, U + 4 * d, U + 4 * d + 1))
        r, c = k // 2, k % 2
        a("s_add_u32 s%d, s%d, %d" % (sT0, sR, r))
        a("s_lshl_b32 s%d, s%d, 13" % (sT0, sT0))
        a("s_add_u32 s%d, s%d, %d" % (sT0, sT0, c * 0x1000))
        a("buffer_store_dwordx4 %s, v%d, %s, s%d offen" % (vr(ra, 4), vA, sr(SC, 4), sT0))
    a("s_nop 1")


def gen_conv(a):
    RS = 5952
    WSZ = 8 * RS
    HOFF = WSZ
    YOFF = WSZ + 4640
    CST = 56576
    SU, SH, SY = 4, 12, 16
    sW, sD0, sT0, sT1 = 20, 21, 22, 23
    sDD = 32
    a("s_cmp_ge_u32 s2, 224")
    a("s_cbranch_scc1 L_conv_end")
    a("s_load_dwordx2 s[46:47], s[0:1], %d" % KA['ssm_k'])
    a("s_load_dwordx2 s[48:49], s[0:1], %d" % KA['ssm_D'])
    a("s_load_dwordx2 s[50:51], s[0:1], %d" % KA['ws'])
    a("v_lshrrev_b32 v1, 6, v0")
    a("s_nop 0")
    a("v_readfirstlane_b32 s%d, v1" % sW)
    a("s_lshl_b32 s%d, s2, 1" % sD0)
    a("s_waitcnt lgkmcnt(0)")
    make_srd(a, SH, 46, 47, 448 * 4096)
    a("s_add_u32 s52, s50, 0x%x" % WS_UT)
    a("s_addc_u32 s53, s51, 0")
    make_srd(a, SU, 52, 53, 448 * 4096)
    a("s_add_u32 s50, s50, 0x%x" % WS_A)
    a("s_addc_u32 s51, s51, 0")
    make_srd(a, SY, 50, 51, 448 * 4096)
    vTid = 0
    vt = 140
    H, UO, UP = 144, 152, 160
    a("v_lshlrev_b32 v%d, 4, v%d" % (vt, vTid))
    a("s_lshl_b32 s%d, s2, 2" % sT0)
    a("s_load_dword s56, s[48:49], s%d" % sT0)
    a("v_subrev_u32 v%d, 16, v%d" % (vt + 1, vt))
    a("v_max_i32 v%d, 0, v%d" % (vt + 1, vt + 1))
    for c in range(2):
        a("s_add_u32 s%d, s%d, %d" % (sT1, sD0, c))
        a("s_lshl_b32 s%d, s%d, 12" % (sT1, sT1))
        a("buffer_load_dwordx4 %s, v%d, %s, s%d offen" % (vr(H + 4 * c, 4), vt, sr(SH, 4), sT1))
        a("buffer_load_dwordx4 %s, v%d, %s, s%d offen" % (vr(UO + 4 * c, 4), vt, sr(SU, 4), sT1))
        a("buffer_load_dwordx4 %s, v%d, %s, s%d offen" % (vr(UP + 4 * c, 4), vt + 1, sr(SU, 4), sT1))
    for i in range(4):
        a("v_mov_b32 v%d, 0" % (168 + i))
    a("v_add_u32 v%d, %d, v%d" % (vt + 2, 14 * 4096, vt))
    for i in range(28):
        a("ds_write_b128 v%d, v[168:171] offset:%d" % (vt if i < 14 else vt + 2, (i % 14) * 4096))
    a("s_waitcnt vmcnt(0) lgkmcnt(0)")
    a("s_lshl_b32 s%d, s56, 16" % sDD)
    a("s_and_b32 s%d, s56, 0xffff0000" % (sDD + 1))
    a("s_barrier")
    a("v_cmp_eq_u32 vcc, 0, v%d" % vTid)
    a("s_nop 1")
    for i in range(8):
        a("v_cndmask_b32 v%d, v%d, 0, vcc" % (UP + i, UP + i))
    a("v_add_u32 v%d, %d, v%d" % (vt + 2, CST, vt))
    a("ds_write_b128 v%d, %s offset:%d" % (vt, vr(H, 4), HOFF + 512))
    a("ds_write_b128 v%d, %s offset:%d" % (vt + 2, vr(H + 4, 4), HOFF + 512))
    x0, x1, p, y0, y1 = 104, 105, 106, 107, 108
    a("v_lshlrev_b32 v%d, 3, v%d" % (x0, vTid))
    a("v_sub_u32 v%d, 2048, v%d" % (x0, x0))
    a("v_lshrrev_b32 v%d, 8, v%d" % (x1, x0))
    a("v_lshlrev_b32 v%d, 1, v%d" % (x0, x0))
    a("v_lshl_add_u32 v%d, v%d, 4, v%d" % (x0, x1, x0))
    a("v_add_u32 v%d, %d, v%d" % (x1, CST, x0))
    a("s_mov_b32 s57, 0xffff")

    def build(prev, own, dst, r):
        d = lambda j: (prev + j) if j < 4 else (own + j - 4)
        for k in range(4):
            j = 8 + r - 2 * k
            if j & 1:
                a("v_alignbit_b32 v%d, v%d, v%d, 16" % (dst + k, d((j - 1) // 2), d((j - 1) // 2)))
            else:
                a("v_bfi_b32 v%d, s57, v%d, v%d" % (dst + k, d(j // 2), d(j // 2 - 1)))
    k = 0
    for c in range(2):
        for r in range(8):
            dst = 112 + 4 * (k % 4)
            k += 1
            build(UP + 4 * c, UO + 4 * c, dst, r)
            a("ds_write_b128 v%d, %s offset:%d" % (x0 if c == 0 else x1, vr(dst, 4), r * RS))
    a("v_cmp_eq_u32 vcc, 255, v%d" % vTid)
    a("s_and_saveexec_b64 s[58:59], vcc")
    a("v_mov_b32 v%d, 0" % y0)
    a("v_mov_b32 v%d, %d" % (y1, CST))
    for c in range(2):
        for r in range(7):
            dst = 112 + 4 * (k % 4)
            k += 1
            build(UO + 4 * c, 168, dst, r)
            a("ds_write_b128 v%d, %s offset:%d" % (y0 if c == 0 else y1, vr(dst, 4), r * RS))
    a("s_mov_b64 exec, s[58:59]")
    a("s_waitcnt lgkmcnt(0)")
    a("s_barrier")
    vLane, vHi, vL31, vA, vB, vY = 128, 129, 130, 131, 132, 133
    a("v_and_b32 v%d, 63, v%d" % (vLane, vTid))
    a("v_lshrrev_b32 v%d, 5, v%d" % (vHi, vLane))
    a("v_and_b32 v%d, 31, v%d" % (vL31, vLane))
    a("s_lshr_b32 s%d, s%d, 1" % (sT0, sW))
    a("s_mul_i32 s%d, s%d, %d" % (sT0, sT0, CST))
    a("s_and_b32 s%d, s%d, 1" % (sT1, sW))
    a("v_add_u32 v%d, v%d, v%d" % (vA, vL31, vHi))
    a("v_lshlrev_b32 v%d, 4, v%d" % (vA, vA))
    a("v_add_u32 v%d, s%d, v%d" % (vA, sT0, vA))
    a("v_lshrrev_b32 v%d, 2, v%d" % (vB, vL31))
    a("v_mul_u32_u24 v%d, %d, v%d" % (vB, RS, vB))
    a("v_and_b32 v%d, 3, v%d" % (x0, vL31))
    a("s_lshl_b32 s%d, s%d, 2" % (34, sT1))
    a("v_add_u32 v%d, s34, v%d" % (x0, x0))
    a("v_mul_u32_u24 v%d, 528, v%d" % (x1, x0))
    a("v_sub_u32 v%d, v%d, v%d" % (vB, vB, x1))
    a("v_lshl_add_u32 v%d, v%d, 4, v%d" % (vB, vHi, vB))
    a("s_add_u32 s35, s%d, %d" % (sT0, 3584 + 112))
    a("v_add_u32 v%d, s35, v%d" % (vB, vB))
    a("v_lshlrev_b32 v%d, 8, v%d" % (vY, x0))
    a("v_lshl_add_u32 v%d, v%d, 5, v%d" % (vY, vHi, vY))
    a("v_lshrrev_b32 v%d, 2, v%d" % (x1, vL31))
    a("v_add_u32 v%d, v%d, v%d" % (vY, vY, x1))
    a("v_lshlrev_b32 v%d, 1, v%d" % (vY, vY))
    a("v_add_u32 v%d, s%d, v%d" % (vY, sT0, vY))
    ACC, RA, RB = 16, 32, 64
    DD = 6

    def rd(n):
        a("ds_read_b128 %s, v%d offset:%d" % (vr(RA + 4 * (n % 8), 4), vA, HOFF + 32 * n))
        a("ds_read_b128 %s, v%d offset:%d" % (vr(RB + 4 * (n % 8), 4), vB, 32 * n + 16 * (n >> 4)))
    acc = vr(ACC, 16)
    for i in range(16):
        a("v_mov_b32 v%d, 0" % (ACC + i))
    for n in range(DD):
        rd(n)
    a("s_lshl_b32 s34, s%d, 2" % sT1)
    a("s_add_u32 s34, s34, 4")
    a.label("L_conv_loop")
    for n in range(16):
        a("s_waitcnt lgkmcnt(%d)" % (2 * (DD - 1)))
        a("v_mfma_f32_32x32x16_bf16 %s, %s, %s, %s" % (acc, vr(RA + 4 * (n % 8), 4), vr(RB + 4 * (n % 8), 4), acc))
        rd(n + DD)
    a("v_add_u32 v%d, 512, v%d" % (vA, vA))
    a("v_add_u32 v%d, 528, v%d" % (vB, vB))
    a("s_sub_u32 s34, s34, 1")
    a("s_cmp_lg_u32 s34, 0")
    a("s_cbranch_scc1 L_conv_loop")
    a("s_waitcnt lgkmcnt(0)")
    a("v_mfma_f32_32x32x16_bf16 %s, %s, %s, %s" % (acc, vr(RA, 4), vr(RB, 4), acc))
    a.label("L_conv_join")
    a("s_nop 15")
    for g in range(4):
        for e in range(0, 4, 2):
            r = ACC + 4 * g + e
            a("v_cvt_pk_bf16_f32 v%d, v%d, v%d" % (p, r, r + 1))
            a("ds_write_b16 v%d, v%d offset:%d" % (vY, p, YOFF + 16 * (8 * g + e)))
            a("ds_write_b16_d16_hi v%d, v%d offset:%d" % (vY, p, YOFF + 16 * (8 * g + e + 1)))
    a("s_waitcnt lgkmcnt(0)")
    a("s_barrier")
    a("ds_read_b128 v[64:67], v%d offset:%d" % (vt, YOFF))
    a("ds_read_b128 v[72:75], v%d offset:%d" % (vt + 2, YOFF))
    a("s_waitcnt lgkmcnt(0)")

    def rnd():
        a("v_cvt_pk_bf16_f32 v%d, v%d, v%d" % (p, x0, x1))
        a("v_lshlrev_b32 v%d, 16, v%d" % (x0, p))
        a("v_and_b32 v%d, 0xffff0000, v%d" % (x1, p))
    for c in range(2):
        Y, Uu = 64 + 8 * c, UO + 4 * c
        for i in range(4):
            a("v_lshlrev_b32 v%d, 16, v%d" % (x0, Uu + i))
            a("v_and_b32 v%d, 0xffff0000, v%d" % (x1, Uu + i))
            a("v_mul_f32 v%d, s%d, v%d" % (x0, sDD + c, x0))
            a("v_mul_f32 v%d, s%d, v%d" % (x1, sDD + c, x1))
            rnd()
            a("v_lshlrev_b32 v%d, 16, v%d" % (y0, Y + i))
            a("v_and_b32 v%d, 0xffff0000, v%d" % (y1, Y + i))
            a("v_add_f32 v%d, v%d, v%d" % (x0, x0, y0))
            a("v_add_f32 v%d, v%d, v%d" % (x1, x1, y1))
            a("v_cvt_pk_bf16_f32 v%d, v%d, v%d" % (Y + i, x0, x1))
        a("s_add_u32 s%d, s%d, %d" % (sT0, sD0, c))
        a("s_lshl_b32 s%d, s%d, 12" % (sT0, sT0))
        a("buffer_store_dwordx4 %s, v%d, %s, s%d offen" % (vr(Y, 4), vt, sr(SY, 4), sT0))
    signal_done(a, sW, 88, 100, "L_conv_sig", 16, 480)
    tl_end(a, 202)
    a.label("L_conv_end")
    a("s_endpgm")


SPLIT_ROW = 1280


def gen_final(a):
    SX, SGT, SC, SY, SO, SWO = 4, 8, 12, 16, 20, 36
    sW, sQ0, sM0, sT0, sT1, sKA, sKB, sMB, sCnt = 24, 25, 26, 27, 28, 29, 30, 31, 52
    a("s_cmp_ge_u32 s2, 224")
    a("s_cbranch_scc1 L_fin_end")
    a("s_load_dwordx2 s[40:41], s[0:1], %d" % KA['A_q'])
    a("s_load_dwordx2 s[44:45], s[0:1], %d" % KA['ws'])
    a("s_load_dwordx2 s[46:47], s[0:1], %d" % KA['out'])
    a("s_load_dwordx2 s[50:51], s[0:1], %d" % KA['w_o'])
    a("v_lshrrev_b32 v1, 6, v0")
    a("s_nop 0")
    a("v_readfirstlane_b32 s%d, v1" % sW)
    a("s_and_b32 s%d, s2, 7" % sT0)
    a("s_lshr_b32 s%d, s2, 3" % sT1)
    a("s_and_b32 s%d, s%d, 3" % (sQ0, sT1))
    a("s_lshl_b32 s%d, s%d, 3" % (sQ0, sQ0))
    a("s_add_u32 s%d, s%d, s%d" % (sQ0, sQ0, sT0))
    a("s_lshl_b32 s%d, s%d, 6" % (sQ0, sQ0))
    a("s_lshr_b32 s%d, s%d, 2" % (sM0, sT1))
    a("s_lshl_b32 s%d, s%d, 6" % (sM0, sM0))
    a("s_waitcnt lgkmcnt(0)")
    make_srd(a, SX, 40, 41, 2048 * 896)
    a("s_add_u32 s48, s44, 0x%x" % WS_PART)
    a("s_addc_u32 s49, s45, 0")
    make_srd(a, SC, 48, 49, 16 * MB)
    a("s_add_u32 s48, s44, 0x%x" % WS_A)
    a("s_addc_u32 s49, s45, 0")
    make_srd(a, SY, 48, 49, 448 * 4096)
    a("s_add_u32 s48, s44, 0x%x" % WS_GT)
    a("s_addc_u32 s49, s45, 0")
    make_srd(a, SGT, 48, 49, 2048 * 8)
    make_srd(a, SO, 46, 47, 2048 * 896)
    make_srd(a, SWO, 50, 51, 4096 * 896)
    NS = 4
    FC, FW = [0, 32], [16, 48]
    vAg, vBg, vCr, vWr = 64, 68, 72, 76
    vLane, vHi, vL31 = 80, 81, 82
    t = 84
    a("v_and_b32 v%d, 63, v0" % vLane)
    a("v_lshrrev_b32 v%d, 5, v%d" % (vHi, vLane))
    a("v_and_b32 v%d, 31, v%d" % (vL31, vLane))
    a("v_lshrrev_b32 v%d, 4, v%d" % (t, vLane))
    a("v_and_b32 v%d, 15, v%d" % (t + 1, vLane))
    a("s_lshl_b32 s%d, s%d, 4" % (sT0, sW))
    a("s_add_u32 s%d, s%d, s%d" % (sT0, sT0, sQ0))
    for n in range(4):
        a("v_add_u32 v%d, %d, v%d" % (t + 2, 4 * n, t))
        a("v_xor_b32 v%d, v%d, v%d" % (t + 3, t + 2, t + 1))
        a("v_add_u32 v%d, s%d, v%d" % (t + 2, sT0, t + 2))
        a("v_lshlrev_b32 v%d, 13, v%d" % (t + 2, t + 2))
        a("v_lshl_add_u32 v%d, v%d, 4, v%d" % (vAg + n, t + 3, t + 2))
    a("v_lshrrev_b32 v%d, 3, v%d" % (t, vLane))
    a("s_lshl_b32 s%d, s%d, 5" % (sT0, sW))
    a("v_add_u32 v%d, s%d, v%d" % (t, sT0, t))
    a("v_mul_u32_u24 v%d, 896, v%d" % (t, t))
    a("v_bfe_u32 v%d, v%d, 4, 1" % (t + 1, vLane))
    a("v_lshlrev_b32 v%d, 2, v%d" % (t + 1, t + 1))
    a("v_and_b32 v%d, 7, v%d" % (t + 2, vLane))
    a("v_xor_b32 v%d, v%d, v%d" % (t + 1, t + 1, t + 2))
    a("v_lshl_add_u32 v%d, v%d, 4, v%d" % (t, t + 1, t))
    a("s_lshl_b32 s%d, s%d, 1" % (sT0, sM0))
    a("v_add_u32 v%d, s%d, v%d" % (t, sT0, t))
    for n in range(4):
        a("v_add_u32 v%d, %d, v%d" % (vBg + n, n * 8 * 896, t))
    a("s_lshl_b32 s%d, s%d, 1" % (sT0, sW))
    a("v_add_u32 v%d, s%d, v%d" % (t, sT0, vHi))
    a("v_and_b32 v%d, 15, v%d" % (t + 1, vL31))
    a("v_xor_b32 v%d, v%d, v%d" % (t, t, t + 1))
    a("v_lshlrev_b32 v%d, 8, v%d" % (t + 2, vL31))
    a("v_lshl_add_u32 v%d, v%d, 4, v%d" % (vCr, t, t + 2))
    a("v_xor_b32 v%d, 8, v%d" % (t, t))
    a("v_lshl_add_u32 v%d, v%d, 4, v%d" % (vCr + 1, t, t + 2))
    a("v_add_u32 v%d, 0x10000, v%d" % (vCr + 2, vCr))
    a("v_add_u32 v%d, 0x10000, v%d" % (vCr + 3, vCr + 1))
    a("v_bfe_u32 v%d, v%d, 2, 2" % (t, vLane))
    a("v_lshl_add_u32 v%d, v%d, 3, v%d" % (t, vHi, t))
    a("s_lshl_b32 s%d, s%d, 4" % (sT0, sW))
    a("v_add_u32 v%d, s%d, v%d" % (t, sT0, t))
    a("v_lshlrev_b32 v%d, 7, v%d" % (t, t))
    a("v_bfe_u32 v%d, v%d, 3, 1" % (t + 1, vLane))
    a("v_lshl_add_u32 v%d, v%d, 6, v%d" % (t, t + 1, t))
    a("v_bfe_u32 v%d, v%d, 4, 1" % (t + 1, vLane))
    a("v_lshl_add_u32 v%d, v%d, 5, v%d" % (t, t + 1, t))
    a("v_and_b32 v%d, 3, v%d" % (t + 1, vLane))
    a("v_lshl_add_u32 v%d, v%d, 3, v%d" % (t, t + 1, t))
    a("v_add_u32 v%d, 0x4000, v%d" % (vWr, t))
    a("v_xor_b32 v%d, 64, v%d" % (vWr + 1, vWr))
    a("v_add_u32 v%d, 0x10000, v%d" % (vWr + 2, vWr))
    a("v_add_u32 v%d, 0x10000, v%d" % (vWr + 3, vWr + 1))
    a("s_lshl_b32 s%d, s%d, 12" % (sMB, sW))
    a("s_mov_b32 s%d, 0" % sKA)
    a("s_mov_b32 s%d, 0" % sKB)

    vm = []

    def issueA(tile):
        st = tile % NS
        l = []
        for n in range(4):
            l.append("s_add_u32 m0, s%d, %d" % (sMB, st * 32768 + n * 1024))
            l.append("buffer_load_dwordx4 v%d, %s, s%d offen sc1 lds" % (vAg + n, sr(SC, 4), sKA))
            vm.append(tile)
        l.append("s_add_u32 s%d, s%d, 256" % (sKA, sKA))
        return l

    def issueB(tile):
        st = tile % NS
        l = []
        for n in range(4):
            l.append("s_add_u32 m0, s%d, %d" % (sMB, st * 32768 + 16384 + n * 1024))
            l.append("buffer_load_dwordx4 v%d, %s, s%d offen lds" % (vBg + n, sr(SWO, 4), sKB))
            vm.append(tile)
        l.append("s_add_u32 s%d, s%d, %d" % (sKB, sKB, 128 * 896))
        return l

    def issue(tile):
        return issueA(tile) + issueB(tile)

    def need(tile):
        last = max(i for i, t_ in enumerate(vm) if t_ == tile)
        return min(63, len(vm) - 1 - last)

    def reads(tile):
        st = tile % NS
        fs = tile & 1
        hi2 = 2 * (st >> 1)
        l = []
        for k2 in range(2):
            for qh in range(2):
                l.append("ds_read_b128 %s, v%d offset:%d" % (vr(FC[fs] + 8 * k2 + 4 * qh, 4), vCr + hi2 + k2, (st & 1) * 32768 + qh * 8192))
            for mh in range(2):
                for j in range(2):
                    l.append("ds_read_b64_tr_b16 %s, v%d offset:%d" % (vr(FW[fs] + 8 * k2 + 4 * mh + 2 * j, 2), vWr + hi2 + mh, (st & 1) * 32768 + k2 * 8192 + j * 512))
        return l

    def mf(tile, first):
        fs = tile & 1
        l = []
        for k2 in range(2):
            for mh in range(2):
                for qh in range(2):
                    acc = ar(16 * (2 * mh + qh), 16)
                    l.append("v_mfma_f32_32x32x16_bf16 %s, %s, %s, %s" % (acc, vr(FW[fs] + 8 * k2 + 4 * mh, 4), vr(FC[fs] + 8 * k2 + 4 * qh, 4), "0" if (first and k2 == 0) else acc))
        return l
    def stamp(i):
        if os.environ.get("EXP_STAMP3"):
            a("s_memtime s[%d:%d]" % (64 + 2 * i, 65 + 2 * i))
    for tl in range(3):
        for x in issueB(tl):
            a(x)
    a("s_lshr_b32 s%d, s%d, 1" % (sT0, sW))
    a("s_lshl_b32 s%d, s%d, 5" % (sT0, sT0))
    a("s_add_u32 s%d, s%d, s%d" % (sT0, sT0, sM0))
    a("s_and_b32 s%d, s%d, 1" % (sT1, sW))
    a("s_lshl_b32 s%d, s%d, 5" % (sT1, sT1))
    a("s_add_u32 s%d, s%d, s%d" % (sT1, sT1, sQ0))
    a("v_add_u32 v%d, s%d, v%d" % (t, sT1, vL31))
    a("v_lshlrev_b32 v%d, 3, v%d" % (t + 5, t))
    XR, YR, GG = 96, 104, 120
    a("buffer_load_dwordx2 %s, v%d, %s, 0 offen" % (vr(GG, 2), t + 5, sr(SGT, 4)))
    a("v_mul_u32_u24 v%d, 896, v%d" % (t + 1, t))
    a("v_lshl_add_u32 v%d, v%d, 3, v%d" % (t + 1, vHi, t + 1))
    a("s_lshl_b32 s54, s%d, 1" % sT0)
    for g in range(4):
        a("buffer_load_dwordx2 %s, v%d, %s, s54 offen offset:%d" % (vr(XR + 2 * g, 2), t + 1, sr(SX, 4), 16 * g))
    a("v_lshlrev_b32 v%d, 1, v%d" % (t + 2, t))
    a("v_lshl_add_u32 v%d, v%d, 14, v%d" % (t + 2, vHi, t + 2))
    a("s_lshl_b32 s55, s%d, 12" % sT0)
    wait_count(a, sW, 88, t + 6, "L_fin_poll", 40, 1)
    tl_mid(a)

    def stamp(i):
        if os.environ.get("EXP_STAMP3"):
            a("s_memtime s[%d:%d]" % (64 + 2 * i, 65 + 2 * i))
    vm.clear()
    for tl in range(3):
        for x in issueA(tl):
            a(x)
    for g in range(4):
        for e in range(4):
            a("s_add_u32 s53, s55, %d" % ((8 * g + e) * 4096))
            a("buffer_load_ushort v%d, v%d, %s, s53 offen sc1" % (YR + 4 * g + e, t + 2, sr(SY, 4)))
            vm.append(-1)
    NT = 32
    a("s_waitcnt vmcnt(%d)" % need(0))
    a("s_barrier")
    for x in reads(0):
        a(x)
    def tile(tl):
        fill = []
        a("s_waitcnt lgkmcnt(0)")
        if tl + 1 < NT:
            a("s_waitcnt vmcnt(%d)" % need(tl + 1))
            a("s_barrier")
            fill += reads(tl + 1)
            if tl + 3 < NT:
                fill += issue(tl + 3)
        for x in interleave(mf(tl, tl == 0), fill, per=4):
            a(x)
    for tl in range(4):
        tile(tl)
    a("s_mov_b32 s%d, 6" % sCnt)
    a.label("L_fin_loop")
    for tl in range(4, 8):
        tile(tl)
    a("s_sub_u32 s%d, s%d, 1" % (sCnt, sCnt))
    a("s_cmp_lg_u32 s%d, 0" % sCnt)
    a("s_cbranch_scc1 L_fin_loop")
    for tl in range(8, 28):
        for _ in range(8):
            vm.append(tl + 3)
    for tl in range(28, 32):
        tile(tl)
    stamp(5)
    a("s_barrier")
    a("s_nop 7")
    a("s_lshl_b32 s%d, s%d, 14" % (sT0, sW))
    a("v_lshlrev_b32 v%d, 4, v%d" % (t + 3, vLane))
    a("v_add_u32 v%d, s%d, v%d" % (t + 4, sT0, t + 3))
    for q4 in range(16):
        a("ds_write_b128 v%d, %s offset:%d" % (t + 4, ar(4 * q4, 4), q4 * 1024))
    a("s_waitcnt lgkmcnt(0)")
    a("s_barrier")
    a("s_lshl_b32 s%d, s%d, 12" % (sT0, sW))
    a("v_add_u32 v%d, s%d, v%d" % (t + 4, sT0, t + 3))
    for w2 in range(4):
        for r4 in range(4):
            a("ds_read_b128 %s, v%d offset:%d" % (vr(16 * w2 + 4 * r4, 4), t + 4, w2 * 16384 + r4 * 1024))
    a("s_waitcnt lgkmcnt(0)")
    for r in range(16):
        a("v_add_f32 v%d, v%d, v%d" % (r, r, 16 + r))
        a("v_add_f32 v%d, v%d, v%d" % (32 + r, 32 + r, 48 + r))
        a("v_add_f32 v%d, v%d, v%d" % (r, r, 32 + r))
    gg, omg = GG, GG + 1
    X0, X1, PP, Y0, Y1 = 122, 130, 138, 146, 154
    ch = [(g, e) for g in range(4) for e in (0, 2)]

    def st(fmt):
        for k, (g, e) in enumerate(ch):
            a(fmt(k, g, e))
    st(lambda k, g, e: "v_lshlrev_b32 v%d, 16, v%d" % (X0 + k, XR + 2 * g + e // 2))
    st(lambda k, g, e: "v_and_b32 v%d, 0xffff0000, v%d" % (X1 + k, XR + 2 * g + e // 2))
    st(lambda k, g, e: "v_lshlrev_b32 v%d, 16, v%d" % (Y0 + k, YR + 4 * g + e))
    st(lambda k, g, e: "v_lshlrev_b32 v%d, 16, v%d" % (Y1 + k, YR + 4 * g + e + 1))
    st(lambda k, g, e: "v_mul_f32 v%d, v%d, v%d" % (X0 + k, X0 + k, Y0 + k))
    st(lambda k, g, e: "v_mul_f32 v%d, v%d, v%d" % (X1 + k, X1 + k, Y1 + k))
    st(lambda k, g, e: "v_cvt_pk_bf16_f32 v%d, v%d, v%d" % (PP + k, X0 + k, X1 + k))
    st(lambda k, g, e: "v_lshlrev_b32 v%d, 16, v%d" % (X0 + k, PP + k))
    st(lambda k, g, e: "v_and_b32 v%d, 0xffff0000, v%d" % (X1 + k, PP + k))
    st(lambda k, g, e: "v_mul_f32 v%d, v%d, v%d" % (X0 + k, X0 + k, gg))
    st(lambda k, g, e: "v_mul_f32 v%d, v%d, v%d" % (X1 + k, X1 + k, gg))
    st(lambda k, g, e: "v_cvt_pk_bf16_f32 v%d, v%d, v%d" % (PP + k, X0 + k, X1 + k))
    st(lambda k, g, e: "v_lshlrev_b32 v%d, 16, v%d" % (Y0 + k, PP + k))
    st(lambda k, g, e: "v_and_b32 v%d, 0xffff0000, v%d" % (Y1 + k, PP + k))
    st(lambda k, g, e: "v_cvt_pk_bf16_f32 v%d, v%d, v%d" % (PP + k, 4 * g + e, 4 * g + e + 1))
    st(lambda k, g, e: "v_lshlrev_b32 v%d, 16, v%d" % (X0 + k, PP + k))
    st(lambda k, g, e: "v_and_b32 v%d, 0xffff0000, v%d" % (X1 + k, PP + k))
    st(lambda k, g, e: "v_mul_f32 v%d, v%d, v%d" % (X0 + k, X0 + k, omg))
    st(lambda k, g, e: "v_mul_f32 v%d, v%d, v%d" % (X1 + k, X1 + k, omg))
    st(lambda k, g, e: "v_cvt_pk_bf16_f32 v%d, v%d, v%d" % (PP + k, X0 + k, X1 + k))
    st(lambda k, g, e: "v_lshlrev_b32 v%d, 16, v%d" % (X0 + k, PP + k))
    st(lambda k, g, e: "v_and_b32 v%d, 0xffff0000, v%d" % (X1 + k, PP + k))
    st(lambda k, g, e: "v_add_f32 v%d, v%d, v%d" % (X0 + k, X0 + k, Y0 + k))
    st(lambda k, g, e: "v_add_f32 v%d, v%d, v%d" % (X1 + k, X1 + k, Y1 + k))
    st(lambda k, g, e: "v_cvt_pk_bf16_f32 v%d, v%d, v%d" % (PP + k, X0 + k, X1 + k))
    for g in range(4):
        a("buffer_store_dwordx2 %s, v%d, %s, s54 offen offset:%d" % (vr(PP + 2 * g, 2), t + 1, sr(SO, 4), 16 * g))
    if os.environ.get("EXP_STAMP3"):
        a("s_waitcnt vmcnt(0)")
        a("s_memtime s[76:77]")
        a("s_memrealtime s[78:79]")
        a("s_waitcnt lgkmcnt(0)")
        a("s_add_u32 s84, s44, 0x%x" % (200 * MB))
        a("s_addc_u32 s85, s45, 0")
        make_srd(a, 88, 84, 85, MB)
        for i in range(20):
            a("v_mov_b32 v%d, s%d" % (8 + i, 64 + i))
        a("s_lshl_b32 s86, s2, 8")
        a("v_mov_b32 v40, 0")
        a("s_nop 4")
        for i in range(5):
            a("buffer_store_dwordx4 v[%d:%d], v40, s[88:91], s86 offen offset:%d" % (8 + 4 * i, 11 + 4 * i, 16 * i))
    tl_end(a, 202)
    a.label("L_fin_end")
    a("s_endpgm")


def f32bits(x):
    import struct
    return struct.unpack("<I", struct.pack("<f", x))[0]


def main():
    a = Asm()
    launches = []
    descs = []
    launches.append("; @launch kernel=proj_kernel grid=(256,1,1) block=(256,1,1) lds=163840")
    body = Asm()
    descs.append(gen_proj(body))
    launches.append("; @launch kernel=attn_kernel grid=(704,1,1) block=(256,1,1) lds=163840")
    descs.append(gen_attn(body))
    hdr = "\n".join(launches) + "\n" + '.amdgcn_target "amdgcn-amd-amdhsa--gfx950"\n'
    L = body.lines
    i = 1
    nmoved = nnop = 0
    while i < len(L):
        x = L[i].strip()
        if x.startswith("buffer_load") and " lds" in x and L[i - 1].strip().startswith("s_add_u32 m0"):
            prev = L[i - 2].strip() if i >= 2 else ""
            if prev.startswith(("v_mfma", "ds_read", "ds_write", "v_", "s_waitcnt")) and not prev.startswith(("v_cmp", "v_readfirstlane", "v_readlane")):
                L[i - 2], L[i - 1] = L[i - 1], L[i - 2]
                nmoved += 1
            else:
                L.insert(i, "    s_nop 0")
                nnop += 1
                i += 1
        i += 1
    print("m0 hazard: moved", nmoved, "nops", nnop)
    txt = body.text()
    fl = os.environ.get("ST_FLAGS", "sc1")
    if fl:
        import re
        txt = re.sub(r"(buffer_store_dwordx4 [^\n]*)", lambda m: m.group(1) + " " + fl, txt)
    with open(OUT, "w") as f:
        f.write(hdr + txt + "".join(descs))
    print("wrote", OUT, len(body.lines), "lines")


if __name__ == "__main__":
    main()
```

```python
import sys, os

OUT = os.environ.get("GEN_OUT", "gated_mix__ssm_conv_h3__compressed_kv_cla__prompt.s")

KA = dict(A_q=0, A_k=8, A_v=16, shift_k=24, ssm_k=32, ssm_D=40, B_x=48, c_kv=56, w_q=64,
          w_uk=72, w_uv=80, w_o=88, gate_w=96, out=104, dbg=112, ws=120)
MB = 1 << 20
WS_Q = 0
WS_K = 16 * MB
WS_VT = 32 * MB
WS_PART = 48 * MB
PART_SZ = 2048 * 448 * 4
WS_A = 160 * MB
WS_ML = 170 * MB
WS_UT = 174 * MB
WS_GT = 172 * MB


class Asm:
    def __init__(self):
        self.lines = []
        self.n = 0

    def __call__(self, s):
        self.lines.append("    " + s)

    def label(self, l):
        self.lines.append(l + ":")

    def c(self, s):
        self.lines.append("    ; " + s)

    def raw(self, s):
        self.lines.append(s)

    def text(self):
        return "\n".join(self.lines) + "\n"


def vr(b, n):
    return "v[%d:%d]" % (b, b + n - 1)


def ar(b, n):
    return "a[%d:%d]" % (b, b + n - 1)


def sr(b, n):
    return "s[%d:%d]" % (b, b + n - 1)


def kernel_begin(a, name):
    a.raw(".text")
    a.raw(".globl %s" % name)
    a.raw(".p2align 8")
    a.raw(".type %s,@function" % name)
    a.label(name)


def kernel_desc(name, vgpr, accum, sgpr=102):
    return """.section .rodata,"a"
.p2align 6
.amdhsa_kernel %s
  .amdhsa_next_free_vgpr %d
  .amdhsa_next_free_sgpr %d
  .amdhsa_accum_offset %d
  .amdhsa_group_segment_fixed_size 0
  .amdhsa_kernarg_size 128
  .amdhsa_user_sgpr_count 2
  .amdhsa_user_sgpr_kernarg_segment_ptr 1
  .amdhsa_system_sgpr_workgroup_id_x 1
.end_amdhsa_kernel
""" % (name, vgpr, sgpr, accum)


def make_srd(a, d, lo, hi, nbytes):
    a("s_mov_b32 s%d, s%d" % (d, lo))
    a("s_and_b32 s%d, s%d, 0xffff" % (d + 1, hi))
    a("s_mov_b32 s%d, 0x%x" % (d + 2, nbytes))
    a("s_mov_b32 s%d, 0x00020000" % (d + 3))


def signal_done(a, sW, srd_lo, tmpv, lab, word, target):
    a("s_waitcnt vmcnt(0)")
    a("s_barrier")
    a("s_cmp_lg_u32 s%d, 0" % sW)
    a("s_cbranch_scc1 %s" % lab)
    a("s_load_dwordx2 s[46:47], s[0:1], %d" % KA['dbg'])
    a("s_waitcnt lgkmcnt(0)")
    make_srd(a, srd_lo, 46, 47, 256)
    a("v_mov_b32 v%d, 1" % tmpv)
    a("v_mov_b32 v%d, %d" % (tmpv + 1, 4 * word))
    a("s_mov_b64 exec, 1")
    a("buffer_atomic_add v%d, v%d, %s, 0 offen sc0" % (tmpv, tmpv + 1, sr(srd_lo, 4)))
    a("s_waitcnt vmcnt(0)")
    a("v_readfirstlane_b32 s46, v%d" % tmpv)
    a("s_nop 3")
    a("s_cmp_lg_u32 s46, %d" % (target - 1))
    a("s_cbranch_scc1 %s" % lab)
    a("v_mov_b32 v%d, 1" % tmpv)
    a("v_mov_b32 v%d, 160" % (tmpv + 1))
    a("buffer_store_dword v%d, v%d, %s, 0 offen sc1" % (tmpv, tmpv + 1, sr(srd_lo, 4)))
    a.label(lab)


def wait_count(a, sW, srd_lo, tmpv, lab, word, target):
    a("s_cmp_lg_u32 s%d, 0" % sW)
    a("s_cbranch_scc1 %s_done" % lab)
    a("s_load_dwordx2 s[46:47], s[0:1], %d" % KA['dbg'])
    a("s_waitcnt lgkmcnt(0)")
    make_srd(a, srd_lo, 46, 47, 256)
    a("v_mov_b32 v%d, %d" % (tmpv + 1, 4 * word))
    a.label(lab)
    a("buffer_load_dword v%d, v%d, %s, 0 offen sc1" % (tmpv, tmpv + 1, sr(srd_lo, 4)))
    a("s_waitcnt vmcnt(0)")
    a("v_readfirstlane_b32 s46, v%d" % tmpv)
    a("s_nop 3")
    a("s_cmp_ge_u32 s46, %d" % target)
    a("s_cbranch_scc1 %s_done" % lab)
    a("s_sleep 16")
    a("s_branch %s" % lab)
    a.label(lab + "_done")
    a("s_barrier")


def tl_begin(a):
    if os.environ.get("EXP_TL"):
        a("s_memrealtime s[98:99]")
        a("s_mov_b32 s97, s2")


def tl_mid(a):
    if os.environ.get("EXP_TL"):
        a("s_memrealtime s[94:95]")


def tl_end(a, base):
    if os.environ.get("EXP_TL"):
        a("s_mov_b64 exec, -1")
        a("s_waitcnt vmcnt(0)")
        a("s_memrealtime s[100:101]")
        a("s_load_dwordx2 s[84:85], s[0:1], %d" % KA['ws'])
        a("s_waitcnt lgkmcnt(0)")
        a("s_add_u32 s84, s84, 0x%x" % (base * MB))
        a("s_addc_u32 s85, s85, 0")
        make_srd(a, 88, 84, 85, MB)
        for i in range(4):
            a("v_mov_b32 v%d, s%d" % (8 + i, 98 + i))
        a("v_mov_b32 v12, s94")
        a("v_mov_b32 v13, s95")
        a("s_lshl_b32 s86, s97, 5")
        a("v_mov_b32 v40, 0")
        a("s_nop 4")
        a("buffer_store_dwordx4 v[8:11], v40, s[88:91], s86 offen")
        a("buffer_store_dwordx2 v[12:13], v40, s[88:91], s86 offen offset:16")


def code_prefetch(a, tag, dst, vt, s0):
    if os.environ.get("NO_CPF"):
        return
    a("s_getpc_b64 s[%d:%d]" % (s0, s0 + 1))
    a.label("L_cpf_%s" % tag)
    a("s_bfe_u32 s%d, s2, 0x50003" % (s0 + 2))
    a("s_lshl_b32 s%d, s%d, 12" % (s0 + 2, s0 + 2))
    a("v_lshlrev_b32 v%d, 4, v0" % vt)
    a("v_add_u32 v%d, s%d, v%d" % (vt, s0 + 2, vt))
    a("v_min_u32 v%d, L_end_attn-L_cpf_%s-16, v%d" % (vt, tag, vt))
    a("global_load_dwordx4 %s, v%d, s[%d:%d]" % (vr(dst, 4), vt, s0, s0 + 1))


def interleave(main, fill, start=0, per=1):
    out = []
    fi = 0
    for i, m in enumerate(main):
        out.append(m)
        if i >= start:
            for _ in range(per):
                if fi < len(fill):
                    out.append(fill[fi])
                    fi += 1
    out.extend(fill[fi:])
    return out


def gen_ujob(a, sW, sT0, sT1):
    SK, SV, SS, SU, SX, SG, SGT = 60, 64, 68, 72, 48, 88, 92
    a("s_load_dwordx2 s[76:77], s[0:1], %d" % KA['A_k'])
    a("s_load_dwordx2 s[78:79], s[0:1], %d" % KA['A_v'])
    a("s_load_dwordx2 s[80:81], s[0:1], %d" % KA['shift_k'])
    a("s_load_dwordx2 s[82:83], s[0:1], %d" % KA['gate_w'])
    a("s_waitcnt lgkmcnt(0)")
    make_srd(a, SK, 76, 77, 2048 * 896)
    make_srd(a, SV, 78, 79, 2048 * 896)
    make_srd(a, SS, 80, 81, 448 * 8)
    make_srd(a, SG, 82, 83, 896)
    a("s_add_u32 s82, s42, 0x%x" % WS_UT)
    a("s_addc_u32 s83, s43, 0")
    make_srd(a, SU, 82, 83, 448 * 4096)
    a("s_add_u32 s82, s42, 0x%x" % WS_GT)
    a("s_addc_u32 s83, s43, 0")
    make_srd(a, SGT, 82, 83, 2048 * 8)
    vL, vo, vs = 106, 107, 108
    KR, VR, SR = 110, 130, 138
    KF, VF, SF = 154, 194, 210
    GX, GW, Z = 4, 12, 16
    X0, X1, Y0, Y1, PP = 24, 32, 40, 48, 56
    OUT = 248
    a("v_mbcnt_lo_u32_b32 v%d, -1, 0" % vL)
    a("v_mbcnt_hi_u32_b32 v%d, -1, v%d" % (vL, vL))
    a("v_cmp_gt_u32 vcc, 56, v%d" % vL)
    a("s_and_saveexec_b64 s[84:85], vcc")
    a("s_lshl_b32 s%d, s2, 3" % sT0)
    a("s_lshl_b32 s%d, s%d, 1" % (sT1, sW))
    a("s_add_u32 s86, s%d, s%d" % (sT0, sT1))
    a("v_lshlrev_b32 v%d, 4, v%d" % (vo, vL))
    for i in range(3):
        a("s_sub_u32 s%d, s86, %d" % (sT0, 3 - i))
        a("s_mul_i32 s%d, s%d, 896" % (sT0, sT0))
        a("v_add_u32 v%d, s%d, v%d" % (vs, sT0, vo))
        a("buffer_load_dwordx4 %s, v%d, %s, 0 offen" % (vr(KR + 4 * i, 4), vs, sr(SK, 4)))
    a("s_mul_i32 s%d, s86, 896" % sT0)
    a("buffer_load_dwordx4 %s, v%d, %s, s%d offen" % (vr(KR + 12, 4), vo, sr(SK, 4), sT0))
    a("buffer_load_dwordx4 %s, v%d, %s, s%d offen offset:896" % (vr(KR + 16, 4), vo, sr(SK, 4), sT0))
    a("buffer_load_dwordx4 %s, v%d, %s, s%d offen" % (vr(VR, 4), vo, sr(SV, 4), sT0))
    a("buffer_load_dwordx4 %s, v%d, %s, s%d offen offset:896" % (vr(VR + 4, 4), vo, sr(SV, 4), sT0))
    a("v_lshlrev_b32 v%d, 6, v%d" % (vs, vL))
    for i in range(4):
        a("buffer_load_dwordx4 %s, v%d, %s, 0 offen offset:%d" % (vr(SR + 4 * i, 4), vs, sr(SS, 4), 16 * i))
    a("buffer_load_dwordx4 %s, v%d, %s, s%d offen" % (vr(GX, 4), vo, sr(SX, 4), sT0))
    a("buffer_load_dwordx4 %s, v%d, %s, s%d offen offset:896" % (vr(GX + 4, 4), vo, sr(SX, 4), sT0))
    a("buffer_load_dwordx4 %s, v%d, %s, 0 offen" % (vr(GW, 4), vo, sr(SG, 4)))
    a("s_waitcnt vmcnt(0)")

    def st(fmt, n=8):
        for c in range(n):
            a(fmt(c))

    def rnd():
        st(lambda c: "v_cvt_pk_bf16_f32 v%d, v%d, v%d" % (PP + c, X0 + c, X1 + c))
        st(lambda c: "v_lshlrev_b32 v%d, 16, v%d" % (X0 + c, PP + c))
        st(lambda c: "v_and_b32 v%d, 0xffff0000, v%d" % (X1 + c, PP + c))
    st(lambda c: "v_lshlrev_b32 v%d, 16, v%d" % (X0 + c, GX + c))
    st(lambda c: "v_and_b32 v%d, 0xffff0000, v%d" % (X1 + c, GX + c))
    st(lambda c: "v_lshlrev_b32 v%d, 16, v%d" % (Y0 + c, GW + c), 4)
    st(lambda c: "v_and_b32 v%d, 0xffff0000, v%d" % (Y1 + c, GW + c), 4)
    st(lambda c: "v_mul_f32 v%d, v%d, v%d" % (X0 + c, X0 + c, Y0 + c % 4))
    st(lambda c: "v_mul_f32 v%d, v%d, v%d" % (X1 + c, X1 + c, Y1 + c % 4))
    rnd()
    st(lambda c: "v_add_f32 v%d, v%d, v%d" % (X0 + c, X0 + c, X1 + c))
    for r in range(2):
        a("v_add_f32 v%d, v%d, v%d" % (X1 + 2 * r, X0 + 4 * r, X0 + 4 * r + 1))
        a("v_add_f32 v%d, v%d, v%d" % (X1 + 2 * r + 1, X0 + 4 * r + 2, X0 + 4 * r + 3))
    for r in range(2):
        a("v_add_f32 v%d, v%d, v%d" % (Z + r, X1 + 2 * r, X1 + 2 * r + 1))
    for i in range(20):
        a("v_lshlrev_b32 v%d, 16, v%d" % (KF + 2 * i, KR + i))
        a("v_and_b32 v%d, 0xffff0000, v%d" % (KF + 2 * i + 1, KR + i))
    for i in range(8):
        a("v_lshlrev_b32 v%d, 16, v%d" % (VF + 2 * i, VR + i))
        a("v_and_b32 v%d, 0xffff0000, v%d" % (VF + 2 * i + 1, VR + i))
    for i in range(16):
        a("v_lshlrev_b32 v%d, 16, v%d" % (SF + 2 * i, SR + i))
        a("v_and_b32 v%d, 0xffff0000, v%d" % (SF + 2 * i + 1, SR + i))
    kf = lambda row, c: KF + 8 * row + c
    sk = lambda j, c: SF + 4 * c + j
    st(lambda c: "v_mul_f32 v%d, v%d, v%d" % (X0 + c, kf(0, c), sk(3, c)))
    st(lambda c: "v_mul_f32 v%d, v%d, v%d" % (X1 + c, kf(1, c), sk(3, c)))
    rnd()
    for j in range(1, 4):
        st(lambda c: "v_mov_b32 v%d, v%d" % (Y0 + c, X0 + c))
        st(lambda c: "v_mov_b32 v%d, v%d" % (Y1 + c, X1 + c))
        st(lambda c: "v_mul_f32 v%d, v%d, v%d" % (X0 + c, kf(j, c), sk(3 - j, c)))
        st(lambda c: "v_mul_f32 v%d, v%d, v%d" % (X1 + c, kf(j + 1, c), sk(3 - j, c)))
        rnd()
        st(lambda c: "v_add_f32 v%d, v%d, v%d" % (X0 + c, Y0 + c, X0 + c))
        st(lambda c: "v_add_f32 v%d, v%d, v%d" % (X1 + c, Y1 + c, X1 + c))
        rnd()
    st(lambda c: "v_mul_f32 v%d, v%d, v%d" % (X0 + c, X0 + c, VF + c))
    st(lambda c: "v_mul_f32 v%d, v%d, v%d" % (X1 + c, X1 + c, VF + 8 + c))
    st(lambda c: "v_cvt_pk_bf16_f32 v%d, v%d, v%d" % (OUT + c, X0 + c, X1 + c))
    a("v_lshlrev_b32 v%d, 15, v%d" % (vs, vL))
    a("s_lshl_b32 s%d, s86, 1" % sT0)
    for c in range(8):
        a("s_add_u32 s%d, s%d, %d" % (sT1, sT0, c * 4096))
        a("buffer_store_dword v%d, v%d, %s, s%d offen" % (OUT + c, vs, sr(SU, 4), sT1))
    a("s_mov_b64 exec, s[84:85]")
    a("v_cmp_gt_u32 vcc, 56, v%d" % vL)
    a("s_nop 1")
    for r in range(2):
        a("v_cndmask_b32 v%d, 0, v%d, vcc" % (Z + r, Z + r))
    for off in (0x041F, 0x081F, 0x101F, 0x201F, 0x401F):
        for r in range(2):
            a("ds_swizzle_b32 v%d, v%d offset:0x%x" % (Z + 2 + r, Z + r, off))
        a("s_waitcnt lgkmcnt(0)")
        for r in range(2):
            a("v_add_f32 v%d, v%d, v%d" % (Z + r, Z + r, Z + 2 + r))
    for r in range(2):
        a("v_mov_b32 v%d, v%d" % (Z + 2 + r, Z + r))
    a("s_nop 1")
    for r in range(2):
        a("v_permlane32_swap_b32 v%d, v%d" % (Z + 2 + r, Z + r))
    for r in range(2):
        a("v_add_f32 v%d, v%d, v%d" % (Z + r, Z + r, Z + 2 + r))
    a("v_cmp_eq_u32 vcc, 1, v%d" % vL)
    a("s_nop 1")
    z, p, y0, y1 = X0, PP, Y0, Y0 + 1
    a("v_cndmask_b32 v%d, v%d, v%d, vcc" % (z, Z, Z + 1))
    a("v_cvt_pk_bf16_f32 v%d, v%d, v%d" % (p, z, z))
    a("v_lshlrev_b32 v%d, 16, v%d" % (z, p))
    a("v_mul_f32 v%d, 0x%08x, v%d" % (z, f32bits(-1.4426950408889634), z))
    a("v_exp_f32 v%d, v%d" % (z, z))
    a("s_nop 0")
    a("v_add_f32 v%d, 1.0, v%d" % (z, z))
    a("v_rcp_f32 v%d, v%d" % (z, z))
    a("s_nop 0")
    a("v_cvt_pk_bf16_f32 v%d, v%d, v%d" % (p, z, z))
    a("v_lshlrev_b32 v%d, 16, v%d" % (y0, p))
    a("v_sub_f32 v%d, 1.0, v%d" % (z, y0))
    a("v_cvt_pk_bf16_f32 v%d, v%d, v%d" % (p, z, z))
    a("v_lshlrev_b32 v%d, 16, v%d" % (y1, p))
    a("v_lshlrev_b32 v%d, 3, v%d" % (vs, vL))
    a("s_lshl_b32 s%d, s86, 3" % sT0)
    a("v_cmp_gt_u32 vcc, 2, v%d" % vL)
    a("s_and_saveexec_b64 s[84:85], vcc")
    a("buffer_store_dwordx2 %s, v%d, %s, s%d offen" % (vr(y0, 2), vs, sr(SGT, 4), sT0))
    a("s_mov_b64 exec, s[84:85]")


def gen_proj(a):
    name = "proj_kernel"
    kernel_begin(a, name)
    tl_begin(a)
    SA, SB, SO = 4, 8, 12
    SA2, SB2, SO2 = 48, 52, 56
    sW, sM0, sKA, sKB, sCnt, sMode = 16, 17, 18, 19, 20, 21
    sMb, sNb, sNq, sT0, sT1, sNt, sMq, sKA2, sKB2, sSt = 22, 23, 24, 25, 26, 27, 28, 29, 30, 31
    a("s_cmp_ge_u32 s2, 256")
    a("s_cbranch_scc1 L_proj_end")
    a("s_load_dwordx2 s[32:33], s[0:1], %d" % KA['A_q'])
    a("s_load_dwordx2 s[34:35], s[0:1], %d" % KA['c_kv'])
    a("s_load_dwordx2 s[36:37], s[0:1], %d" % KA['w_q'])
    a("s_load_dwordx2 s[38:39], s[0:1], %d" % KA['w_uk'])
    a("s_load_dwordx2 s[40:41], s[0:1], %d" % KA['w_uv'])
    a("s_load_dwordx2 s[42:43], s[0:1], %d" % KA['ws'])
    code_prefetch(a, "proj", 56, 2, 60)
    a("v_lshrrev_b32 v1, 6, v0")
    a("v_and_b32 v0, 63, v0")
    a("s_nop 0")
    a("v_readfirstlane_b32 s%d, v1" % sW)
    a("s_and_b32 s%d, s2, 7" % sT0)
    a("s_lshr_b32 s%d, s2, 3" % sT1)
    a("s_and_b32 s%d, s%d, 7" % (sMb, sT1))
    a("s_lshr_b32 s%d, s%d, 3" % (sT1, sT1))
    a("s_lshl_b32 s%d, s%d, 2" % (sT0, sT0))
    a("s_add_u32 s%d, s%d, s%d" % (sNt, sT0, sT1))
    a("s_lshl_b32 s%d, s%d, 8" % (sMb, sMb))
    a("s_waitcnt lgkmcnt(0)")
    make_srd(a, SA, 34, 35, 2048 * 2048)
    a("s_cmp_ge_u32 s%d, 16" % sNt)
    a("s_cselect_b32 s44, s40, s38")
    a("s_cselect_b32 s45, s41, s39")
    a("s_cselect_b32 s%d, 1, 0" % sMode)
    make_srd(a, SB, 44, 45, 1024 * 8192)
    a("s_and_b32 s%d, s%d, 15" % (sNb, sNt))
    a("s_lshl_b32 s%d, s%d, 8" % (sNb, sNb))
    a("s_lshl_b32 s%d, s%d, 24" % (sT0, sMode))
    a("s_add_u32 s%d, s%d, 0x%x" % (sT0, sT0, WS_K))
    a("s_add_u32 s46, s42, s%d" % sT0)
    a("s_addc_u32 s47, s43, 0")
    make_srd(a, SO, 46, 47, 16 * MB)
    make_srd(a, SA2, 32, 33, 2048 * 896)
    make_srd(a, SB2, 36, 37, 448 * 8192)
    make_srd(a, SO2, 42, 43, 16 * MB)
    a("s_lshl_b32 s%d, s%d, 7" % (sNq, sNt))
    a("s_lshl_b32 s%d, s%d, 12" % (sMq, sW))
    a("s_lshl_b32 s%d, s%d, 13" % (sM0, sW))
    for r in (sKA, sKB, sKA2, sKB2):
        a("s_mov_b32 s%d, 0" % r)

    FA = [0, 32]
    FB = [16, 48]
    vLane, vHi, vL31 = 64, 65, 66
    vOA, vOB, vRA, vRB = 68, 76, 84, 88
    vOA2, vOB2, vRB2 = 92, 100, 104
    vT = 106
    QACC = 128
    a("v_mov_b32 v%d, v0" % vLane)
    a("v_lshrrev_b32 v%d, 5, v0" % vHi)
    a("v_and_b32 v%d, 31, v0" % vL31)

    def setupA(dst, lda):
        a("v_lshrrev_b32 v%d, 3, v%d" % (vT, vLane))
        a("s_lshl_b32 s%d, s%d, 6" % (sT0, sW))
        a("s_add_u32 s%d, s%d, s%d" % (sT0, sT0, sMb))
        a("v_add_u32 v%d, s%d, v%d" % (vT, sT0, vT))
        a("v_mul_u32_u24 v%d, %d, v%d" % (vT, lda, vT))
        a("v_and_b32 v%d, 7, v%d" % (vT + 1, vLane))
        a("v_lshrrev_b32 v%d, 4, v%d" % (vT + 2, vLane))
        a("v_xor_b32 v%d, v%d, v%d" % (vT + 3, vT + 1, vT + 2))
        a("v_xor_b32 v%d, 4, v%d" % (vT + 4, vT + 3))
        a("v_lshlrev_b32 v%d, 4, v%d" % (vT + 3, vT + 3))
        a("v_lshlrev_b32 v%d, 4, v%d" % (vT + 4, vT + 4))
        for n in range(8):
            a("v_add_u32 v%d, v%d, v%d" % (dst + n, vT, vT + 3 + (n & 1)))
            if n < 7:
                a("v_add_u32 v%d, %d, v%d" % (vT, 8 * lda, vT))
    setupA(vOA, 2048)
    a("s_lshl_b32 s%d, s%d, 4" % (sT0, sW))
    a("v_add_u32 v%d, s%d, v%d" % (vT, sT0, vHi))
    a("v_lshlrev_b32 v%d, 13, v%d" % (vT, vT))
    a("s_lshl_b32 s%d, s%d, 1" % (sT0, sNb))
    a("v_add_u32 v%d, s%d, v%d" % (vT, sT0, vT))
    a("v_lshlrev_b32 v%d, 2, v%d" % (vT + 1, vHi))
    a("v_xor_b32 v%d, v%d, v%d" % (vT + 3, vL31, vT + 1))
    a("v_xor_b32 v%d, 8, v%d" % (vT + 4, vT + 3))
    a("v_lshlrev_b32 v%d, 4, v%d" % (vT + 3, vT + 3))
    a("v_lshlrev_b32 v%d, 4, v%d" % (vT + 4, vT + 4))
    for n in range(8):
        a("v_add_u32 v%d, v%d, v%d" % (vOB + n, vT, vT + 3 + (n & 1)))
        if n < 7:
            a("v_add_u32 v%d, 0x4000, v%d" % (vT, vT))

    sW8 = 45
    a("s_lshl_b32 s%d, s%d, 13" % (sW8, sW))

    def dmaA(q, tile=0):
        l = []
        for n in range(8):
            if q:
                l.append(["s_add_u32 m0, s%d, %d" % (sW8, (tile % 3) * 49152 + n * 1024),
                          "buffer_load_dwordx4 v%d, %s, s%d offen lds ;T%d" % (vOA2 + n, sr(SA2, 4), sKA2, tile)])
            else:
                l.append(["s_add_u32 m0, s%d, %d" % (sM0, n * 1024),
                          "buffer_load_dwordx4 v%d, %s, s%d offen lds" % (vOA + n, sr(SA, 4), sKA)])
        l.append(["s_add_u32 s%d, s%d, 128" % ((sKA2, sKA2) if q else (sKA, sKA))])
        return l

    def dmaB(q, tile=0):
        l = []
        if q:
            for n in range(4):
                l.append(["s_add_u32 m0, s%d, %d" % (sMq, (tile % 3) * 49152 + 32768 + n * 1024),
                          "buffer_load_dwordx4 v%d, %s, s%d offen lds ;T%d" % (vOB2 + n, sr(SB2, 4), sKB2, tile)])
            l.append(["s_add_u32 s%d, s%d, 0x80000" % (sKB2, sKB2)])
        else:
            for n in range(8):
                l.append(["s_add_u32 m0, s%d, %d" % (sM0, 32768 + n * 1024),
                          "buffer_load_dwordx4 v%d, %s, s%d offen lds" % (vOB + n, sr(SB, 4), sKB)])
            l.append(["s_add_u32 s%d, s%d, 0x80000" % (sKB, sKB), "s_xor_b32 s%d, s%d, 0x10000" % (sM0, sM0)])
        return l

    def flat(l):
        o = []
        for x in l:
            o.extend(x)
        return o
    for x in flat(dmaA(False) + dmaB(False) + dmaA(False)):
        a(x)
    setupA(vOA2, 896)
    a("v_lshrrev_b32 v%d, 4, v%d" % (vT + 1, vLane))
    a("s_lshl_b32 s%d, s%d, 4" % (sT0, sW))
    a("v_add_u32 v%d, s%d, v%d" % (vT, sT0, vT + 1))
    a("v_lshlrev_b32 v%d, 13, v%d" % (vT, vT))
    a("s_lshl_b32 s%d, s%d, 1" % (sT0, sNq))
    a("v_add_u32 v%d, s%d, v%d" % (vT, sT0, vT))
    a("v_lshlrev_b32 v%d, 2, v%d" % (vT + 1, vT + 1))
    a("v_and_b32 v%d, 15, v%d" % (vT + 2, vLane))
    a("v_xor_b32 v%d, v%d, v%d" % (vT + 1, vT + 1, vT + 2))
    a("v_lshl_add_u32 v%d, v%d, 4, v%d" % (vT, vT + 1, vT))
    for n in range(4):
        a("v_add_u32 v%d, %d, v%d" % (vOB2 + n, n * 0x8000, vT))
    a("s_and_b32 s%d, s%d, 1" % (sT0, sW))
    a("s_lshr_b32 s%d, s%d, 1" % (sT1, sW))
    a("s_lshl_b32 s%d, s%d, 14" % (sT0, sT0))
    a("v_lshlrev_b32 v%d, 7, v%d" % (vT, vL31))
    a("v_add_u32 v%d, s%d, v%d" % (vT, sT0, vT))
    a("v_bfe_u32 v%d, v%d, 1, 3" % (vT + 1, vLane))
    a("v_xor_b32 v%d, v%d, v%d" % (vT + 1, vT + 1, vHi))
    for ks in range(4):
        a("v_xor_b32 v%d, %d, v%d" % (vT + 2, 2 * ks, vT + 1))
        a("v_lshl_add_u32 v%d, v%d, 4, v%d" % (vRA + ks, vT + 2, vT))
    a("v_bfe_u32 v%d, v%d, 2, 2" % (vT, vLane))
    a("v_lshl_add_u32 v%d, v%d, 3, v%d" % (vT + 1, vHi, vT))
    a("v_bfe_u32 v%d, v%d, 4, 1" % (vT + 2, vLane))
    a("v_lshlrev_b32 v%d, 5, v%d" % (vT + 3, vT + 2))
    a("v_bfe_u32 v%d, v%d, 1, 1" % (vT + 2, vLane))
    a("v_lshl_add_u32 v%d, v%d, 4, v%d" % (vT + 3, vT + 2, vT + 3))
    a("v_and_b32 v%d, 1, v%d" % (vT + 2, vLane))
    a("v_lshl_add_u32 v%d, v%d, 3, v%d" % (vT + 3, vT + 2, vT + 3))
    a("v_add_u32 v%d, 0x8000, v%d" % (vT + 3, vT + 3))
    a("v_lshl_add_u32 v%d, v%d, 9, v%d" % (vT + 4, vT + 1, vT + 3))
    a("s_lshl_b32 s%d, s%d, 8" % (sT0, sT1))
    a("v_add_u32 v%d, s%d, v%d" % (vT + 4, sT0, vT + 4))
    for nt in range(4):
        a("v_xor_b32 v%d, %d, v%d" % (vT + 2, nt, vT))
        a("v_lshl_add_u32 v%d, v%d, 6, v%d" % (vRB + nt, vT + 2, vT + 4))
    a("v_lshl_add_u32 v%d, v%d, 8, v%d" % (vT + 4, vT + 1, vT + 3))
    a("s_lshl_b32 s%d, s%d, 1" % (sT1, sT1))
    for nt in range(2):
        a("v_mov_b32 v%d, s%d" % (vT + 5, sT1))
        a("v_add_u32 v%d, %d, v%d" % (vT + 5, nt, vT + 5))
        a("v_xor_b32 v%d, v%d, v%d" % (vT + 2, vT + 5, vT))
        a("v_lshl_add_u32 v%d, v%d, 6, v%d" % (vRB2 + nt, vT + 2, vT + 4))

    def frag_reads(st, ks, q):
        A = ["ds_read_b128 %s, v%d offset:%d" % (vr(FA[st] + 4 * mt, 4), vRA + ks, mt * 4096) for mt in range(4)]
        B = []
        pitch = 256 if q else 512
        for nt in range(2 if q else 4):
            for j in range(2):
                B.append("ds_read_b64_tr_b16 %s, v%d offset:%d" % (vr(FB[st] + 4 * nt + 2 * j, 2), (vRB2 if q else vRB) + nt, (ks * 16 + j * 4) * pitch))
        if q:
            return [A[0], B[0], B[1], B[2], B[3], A[1], A[2], A[3]]
        return [A[0], B[0], B[1], B[2], B[3], A[1], B[4], B[5], B[6], B[7], A[2], A[3]]

    def mfmas(st, mode, q, first):
        l = []
        nn = 2 if q else 4
        for mt in range(4):
            for nt in range(nn):
                acc = vr(QACC + (mt * nn + nt) * 16, 16) if q else ar((mt * nn + nt) * 16, 16)
                A = vr(FA[st] + 4 * mt, 4)
                B = vr(FB[st] + 4 * nt, 4)
                c = "0" if first else acc
                if q or mode == 0:
                    l.append("v_mfma_f32_32x32x16_bf16 %s, %s, %s, %s" % (acc, B, A, c))
                else:
                    l.append("v_mfma_f32_32x32x16_bf16 %s, %s, %s, %s" % (acc, A, B, c))
        return l

    def tog(regs):
        return ["v_xor_b32 v%d, 0x10000, v%d" % (r, r) for r in regs]

    def weave(mf, reads, groups, extra=()):
        n = len(mf)
        slots = [[] for _ in range(n)]
        for i, r in enumerate(reads):
            slots[min(n - 1, i * n // len(reads) if len(reads) > n else i)].append(r)
        for i, g in enumerate(groups):
            slots[min(n - 1, (i * n) // max(1, len(groups)))].extend(g)
        for i, g in enumerate(extra):
            slots[min(n - 1, (i * n) // max(1, len(extra)))].append(g)
        out = []
        for i in range(n):
            out.append(mf[i])
            out.extend(slots[i])
        return out

    def body(out, mode, q, h2, h1, nxt, first=False, nextq=None, extras=None, hm=(), tile=None):
        if nextq is None:
            nextq = q
        ex = extras or [[], [], [], []]
        for ks in range(3):
            out.append("s_waitcnt lgkmcnt(0)")
            out.extend(weave(mfmas(ks & 1, mode, q, first and ks == 0), frag_reads((ks + 1) & 1, ks + 1, q), h2 if ks == 0 else (list(hm) if ks == 1 else []), ex[ks]))
        out.append("s_waitcnt lgkmcnt(0)")
        rd = []
        if nxt:
            out.append("VMWAIT" if tile is None else "VMWAIT T%d" % (tile + 1))
            out.append("s_barrier")
            if q:
                dl = 49152 if (tile + 1) % 3 else -98304
                rd = ["v_add_u32 v%d, 0x%x, v%d" % (r, dl & 0xffffffff, r) for r in list(range(vRA, vRA + 4)) + [vRB2, vRB2 + 1]]
            else:
                regs = list(range(vRA, vRA + 4))
                if nextq == q:
                    regs += list(range(vRB, vRB + 4))
                rd = tog(regs)
            rd = rd + frag_reads(0, 0, nextq)
        out.extend(weave(mfmas(1, mode, q, False), rd, h1, ex[3]))

    hist = []

    def flush(out):
        for x in out:
            if x.startswith("VMWAIT"):
                cnt = 0
                tag = x.split()[1] if " " in x else None
                for y in reversed(hist):
                    if (tag is None and y.split(";")[0].strip().endswith("lds")) or (tag and y.endswith(";" + tag)):
                        break
                    cnt += 1
                a("s_waitcnt vmcnt(%d)" % cnt)
                continue
            if x.startswith("buffer_"):
                hist.append(x)
            a(x)

    def kv_epilogue_stream(mode):
        TB, RB = 68, 88
        return None

    def stamp(i):
        if os.environ.get("EXP_STAMP"):
            a("s_memtime s[%d:%d]" % (88 + 2 * i, 89 + 2 * i) if i < 7 else "s_memrealtime s[60:61]")
    stamp(0)
    if os.environ.get("EXP_STAMP"):
        a("s_memrealtime s[46:47]")
    if not os.environ.get("NO_PREFETCH"):
        a("s_load_dwordx2 s[76:77], s[0:1], %d" % KA['w_o'])
        a("s_load_dwordx2 s[78:79], s[0:1], %d" % KA['ssm_k'])
        a("s_waitcnt lgkmcnt(0)")
        make_srd(a, 60, 76, 77, 4096 * 896)
        make_srd(a, 64, 78, 79, 448 * 4096)
        a("v_lshlrev_b32 v%d, 7, v%d" % (vT, vLane))
        a("s_lshl_b32 s%d, s%d, 13" % (sT0, sW))
        a("v_add_u32 v%d, s%d, v%d" % (vT, sT0, vT))
        a("s_mul_i32 s%d, s2, 14336" % sT0)
        a("v_cmp_gt_u32 vcc, 14336, v%d" % vT)
        a("s_and_saveexec_b64 s[84:85], vcc")
        a("s_cbranch_execz L_pf0")
        a("buffer_load_dword v%d, v%d, %s, s%d offen" % (0, vT, sr(SB2, 4), sT0))
        a("buffer_load_dword v%d, v%d, s[60:63], s%d offen" % (1, vT, sT0))
        a.label("L_pf0")
        a("s_mov_b64 exec, s[84:85]")
        a("s_mul_i32 s%d, s2, 7168" % sT0)
        a("v_cmp_gt_u32 vcc, 7168, v%d" % vT)
        a("s_and_saveexec_b64 s[84:85], vcc")
        a("s_cbranch_execz L_pf1")
        a("buffer_load_dword v%d, v%d, s[64:67], s%d offen" % (2, vT, sT0))
        a.label("L_pf1")
        a("s_mov_b64 exec, s[84:85]")
    gen_ujob(a, sW, sT0, sT1)
    a("s_waitcnt vmcnt(9)")
    a("s_barrier")
    stamp(1)
    for x in frag_reads(0, 0, False):
        a(x)
    a("s_cmp_eq_u32 s%d, 1" % sMode)
    a("s_cbranch_scc1 L_proj_m1")
    for mode in range(2):
        if mode:
            a.label("L_proj_m1")
        o = []
        body(o, mode, False, dmaB(False), dmaA(False), True, first=True)
        flush(o)
        a("s_mov_b32 s%d, 13" % sCnt)
        a.label("L_proj_loop%d" % mode)
        o = []
        body(o, mode, False, dmaB(False), dmaA(False), True)
        flush(o)
        a("s_sub_u32 s%d, s%d, 1" % (sCnt, sCnt))
        a("s_cmp_lg_u32 s%d, 0" % sCnt)
        a("s_cbranch_scc1 L_proj_loop%d" % mode)
        o = []
        body(o, mode, False, dmaB(False), dmaA(True, 0), True)
        body(o, mode, False, dmaB(True, 0), dmaA(True, 1) + dmaB(True, 1), True, nextq=True)
        flush(o)
        stamp(2)
        TBS = [68, 74, 122]
        vw, vrd, vo, vx = 88, 89, 90, 91
        RB = 106
        pre = []
        pre.append("s_and_b32 s%d, s%d, 1" % (sT0, sW))
        pre.append("s_lshr_b32 s%d, s%d, 1" % (sT1, sW))
        pre.append("s_lshl_b32 s%d, s%d, 7" % (sT0, sT0))
        pre.append("s_lshl_b32 s%d, s%d, 7" % (sT1, sT1))
        pre.append("s_add_u32 s%d, s%d, s%d" % (sT0, sT0, sMb))
        pre.append("s_add_u32 s%d, s%d, s%d" % (sT1, sT1, sNb))
        pre.append("s_add_u32 s%d, s%d, 147456" % (sSt, sMq))
        pre.append("v_and_b32 v%d, 7, v%d" % (vw, vL31))
        if mode == 1:
            pre.append("v_xor_b32 v%d, v%d, v%d" % (vw, vw, vHi))
        pre.append("v_lshlrev_b32 v%d, 4, v%d" % (vw, vw))
        pre.append("v_lshl_add_u32 v%d, v%d, 7, v%d" % (vw, vL31, vw))
        if mode == 0:
            pre.append("v_lshl_add_u32 v%d, v%d, 3, v%d" % (vw, vHi, vw))
        pre.append("v_add_u32 v%d, s%d, v%d" % (vw, sSt, vw))
        pre.append("v_lshrrev_b32 v%d, 3, v%d" % (vrd, vLane))
        pre.append("v_and_b32 v%d, 7, v%d" % (vo, vLane))
        pre.append("v_xor_b32 v%d, v%d, v%d" % (vx, vrd, vo))
        pre.append("v_lshlrev_b32 v%d, 4, v%d" % (vx, vx))
        pre.append("v_lshl_add_u32 v%d, v%d, 7, v%d" % (vx, vrd, vx))
        rs = 13 if mode == 0 else 12
        r0, c0 = (sT0, sT1) if mode == 0 else (sT1, sT0)
        pre.append("v_add_u32 v%d, s%d, v%d" % (vrd, r0, vrd))
        pre.append("v_lshlrev_b32 v%d, %d, v%d" % (vrd, rs, vrd))
        pre.append("v_lshl_add_u32 v%d, v%d, 4, v%d" % (vo, vo, vrd))
        pre.append("s_lshl_b32 s%d, s%d, 1" % (c0, c0))
        pre.append("v_add_u32 v%d, s%d, v%d" % (vo, c0, vo))
        pre.append("v_add_u32 v%d, s%d, v%d" % (vrd, sSt, vx))
        segs = [[] for _ in range(28)]
        segs[0].extend(pre)
        k = 0
        for rnd_ in range(8):
            r, c = rnd_ // 2, rnd_ % 2
            wr = []
            for u in range(8):
                o2, g = 2 * c + u // 4, u % 4
                mt, nt = (r, o2) if mode == 0 else (o2, r)
                t = TBS[k % 3]
                k += 1
                base = (mt * 4 + nt) * 16 + 4 * g
                for e in range(4):
                    wr.append("v_accvgpr_read_b32 v%d, a%d" % (t + e, base + e))
                wr.append("v_cvt_pk_bf16_f32 v%d, v%d, v%d" % (t + 4, t, t + 1))
                wr.append("v_cvt_pk_bf16_f32 v%d, v%d, v%d" % (t + 5, t + 2, t + 3))
                if mode == 0:
                    wr.append("v_xor_b32 v%d, %d, v%d" % (t, 16 * (4 * (nt & 1) + g), vw))
                    wr.append("ds_write_b64 v%d, %s" % (t, vr(t + 4, 2)))
                else:
                    wr.append("v_xor_b32 v%d, %d, v%d" % (t, 16 * (4 * (mt & 1) + 2 * (g >> 1)), vw))
                    wr.append("ds_write_b64 v%d, %s offset:%d" % (t, vr(t + 4, 2), 8 * (g & 1)))
            s0 = 1 + 3 * rnd_
            for i, x in enumerate(wr):
                segs[s0 + i * 2 // len(wr)].append(x)
            st = []
            for i in range(4):
                segs[s0 + 2].append("ds_read_b128 %s, v%d offset:%d" % (vr(RB + 4 * i, 4), vrd, i * 1024))
                st.append("s_mov_b32 s%d, %d" % (sCnt, ((32 * r + 8 * i) << rs) + 128 * c))
                st.append("buffer_store_dwordx4 %s, v%d, %s, s%d offen" % (vr(RB + 4 * i, 4), vo, sr(SO, 4), sCnt))
            segs[s0 + 3] = st + segs[s0 + 3]
        o = []
        for tl in range(7):
            h2 = dmaA(True, 2) if tl == 0 else (dmaB(True, tl + 2) if tl + 2 < 7 else [])
            hm = dmaB(True, 2) if tl == 0 else []
            h1 = dmaA(True, tl + 3) if tl + 3 < 7 else []
            body(o, mode, True, h2, h1, tl + 1 < 7, first=(tl == 0), extras=segs[4 * tl:4 * tl + 4], hm=hm, tile=tl)
        flush(o)
        stamp(3)
        stamp(4)
        a("s_barrier")
        a("s_nop 7")
        a("s_and_b32 s%d, s%d, 1" % (sT0, sW))
        a("s_lshr_b32 s%d, s%d, 1" % (sT1, sW))
        a("s_lshl_b32 s%d, s%d, 7" % (sT0, sT0))
        a("s_lshl_b32 s%d, s%d, 6" % (sT1, sT1))
        a("s_add_u32 s%d, s%d, s%d" % (sT0, sT0, sMb))
        a("s_add_u32 s%d, s%d, s%d" % (sT1, sT1, sNq))
        a("s_mul_i32 s%d, s%d, %d" % (sSt, sW, 128 * 144))
        a("v_mul_u32_u24 v%d, 144, v%d" % (vw, vL31))
        a("v_lshl_add_u32 v%d, v%d, 3, v%d" % (vw, vHi, vw))
        a("v_add_u32 v%d, s%d, v%d" % (vw, sSt, vw))
        a("v_lshrrev_b32 v%d, 3, v%d" % (vrd, vLane))
        a("v_mul_u32_u24 v%d, 144, v%d" % (vrd, vrd))
        a("v_and_b32 v%d, 7, v%d" % (vo, vLane))
        a("v_lshl_add_u32 v%d, v%d, 4, v%d" % (vrd, vo, vrd))
        a("v_add_u32 v%d, s%d, v%d" % (vrd, sSt, vrd))
        a("v_lshrrev_b32 v%d, 3, v%d" % (vx, vLane))
        a("v_add_u32 v%d, s%d, v%d" % (vx, sT0, vx))
        a("v_lshlrev_b32 v%d, 13, v%d" % (vx, vx))
        a("v_lshl_add_u32 v%d, v%d, 4, v%d" % (vo, vo, vx))
        a("s_lshl_b32 s%d, s%d, 1" % (sT1, sT1))
        a("v_add_u32 v%d, s%d, v%d" % (vo, sT1, vo))
        k = 0
        for mt in range(4):
            for nt in range(2):
                for g in range(4):
                    t = 2 * (k % 16)
                    k += 1
                    base = QACC + (mt * 2 + nt) * 16 + 4 * g
                    a("v_cvt_pk_bf16_f32 v%d, v%d, v%d" % (t, base, base + 1))
                    a("v_cvt_pk_bf16_f32 v%d, v%d, v%d" % (t + 1, base + 2, base + 3))
                    a("ds_write_b64 v%d, %s offset:%d" % (vw, vr(t, 2), mt * 32 * 144 + 64 * nt + 16 * g))
        a("s_waitcnt lgkmcnt(0)")
        for i in range(16):
            a("ds_read_b128 %s, v%d offset:%d" % (vr(QACC + 4 * i, 4), vrd, i * 8 * 144))
        for j in range(16):
            a("s_waitcnt lgkmcnt(%d)" % (15 - j))
            a("s_mov_b32 s%d, %d" % (sT0, (j * 8) << 13))
            a("buffer_store_dwordx4 %s, v%d, %s, s%d offen" % (vr(QACC + 4 * j, 4), vo, sr(SO2, 4), sT0))
        stamp(5)
        if os.environ.get("EXP_STAMP"):
            a("s_waitcnt vmcnt(0)")
            stamp(6)
            stamp(7)
            a("s_waitcnt lgkmcnt(0)")
            a("s_mov_b32 s62, s46")
            a("s_mov_b32 s63, s47")
            a("s_add_u32 s64, s42, 0x%x" % (200 * MB))
            a("s_addc_u32 s65, s43, 0")
            make_srd(a, 68, 64, 65, MB)
            for i in range(14):
                a("v_mov_b32 v%d, s%d" % (8 + i, 88 + i))
            for i in range(4):
                a("v_mov_b32 v%d, s%d" % (24 + i, 60 + i))
            a("s_lshl_b32 s66, s2, 7")
            a("v_mov_b32 v40, 0")
            a("s_nop 4")
            for i in range(5):
                a("buffer_store_dwordx4 v[%d:%d], v40, s[68:71], s66 offen offset:%d" % (8 + 4 * i, 11 + 4 * i, 16 * i))
        tl_end(a, 201)
        a("s_endpgm")
    a.label("L_proj_end")
    a("s_endpgm")
    a.label("L_end_proj")
    return kernel_desc(name, 512, 256)


LOG2E = 1.4426950408889634
PART2_ROWS = 768
WS_PART2 = WS_PART + 16 * PART_SZ
PART_TOTAL = 16 * PART_SZ + 16 * PART2_ROWS * 1792
RESC_T = 8.0


def cost(x):
    if x.startswith("v_exp") or x.startswith("v_rcp"):
        return 8
    if x.startswith("buffer_load"):
        return 12
    if x.startswith("s_nop"):
        return 4 * (int(x.split()[1]) + 1)
    return 4


def spread(fills, nslots, budget):
    out = {}
    slot = 0
    acc = 0
    for x in fills:
        if isinstance(x, list):
            c = sum(cost(y) for y in x)
        else:
            c = cost(x)
        if acc + c > budget and acc > 0 and slot < nslots - 1:
            slot += 1
            acc = 0
        out.setdefault(slot, []).extend(x if isinstance(x, list) else [x])
        acc += c
    return out


def gen_attn(a):
    name = "attn_kernel"
    kernel_begin(a, name)
    tl_begin(a)
    SQ, SK, SV, SWO, SP, SML = 4, 8, 12, 16, 20, 56
    sW, sH, sQb, sCnt, sKo, sVo, sT0, sT1, sMK, sC = 24, 25, 26, 27, 28, 29, 30, 31, 32, 34
    sStart, sNp, sPart, sItem2, sPoff, sWoff, sThr = 35, 36, 37, 38, 39, 48, 49
    sCmp = 40
    a("s_cmp_ge_u32 s2, 256")
    a("s_cbranch_scc1 L_attn_conv")
    a("s_load_dwordx2 s[50:51], s[0:1], %d" % KA['ws'])
    a("s_load_dwordx2 s[52:53], s[0:1], %d" % KA['dbg'])
    code_prefetch(a, "attn", 128, 2, 60)
    a("v_lshrrev_b32 v1, 6, v0")
    a("v_and_b32 v0, 63, v0")
    a("s_nop 0")
    a("v_readfirstlane_b32 s%d, v1" % sW)
    a("s_and_b32 s%d, s2, 7" % sT0)
    a("s_lshl_b32 s%d, s%d, 1" % (sT0, sT0))
    a("s_bfe_u32 s%d, s2, 0x10003" % sT1)
    a("s_add_u32 s%d, s%d, s%d" % (sH, sT0, sT1))
    a("s_lshr_b32 s%d, s2, 4" % sT0)
    a("s_waitcnt lgkmcnt(0)")
    make_srd(a, SQ, 50, 51, 16 * MB)
    a("s_add_u32 s54, s50, 0x%x" % WS_K)
    a("s_addc_u32 s55, s51, 0")
    make_srd(a, SK, 54, 55, 16 * MB)
    a("s_add_u32 s54, s50, 0x%x" % WS_VT)
    a("s_addc_u32 s55, s51, 0")
    make_srd(a, SV, 54, 55, 16 * MB)
    make_srd(a, SWO, 52, 53, 256)
    a("s_add_u32 s54, s50, 0x%x" % WS_PART)
    a("s_addc_u32 s55, s51, 0")
    make_srd(a, SP, 54, 55, 32 * MB)
    a("s_add_u32 s54, s50, 0x%x" % WS_ML)
    a("s_addc_u32 s55, s51, 0")
    make_srd(a, SML, 54, 55, 2 * 16 * 2048 * 8)
    a("s_mov_b32 s%d, 0x%08x" % (sC, f32bits(LOG2E / 16.0)))
    a("s_mov_b32 s%d, 0x%08x" % (sThr, f32bits(RESC_T * 16.0 / LOG2E)))
    a("s_mov_b32 s%d, -1" % sItem2)
    a("s_mov_b32 s%d, 0" % sStart)
    a("s_mov_b32 s%d, 0" % sPart)
    a("s_cmp_ge_u32 s%d, 7" % sT0)
    a("s_cbranch_scc1 L_attn_r6")
    a("s_mov_b32 s%d, s%d" % (sItem2, sT0))
    a("s_sub_u32 s%d, 15, s%d" % (sQb, sItem2))
    a("s_mov_b32 s%d, 18" % sStart)
    a("s_sub_u32 s%d, 6, s%d" % (sNp, sItem2))
    a("s_mov_b32 s%d, 1" % sPart)
    a("s_branch L_attn_item")
    a.label("L_attn_r6")
    a("s_cmp_ge_u32 s%d, 14" % sT0)
    a("s_cbranch_scc1 L_attn_r12")
    a("s_sub_u32 s%d, 22, s%d" % (sQb, sT0))
    a("s_mov_b32 s%d, 8" % sNp)
    a("s_branch L_attn_item")
    a.label("L_attn_r12")
    a("s_sub_u32 s%d, 22, s%d" % (sQb, sT0))
    a("s_mov_b32 s%d, s%d" % (sNp, sQb))

    O, S0, S1, P, T = 0, 128, 160, 192, 208
    vm, vl, vq, vNeg = 220, 221, 222, 223
    vKR, vVR, vOK, vOV = 224, 232, 236, 244
    vLane, vHi, vL31, vmc = 252, 253, 254, 255
    QA, RING = 0, 64
    Sx = [S0, S1]
    t = T
    a.label("L_attn_item")
    def stamp(i):
        if os.environ.get("EXP_STAMP2"):
            a("s_memtime s[%d:%d]" % (64 + 2 * i, 65 + 2 * i))
    stamp(0)
    a("v_mbcnt_lo_u32_b32 v%d, -1, 0" % vLane)
    a("v_mbcnt_hi_u32_b32 v%d, -1, v%d" % (vLane, vLane))
    a("v_lshrrev_b32 v%d, 5, v%d" % (vHi, vLane))
    a("v_and_b32 v%d, 31, v%d" % (vL31, vLane))
    a("s_lshl_b32 s%d, s%d, 7" % (sT0, sQb))
    a("s_lshl_b32 s%d, s%d, 5" % (sT1, sW))
    a("s_add_u32 s%d, s%d, s%d" % (sT0, sT0, sT1))
    a("v_add_u32 v%d, s%d, v%d" % (t, sT0, vL31))
    a("v_lshlrev_b32 v%d, 13, v%d" % (t, t))
    a("v_lshl_add_u32 v%d, v%d, 4, v%d" % (t, vHi, t))
    a("s_lshl_b32 s%d, s%d, 9" % (sT1, sH))
    for j in range(16):
        a("buffer_load_dwordx4 %s, v%d, %s, s%d offen offset:%d" % (ar(QA + 4 * j, 4), t, sr(SQ, 4), sT1, 32 * j))
    a("s_lshl_b32 s%d, s%d, 1" % (sT0, sNp))
    a("s_add_u32 s%d, s%d, s%d" % (sT0, sT0, sStart))
    a("s_lshl_b32 s%d, s%d, 1" % (sT1, sQb))
    a("s_sub_u32 s%d, s%d, s%d" % (sT0, sT1, sT0))
    a("s_lshl_b32 s%d, s%d, 6" % (sT0, sT0))
    a("s_lshl_b32 s%d, s%d, 5" % (sT1, sW))
    a("s_add_u32 s%d, s%d, s%d" % (sT0, sT0, sT1))
    a("v_add_u32 v%d, s%d, v%d" % (vq, sT0, vL31))
    a("v_lshlrev_b32 v%d, 2, v%d" % (t + 1, vHi))
    a("v_sub_u32 v%d, v%d, v%d" % (vq, vq, t + 1))
    a("v_mov_b32 v%d, 0x%08x" % (vNeg, f32bits(-1.6e10)))
    a("v_mov_b32 v%d, 0x%08x" % (vm, f32bits(-1e30)))
    a("v_mov_b32 v%d, 0" % vl)
    a("v_mov_b32 v%d, 0" % vmc)
    a("s_lshl_b32 s%d, s%d, 4" % (sT0, sW))
    a("s_lshl_b32 s%d, s%d, 9" % (sT1, sH))
    for n in range(8):
        a("v_add_u32 v%d, %d, v%d" % (t, 2 * n, vHi))
        a("v_xor_b32 v%d, v%d, v%d" % (t + 1, t, vL31))
        a("v_add_u32 v%d, s%d, v%d" % (t, sT0, t))
        a("v_lshlrev_b32 v%d, 13, v%d" % (t, t))
        a("v_lshl_add_u32 v%d, v%d, 4, v%d" % (t, t + 1, t))
        a("v_add_u32 v%d, s%d, v%d" % (vOK + n, sT1, t))
    a("s_lshl_b32 s%d, s%d, 8" % (sT0, sH))
    a("s_lshl_b32 s%d, s%d, 6" % (sT1, sW))
    a("s_add_u32 s%d, s%d, s%d" % (sT0, sT0, sT1))
    a("v_lshrrev_b32 v%d, 3, v%d" % (t, vLane))
    a("v_add_u32 v%d, s%d, v%d" % (t, sT0, t))
    a("v_lshlrev_b32 v%d, 12, v%d" % (t, t))
    a("v_and_b32 v%d, 7, v%d" % (t + 1, vLane))
    a("v_lshrrev_b32 v%d, 4, v%d" % (t + 2, vLane))
    a("v_xor_b32 v%d, v%d, v%d" % (t + 1, t + 1, t + 2))
    a("v_xor_b32 v%d, 4, v%d" % (t + 2, t + 1))
    a("v_lshlrev_b32 v%d, 4, v%d" % (t + 1, t + 1))
    a("v_lshlrev_b32 v%d, 4, v%d" % (t + 2, t + 2))
    for n in range(8):
        a("v_add_u32 v%d, v%d, v%d" % (vOV + n, t, t + 1 + (n & 1)))
        if n < 7:
            a("v_add_u32 v%d, 0x8000, v%d" % (t, t))
    a("v_and_b32 v%d, 15, v%d" % (t, vLane))
    a("v_xor_b32 v%d, v%d, v%d" % (t, t, vHi))
    a("v_lshlrev_b32 v%d, 9, v%d" % (t + 1, vL31))
    for j in range(8):
        a("v_xor_b32 v%d, %d, v%d" % (t + 2, 2 * j, t))
        a("v_lshl_add_u32 v%d, v%d, 4, v%d" % (vKR + j, t + 2, t + 1))
    a("v_bfe_u32 v%d, v%d, 1, 3" % (t, vLane))
    a("v_xor_b32 v%d, v%d, v%d" % (t, t, vHi))
    a("v_lshlrev_b32 v%d, 7, v%d" % (t + 1, vL31))
    a("v_add_u32 v%d, 0x10000, v%d" % (t + 1, t + 1))
    for kk in range(4):
        a("v_xor_b32 v%d, %d, v%d" % (t + 2, 2 * kk, t))
        a("v_lshl_add_u32 v%d, v%d, 4, v%d" % (vVR + kk, t + 2, t + 1))
    a("s_lshl_b32 s%d, s%d, 13" % (sMK, sW))
    a("s_lshl_b32 s%d, s%d, 19" % (sKo, sStart))
    a("s_lshl_b32 s%d, s%d, 7" % (sVo, sStart))

    def dmaK(buf):
        l = []
        for n in range(8):
            l.append(["s_add_u32 m0, s%d, %d" % (sMK, buf * 32768 + n * 1024),
                      "buffer_load_dwordx4 v%d, %s, s%d offen lds" % (vOK + n, sr(SK, 4), sKo)])
        l.append("s_add_u32 s%d, s%d, 0x80000" % (sKo, sKo))
        return l

    def dmaV(buf):
        l = []
        for n in range(8):
            l.append(["s_add_u32 m0, s%d, %d" % (sMK, 65536 + buf * 32768 + n * 1024),
                      "buffer_load_dwordx4 v%d, %s, s%d offen lds" % (vOV + n, sr(SV, 4), sVo)])
        l.append("s_add_u32 s%d, s%d, 128" % (sVo, sVo))
        return l

    def flat(l):
        o = []
        for x in l:
            o.extend(x if isinstance(x, list) else [x])
        return o

    def qk_items(buf, sset):
        it = []
        for jd in range(16):
            for kt in range(2):
                rd = "ds_read_b128 %%s, v%d offset:%d" % (vKR + (jd & 7), buf * 32768 + kt * 16384 + (jd >> 3) * 256)
                acc = vr(Sx[sset] + 16 * kt, 16)
                mf = "v_mfma_f32_32x32x16_bf16 %s, %%s, %s, %s" % (acc, ar(QA + 4 * jd, 4), "0" if jd == 0 else acc)
                it.append((rd, mf))
        return it

    def pv_items(buf):
        it = []
        for kk in range(4):
            for dt in range(8):
                rd = "ds_read_b128 %%s, v%d offset:%d" % (vVR + kk, buf * 32768 + dt * 4096)
                acc = vr(O + 16 * dt, 16)
                mf = "v_mfma_f32_32x32x16_bf16 %s, %%s, %s, %s" % (acc, vr(P + 4 * kk, 4), acc)
                it.append((rd, mf))
        return it

    D = 6
    uid = [0]
    rare = []

    def sm_max(sset, masked, tblk):
        S = Sx[sset]
        l = []
        if masked:
            idx = []
            for kt in range(2):
                for g in range(4):
                    for e in range(4):
                        idx.append((S + 16 * kt + 4 * g + e, 32 * kt + 8 * g + e + 64 * tblk))
            for i, (r, cst) in enumerate(idx):
                if cst <= 64:
                    l.append("v_cmp_gt_i32 %s, %d, v%d" % (sr(sCmp + 2 * (i % 4), 2), cst, vq))
                else:
                    l.append(["s_mov_b32 s%d, %d" % (sT0, cst),
                              "v_cmp_gt_i32 %s, s%d, v%d" % (sr(sCmp + 2 * (i % 4), 2), sT0, vq)])
                if i >= 3:
                    r2 = idx[i - 3][0]
                    l.append("v_cndmask_b32 v%d, v%d, v%d, %s" % (r2, r2, vNeg, sr(sCmp + 2 * ((i - 3) % 4), 2)))
            l.append("s_nop 1")
            for i in range(len(idx) - 3, len(idx)):
                r2 = idx[i][0]
                l.append("v_cndmask_b32 v%d, v%d, v%d, %s" % (r2, r2, vNeg, sr(sCmp + 2 * (i % 4), 2)))
        for c in range(4):
            b = S + 8 * c
            l.append("v_max3_f32 v%d, v%d, v%d, v%d" % (T + c, b, b + 1, b + 2))
        for c in range(4):
            b = S + 8 * c
            l.append("v_max3_f32 v%d, v%d, v%d, v%d" % (T + c, T + c, b + 3, b + 4))
        for c in range(4):
            b = S + 8 * c
            l.append("v_max3_f32 v%d, v%d, v%d, v%d" % (T + c, T + c, b + 5, b + 6))
        l.append("v_max3_f32 v%d, v%d, v%d, v%d" % (T, T, S + 7, S + 15))
        l.append("v_max3_f32 v%d, v%d, v%d, v%d" % (T + 2, T + 2, S + 23, S + 31))
        l.append("v_max3_f32 v%d, v%d, v%d, v%d" % (T, T, T + 1, T + 3))
        l.append("v_max_f32 v%d, v%d, v%d" % (T, T, T + 2))
        uid[0] += 1
        lab = "L_attn_rs%d" % uid[0]
        l.append(["v_mov_b32 v%d, v%d" % (T + 1, T), "s_nop 1", "v_permlane32_swap_b32 v%d, v%d" % (T, T + 1),
                  "v_max_f32 v%d, v%d, v%d" % (T, T, T + 1),
                  "v_sub_f32 v%d, v%d, v%d" % (T + 1, T, vm),
                  "v_cmp_lt_f32 vcc, s%d, v%d" % (sThr, T + 1), "s_nop 4",
                  "s_cbranch_vccnz %s" % lab, "LABEL " + lab + "_ret"])
        r = ["LABEL " + lab,
             "v_max_f32 v%d, v%d, v%d" % (T, T, vm),
             "v_sub_f32 v%d, v%d, v%d" % (T + 1, vm, T),
             "v_mul_f32 v%d, s%d, v%d" % (T + 1, sC, T + 1),
             "v_exp_f32 v%d, v%d" % (T + 1, T + 1),
             "v_mov_b32 v%d, v%d" % (vm, T),
             "v_mul_f32 v%d, s%d, v%d" % (vmc, sC, T),
             "v_mul_f32 v%d, v%d, v%d" % (vl, vl, T + 1)]
        for i in range(128):
            r.append("v_mul_f32 v%d, v%d, v%d" % (O + i, O + i, T + 1))
        r.append("s_branch " + lab + "_ret")
        rare.extend(r)
        return l

    def sm_grp(sset, kk):
        S = Sx[sset] + 8 * kk
        l = []
        for i in range(8):
            l.append("v_fma_f32 v%d, v%d, s%d, -v%d" % (S + i, S + i, sC, vmc))
        for i in range(8):
            l.append("v_exp_f32 v%d, v%d" % (S + i, S + i))
        l.append("v_add_f32 v%d, v%d, v%d" % (T + 4, S, S + 1))
        l.append("v_add_f32 v%d, v%d, v%d" % (T + 5, S + 2, S + 3))
        l.append("v_cvt_pk_bf16_f32 v%d, v%d, v%d" % (P + 4 * kk, S, S + 1))
        l.append("v_cvt_pk_bf16_f32 v%d, v%d, v%d" % (P + 4 * kk + 1, S + 2, S + 3))
        l.append("v_add_f32 v%d, v%d, v%d" % (T + 4, T + 4, S + 4))
        l.append("v_add_f32 v%d, v%d, v%d" % (T + 5, T + 5, S + 5))
        l.append("v_cvt_pk_bf16_f32 v%d, v%d, v%d" % (P + 4 * kk + 2, S + 4, S + 5))
        l.append("v_add_f32 v%d, v%d, v%d" % (T + 4, T + 4, S + 6))
        l.append("v_add_f32 v%d, v%d, v%d" % (T + 5, T + 5, S + 7))
        l.append("v_cvt_pk_bf16_f32 v%d, v%d, v%d" % (P + 4 * kk + 3, S + 6, S + 7))
        l.append("v_add_f32 v%d, v%d, v%d" % (vl, vl, T + 4))
        l.append("v_add_f32 v%d, v%d, v%d" % (vl, vl, T + 5))
        return l

    def emit(x):
        if x.startswith("LABEL "):
            a.label(x[6:])
        else:
            a(x)

    def run_stream(items, fills, pre=None):
        n = len(items)
        for i in range(min(D, n)):
            a(items[i][0] % ar(RING + 4 * (i % 8), 4))
        for x in (pre or []):
            emit(x)
        for i in range(n):
            a("s_waitcnt lgkmcnt(%d)" % min(D - 1, n - 1 - i))
            a(items[i][1] % ar(RING + 4 * (i % 8), 4))
            if i + D < n:
                a(items[i + D][0] % ar(RING + 4 * ((i + D) % 8), 4))
            for x in fills.get(i, []):
                emit(x)

    BUD = int(os.environ.get("ATT_BUD", "18"))

    def iteration(par, masked, tblk, dK, dV, doqk, novm=False):
        a("s_waitcnt vmcnt(%d)" % (17 if novm else 0))
        if not os.environ.get("EXP_A_NOBAR"):
            a("s_barrier")
        dma = (dmaK(par) if dK else []) + (dmaV(par ^ 1) if dV else [])
        if os.environ.get("EXP_A_NODMA"):
            dma = []
        if doqk:
            items = qk_items(par ^ 1, par ^ 1) + pv_items(par)
            seq = sm_max(par, masked, tblk) + sm_grp(par, 0) + sm_grp(par, 1) + sm_grp(par, 2) + sm_grp(par, 3)
            if os.environ.get("EXP_A_NOSM"):
                seq = [x for x in seq if not isinstance(x, list) and x.startswith("v_cvt_pk")]
            if dma:
                nfirst = len(sm_max.__name__) * 0 + 40
                merged = []
                di = 0
                for i, x in enumerate(seq):
                    while di < len(dma) and di * nfirst <= i * len(dma):
                        merged.append(dma[di]); di += 1
                    merged.append(x)
                merged.extend(dma[di:])
                seq = merged
            bud = BUD
            while True:
                fl = spread(seq, 64, bud)
                ok = True
                for kk in range(4):
                    last = "v_cvt_pk_bf16_f32 v%d," % (P + 4 * kk + 3)
                    sl = [sidx for sidx, v in fl.items() if any(y.startswith(last) for y in v)][0]
                    if sl > 32 + 8 * kk - 2:
                        ok = False
                if ok:
                    break
                bud += 2
            run_stream(items, fl)
        else:
            items = pv_items(par)
            pre = flat(dma + sm_max(par, masked, tblk) + sm_grp(par, 0)) + ["s_nop 1"]
            seq = sm_grp(par, 1) + sm_grp(par, 2) + sm_grp(par, 3)
            fl = spread(seq, 32, 28)
            for kk in range(1, 4):
                last = "v_cvt_pk_bf16_f32 v%d," % (P + 4 * kk + 3)
                sl = [sidx for sidx, v in fl.items() if any(y.startswith(last) for y in v)][0]
                assert sl <= 8 * kk - 2, (kk, sl)
            run_stream(items, fl, pre)

    for x in flat(dmaK(0) + dmaV(0) + dmaK(1)):
        a(x)
    for i in range(128):
        a("v_mov_b32 v%d, 0" % (O + i))
    a("s_waitcnt vmcnt(16)")
    a("s_cmp_lt_i32 s%d, 0" % sItem2)
    a("s_cbranch_scc1 L_attn_go")
    a("s_lshl_b32 s%d, s%d, 7" % (sT0, sItem2))
    a("s_lshl_b32 s%d, s%d, 5" % (sT1, sW))
    a("s_add_u32 s%d, s%d, s%d" % (sT0, sT0, sT1))
    a("v_add_u32 v%d, s%d, v%d" % (t, sT0, vL31))
    a("v_lshlrev_b32 v%d, 13, v%d" % (t, t))
    a("v_lshl_add_u32 v%d, v%d, 4, v%d" % (t, vHi, t))
    a("s_lshl_b32 s%d, s%d, 9" % (sT1, sH))
    for j in range(16):
        a("buffer_load_dwordx4 %s, v%d, %s, s%d offen offset:%d" % (ar(96 + 4 * j, 4), t, sr(SQ, 4), sT1, 32 * j))
    a.label("L_attn_go")
    a("s_barrier")
    stamp(1)
    run_stream(qk_items(0, 0), {})
    a("s_nop 15")
    stamp(2)
    a("s_mov_b32 s%d, s%d" % (sCnt, sNp))
    a("s_cmp_eq_u32 s%d, 0" % sCnt)
    a("s_cbranch_scc1 L_attn_tail")
    a.label("L_attn_loop")
    iteration(0, False, 0, True, True, True)
    iteration(1, False, 0, True, True, True)
    a("s_sub_u32 s%d, s%d, 1" % (sCnt, sCnt))
    a("s_cmp_lg_u32 s%d, 0" % sCnt)
    a("s_cbranch_scc1 L_attn_loop")
    a.label("L_attn_tail")
    stamp(3)
    sTk, sPi, sSlot, sMg = 60, 61, 62, 63
    OA = 96
    a("s_mul_i32 s%d, s%d, 7" % (sPi, sH))
    a("s_add_u32 s%d, s%d, 15" % (sPi, sPi))
    a("s_sub_u32 s%d, s%d, s%d" % (sPi, sPi, sQb))
    a("s_mov_b32 s%d, s%d" % (sMg, sPart))
    a("s_cmp_lt_u32 s%d, 9" % sQb)
    a("s_cbranch_scc1 L_attn_t0")
    a("s_cmp_eq_u32 s%d, 1" % sPart)
    a("s_cbranch_scc1 L_attn_t0")
    a("s_mov_b32 s%d, 2" % sMg)
    a("s_lshr_b32 s%d, s%d, 5" % (sT1, sPi))
    a("s_lshl_b32 s%d, s%d, 2" % (sT1, sT1))
    a("v_mov_b32 v%d, 0" % (T + 11))
    a("buffer_load_dword v%d, v%d, %s, s%d offen sc1" % (T + 10, T + 11, sr(SWO, 4), sT1))
    a.label("L_attn_t0")
    a("s_mov_b32 s%d, 0" % sKo)
    iteration(0, True, 0, True, True, True)
    a("s_mov_b32 s%d, 0" % sVo)

    def pub_base():
        a("s_mul_i32 s%d, s%d, 69632" % (sT0, sPi))
        a("s_add_u32 s%d, s%d, 0x1000000" % (sT0, sT0))
        a("s_lshl_b32 s%d, s%d, 8" % (sT1, sW))
        a("s_add_u32 s%d, s%d, s%d" % (sT1, sT1, sT0))
        a("s_add_u32 s%d, s%d, 65536" % (sT1, sT1))
        a("s_lshl_b32 s%d, s%d, 14" % (sTk, sW))
        a("s_add_u32 s%d, s%d, s%d" % (sT0, sT0, sTk))
        a("v_lshlrev_b32 v%d, 4, v%d" % (T + 10, vLane))
        a("v_lshlrev_b32 v%d, 3, v%d" % (T + 11, vL31))

    def other_loads():
        pub_base()
        a("buffer_load_dwordx2 %s, v%d, %s, s%d offen sc1" % (ar(OA + 64, 2), T + 11, sr(SP, 4), sT1))
        for k in range(16):
            if k and k % 4 == 0:
                a("s_add_u32 s%d, s%d, 4096" % (sT0, sT0))
            a("buffer_load_dwordx4 %s, v%d, %s, s%d offen offset:%d sc1" % (ar(OA + 4 * k, 4), T + 10, sr(SP, 4), sT0, 1024 * (k % 4)))
    a("s_waitcnt vmcnt(0)")
    a("s_cmp_lg_u32 s%d, 2" % sMg)
    a("s_cbranch_scc1 L_attn_t1")
    a("v_readfirstlane_b32 s%d, v%d" % (sT0, T + 10))
    a("s_and_b32 s%d, s%d, 31" % (sT1, sPi))
    a("s_lshr_b32 s%d, s%d, s%d" % (sT0, sT0, sT1))
    a("s_and_b32 s%d, s%d, 1" % (sT0, sT0))
    a("s_cbranch_scc0 L_attn_t1")
    a("s_mov_b32 s%d, 3" % sMg)
    other_loads()
    a.label("L_attn_t1")
    iteration(1, True, 1, True, True, False, novm=True)
    stamp(4)

    a("s_nop 15")
    a("v_mov_b32 v%d, v%d" % (T, vl))
    a("s_nop 1")
    a("v_permlane32_swap_b32 v%d, v%d" % (T, vl))
    a("v_add_f32 v%d, v%d, v%d" % (T + 1, T, vl))
    a("v_rcp_f32 v%d, v%d" % (T + 2, T + 1))
    a("v_mov_b32 v%d, v%d" % (T, vmc))
    a("s_mov_b32 s%d, s%d" % (sSlot, sPart))
    a("s_cmp_eq_u32 s%d, 0" % sMg)
    a("s_cbranch_scc1 L_attn_store")
    a("s_cmp_eq_u32 s%d, 1" % sMg)
    a("s_cbranch_scc1 L_attn_first")
    a("s_cmp_eq_u32 s%d, 3" % sMg)
    a("s_cbranch_scc1 L_attn_merge")
    a("s_lshr_b32 s%d, s%d, 5" % (sT1, sPi))
    a("s_lshl_b32 s%d, s%d, 2" % (sT1, sT1))
    a("s_and_b32 s%d, s%d, 31" % (sT0, sPi))
    a("v_mov_b32 v%d, 0" % (T + 11))
    a.label("L_attn_poll")
    a("buffer_load_dword v%d, v%d, %s, s%d offen sc1" % (T + 10, T + 11, sr(SWO, 4), sT1))
    a("s_waitcnt vmcnt(0)")
    a("v_readfirstlane_b32 s%d, v%d" % (sTk, T + 10))
    a("s_nop 3")
    a("s_lshr_b32 s%d, s%d, s%d" % (sTk, sTk, sT0))
    a("s_and_b32 s%d, s%d, 1" % (sTk, sTk))
    a("s_cbranch_scc1 L_attn_pl1")
    a("s_sleep 4")
    a("s_branch L_attn_poll")
    a.label("L_attn_pl1")
    other_loads()
    a.label("L_attn_merge")
    a("s_waitcnt vmcnt(0)")
    a("v_accvgpr_read_b32 v%d, a%d" % (T + 6, OA + 64))
    a("v_accvgpr_read_b32 v%d, a%d" % (T + 7, OA + 65))
    a("v_max_f32 v%d, v%d, v%d" % (T + 8, T, T + 6))
    a("v_sub_f32 v%d, v%d, v%d" % (T + 9, T, T + 8))
    a("v_sub_f32 v%d, v%d, v%d" % (T + 10, T + 6, T + 8))
    a("v_exp_f32 v%d, v%d" % (T + 9, T + 9))
    a("v_exp_f32 v%d, v%d" % (T + 10, T + 10))
    a("s_nop 0")
    a("v_mul_f32 v%d, v%d, v%d" % (T + 10, T + 10, T + 7))
    a("v_fma_f32 v%d, v%d, v%d, v%d" % (T + 8, T + 9, T + 1, T + 10))
    a("v_rcp_f32 v%d, v%d" % (T + 8, T + 8))
    a("s_nop 0")
    a("v_mul_f32 v%d, v%d, v%d" % (T + 9, T + 9, T + 8))
    a("v_mul_f32 v%d, v%d, v%d" % (T + 10, T + 10, T + 8))
    a("v_mov_b32 v%d, 1.0" % (T + 2))
    for i in range(64):
        a("v_accvgpr_read_b32 v%d, a%d" % (S0 + i, OA + i))
    for i in range(128):
        a("v_mul_f32 v%d, v%d, v%d" % (O + i, O + i, T + 9))
    for k4 in range(0, 64, 4):
        for d in range(4):
            a("v_lshlrev_b32 v%d, 16, v%d" % (P + 2 * d, S0 + k4 + d))
            a("v_and_b32 v%d, 0xffff0000, v%d" % (P + 2 * d + 1, S0 + k4 + d))
        for d in range(8):
            o = O + 2 * k4 + d
            a("v_fma_f32 v%d, v%d, v%d, v%d" % (o, P + d, T + 10, o))
    a("s_branch L_attn_store")
    a.label("L_attn_first")
    pub_base()
    a("buffer_store_dwordx2 %s, v%d, %s, s%d offen sc1" % (vr(T, 2), T + 11, sr(SP, 4), sT1))
    for k in range(16):
        if k and k % 4 == 0:
            a("s_add_u32 s%d, s%d, 4096" % (sT0, sT0))
        for j in range(8):
            a("v_mul_f32 v%d, v%d, v%d" % (O + 8 * k + j, O + 8 * k + j, T + 2))
        for j in range(4):
            a("v_cvt_pk_bf16_f32 v%d, v%d, v%d" % (S0 + 4 * k + j, O + 8 * k + 2 * j, O + 8 * k + 2 * j + 1))
        a("buffer_store_dwordx4 %s, v%d, %s, s%d offen offset:%d" % (vr(S0 + 4 * k, 4), T + 10, sr(SP, 4), sT0, 1024 * (k % 4)))
    a("s_branch L_attn_stored")
    a.label("L_attn_store")
    stamp(5)
    vTw, vTr, vPo = T + 4, T + 5, T + 6
    a("s_lshl_b32 s%d, s%d, 13" % (sT0, sW))
    a("s_add_u32 s%d, s%d, 0x20000" % (sT0, sT0))
    a("v_lshlrev_b32 v%d, 8, v%d" % (vTw, vL31))
    a("v_lshl_add_u32 v%d, v%d, 3, v%d" % (vTw, vHi, vTw))
    a("v_add_u32 v%d, s%d, v%d" % (vTw, sT0, vTw))
    a("v_and_b32 v%d, 15, v%d" % (T + 7, vL31))
    a("v_lshlrev_b32 v%d, 4, v%d" % (T + 7, T + 7))
    a("v_lshrrev_b32 v%d, 4, v%d" % (vTr, vLane))
    a("v_and_b32 v%d, 15, v%d" % (vPo, vLane))
    a("s_lshl_b32 s%d, s%d, 7" % (sT1, sQb))
    a("s_lshl_b32 s%d, s%d, 5" % (sPoff, sW))
    a("s_add_u32 s%d, s%d, s%d" % (sT1, sT1, sPoff))
    a("s_lshl_b32 s%d, s%d, 13" % (sT1, sT1))
    a("s_lshl_b32 s%d, s%d, 9" % (sPoff, sH))
    a("s_add_u32 s%d, s%d, s%d" % (sT1, sT1, sPoff))
    a("s_lshl_b32 s%d, s%d, 24" % (sPoff, sSlot))
    a("s_add_u32 s%d, s%d, s%d" % (sPoff, sPoff, sT1))
    a("v_lshlrev_b32 v%d, 13, v%d" % (T + 8, vTr))
    a("v_lshl_add_u32 v%d, v%d, 4, v%d" % (T + 8, vPo, T + 8))
    for hf in range(2):
        k = 0
        for dt in range(4):
            for g in range(4):
                r = O + 16 * (4 * hf + dt) + 4 * g
                c = P + 2 * (k % 8)
                k += 1
                for e in range(4):
                    a("v_mul_f32 v%d, v%d, v%d" % (r + e, r + e, T + 2))
                a("v_cvt_pk_bf16_f32 v%d, v%d, v%d" % (c, r, r + 1))
                a("v_cvt_pk_bf16_f32 v%d, v%d, v%d" % (c + 1, r + 2, r + 3))
                a("v_xor_b32 v%d, %d, v%d" % (T + 9, 16 * (4 * dt + g), T + 7))
                a("v_add_u32 v%d, v%d, v%d" % (T + 9, T + 9, vTw))
                a("ds_write_b64 v%d, %s" % (T + 9, vr(c, 2)))
        a("s_waitcnt lgkmcnt(0)")
        for i in range(8):
            a("v_add_u32 v%d, %d, v%d" % (T + 9, 4 * i, vTr))
            a("v_and_b32 v%d, 15, v%d" % (T + 10, T + 9))
            a("v_xor_b32 v%d, v%d, v%d" % (T + 10, T + 10, vPo))
            a("v_lshlrev_b32 v%d, 8, v%d" % (T + 9, T + 9))
            a("v_lshl_add_u32 v%d, v%d, 4, v%d" % (T + 9, T + 10, T + 9))
            a("v_add_u32 v%d, s%d, v%d" % (T + 9, sT0, T + 9))
            a("ds_read_b128 %s, v%d" % (vr(S0 + 4 * i, 4), T + 9))
        for i in range(8):
            a("s_waitcnt lgkmcnt(%d)" % (7 - i))
            a("s_add_u32 s%d, s%d, %d" % (sT1, sPoff, i * 4 * 8192 + hf * 256))
            a("buffer_store_dwordx4 %s, v%d, %s, s%d offen" % (vr(S0 + 4 * i, 4), T + 8, sr(SP, 4), sT1))
    a.label("L_attn_stored")
    a("s_cmp_lg_u32 s%d, 1" % sMg)
    a("s_cbranch_scc1 L_attn_nopub")
    a("s_waitcnt vmcnt(0)")
    a("s_barrier")
    a("s_cmp_lg_u32 s%d, 0" % sW)
    a("s_cbranch_scc1 L_attn_nopub")
    a("s_and_b32 s%d, s%d, 31" % (sT0, sPi))
    a("s_lshl_b32 s%d, 1, s%d" % (sT0, sT0))
    a("v_mov_b32 v%d, s%d" % (T + 4, sT0))
    a("v_mov_b32 v%d, 0" % (T + 3))
    a("s_lshr_b32 s%d, s%d, 5" % (sT1, sPi))
    a("s_lshl_b32 s%d, s%d, 2" % (sT1, sT1))
    a("s_mov_b64 s[46:47], exec")
    a("s_mov_b64 exec, 1")
    a("buffer_atomic_or v%d, v%d, %s, s%d offen" % (T + 4, T + 3, sr(SWO, 4), sT1))
    a("s_mov_b64 exec, s[46:47]")
    a.label("L_attn_nopub")
    stamp(6)
    stamp(7)
    if os.environ.get("EXP_STAMP2"):
        a("s_waitcnt vmcnt(0)")
        a("s_memtime s[80:81]")
        a("s_memrealtime s[82:83]")
        a("s_waitcnt lgkmcnt(0)")
        a("s_add_u32 s84, s50, 0x%x" % (200 * MB))
        a("s_addc_u32 s85, s51, 0")
        make_srd(a, 88, 84, 85, MB)
        for i in range(20):
            a("v_mov_b32 v%d, s%d" % (8 + i, 64 + i))
        a("s_lshl_b32 s86, s2, 8")
        a("s_lshl_b32 s87, s%d, 7" % sPart)
        a("s_add_u32 s86, s86, s87")
        a("v_mov_b32 v40, 0")
        a("s_nop 4")
        for i in range(5):
            a("buffer_store_dwordx4 v[%d:%d], v40, s[88:91], s86 offen offset:%d" % (8 + 4 * i, 11 + 4 * i, 16 * i))
    a("s_cmp_lt_i32 s%d, 0" % sItem2)
    a("s_cbranch_scc1 L_attn_end")
    a("s_mov_b32 s%d, s%d" % (sQb, sItem2))
    a("s_mov_b32 s%d, s%d" % (sNp, sItem2))
    a("s_mov_b32 s%d, 0" % sStart)
    a("s_mov_b32 s%d, 0" % sPart)
    a("s_mov_b32 s%d, -1" % sItem2)
    a("s_lshl_b32 s%d, s%d, 5" % (sT1, sW))
    a("v_add_u32 v%d, s%d, v%d" % (vq, sT1, vL31))
    a("v_lshlrev_b32 v%d, 2, v%d" % (t + 1, vHi))
    a("v_sub_u32 v%d, v%d, v%d" % (vq, vq, t + 1))
    a("v_mov_b32 v%d, 0x%08x" % (vm, f32bits(-1e30)))
    a("v_mov_b32 v%d, 0" % vl)
    a("v_mov_b32 v%d, 0" % vmc)
    for i in range(64):
        a("v_accvgpr_mov_b32 a%d, a%d" % (i, 96 + i))
    for i in range(128):
        a("v_mov_b32 v%d, 0" % (O + i))
    a("s_waitcnt vmcnt(0)")
    a("s_branch L_attn_go")
    a.label("L_attn_end")
    signal_done(a, sW, 88, T, "L_attn_sig", 16, 480)
    tl_end(a, 202)
    a("s_endpgm")
    for x in rare:
        emit(x)
    a.label("L_attn_conv")
    a("s_sub_u32 s2, s2, 256")
    a("s_cmp_ge_u32 s2, 224")
    a("s_cbranch_scc1 L_attn_final")
    gen_conv(a)
    a.label("L_attn_final")
    a("s_sub_u32 s2, s2, 224")
    gen_final(a)
    a.label("L_end_attn")
    return kernel_desc(name, 512, 256)


SPLIT_ROW = 1280

def gen_rowwork(a):
    SX, SG, SC, SML, SGT = 60, 64, 68, 72, 76
    sW, sT0, sT1, sR = 80, 81, 82, 83
    a("s_load_dwordx2 s[84:85], s[0:1], %d" % KA['A_q'])
    a("s_load_dwordx2 s[86:87], s[0:1], %d" % KA['gate_w'])
    a("s_load_dwordx2 s[88:89], s[0:1], %d" % KA['ws'])
    a("v_lshrrev_b32 v1, 6, v0")
    a("s_nop 0")
    a("v_readfirstlane_b32 s%d, v1" % sW)
    a("s_waitcnt lgkmcnt(0)")
    make_srd(a, SX, 84, 85, 2048 * 896)
    make_srd(a, SG, 86, 87, 896)
    a("s_add_u32 s90, s88, 0x%x" % WS_PART)
    a("s_addc_u32 s91, s89, 0")
    make_srd(a, SC, 90, 91, 32 * MB)
    a("s_add_u32 s90, s88, 0x%x" % WS_ML)
    a("s_addc_u32 s91, s89, 0")
    make_srd(a, SML, 90, 91, 2 * 16 * 2048 * 8)
    a("s_add_u32 s90, s88, 0x%x" % WS_GT)
    a("s_addc_u32 s91, s89, 0")
    make_srd(a, SGT, 90, 91, 2048 * 8)
    vLane, vA, vB, t = 1, 2, 3, 4
    CA, CB, MLr, GX, GW = 16, 40, 64, 88, 96
    a("v_and_b32 v%d, 63, v0" % vLane)
    a("s_mul_i32 s%d, s2, 3" % sR)
    a("s_add_u32 s%d, s%d, %d" % (sR, sR, SPLIT_ROW))
    a("v_lshlrev_b32 v%d, 4, v0" % vA)
    a("v_lshrrev_b32 v%d, 5, v0" % vB)
    a("v_lshlrev_b32 v%d, 14, v%d" % (vB, vB))
    for r in range(3):
        a("s_add_u32 s%d, s%d, %d" % (sT0, sR, r))
        a("s_lshl_b32 s%d, s%d, 13" % (sT1, sT0))
        for c in range(2):
            a("buffer_load_dwordx4 %s, v%d, %s, s%d offen" % (vr(CA + 8 * r + 4 * c, 4), vA, sr(SC, 4), sT1))
            a("s_add_u32 s%d, s%d, 0x1000" % (sT1, sT1))
        a("s_add_u32 s%d, s%d, 0x%x" % (sT1, sT1, 0x1000000 - 0x2000))
        for c in range(2):
            a("buffer_load_dwordx4 %s, v%d, %s, s%d offen" % (vr(CB + 8 * r + 4 * c, 4), vA, sr(SC, 4), sT1))
            a("s_add_u32 s%d, s%d, 0x1000" % (sT1, sT1))
        a("s_lshl_b32 s%d, s%d, 3" % (sT1, sT0))
        for c in range(2):
            for part in range(2):
                a("s_add_u32 s%d, s%d, %d" % (sT0, sT1, c * 8 * 16384 + part * 16 * 16384))
                a("buffer_load_dwordx2 %s, v%d, %s, s%d offen" % (vr(MLr + 8 * r + 4 * c + 2 * part, 2), vB, sr(SML, 4), sT0))
    a("v_cmp_gt_u32 vcc, 56, v%d" % vLane)
    a("s_and_saveexec_b64 s[92:93], vcc")
    a("v_lshlrev_b32 v%d, 4, v%d" % (t, vLane))
    a("s_lshl_b32 s%d, s2, 3" % sT0)
    a("s_lshl_b32 s%d, s%d, 1" % (sT1, sW))
    a("s_add_u32 s%d, s%d, s%d" % (sT0, sT0, sT1))
    a("s_mul_i32 s%d, s%d, 896" % (sT1, sT0))
    a("buffer_load_dwordx4 %s, v%d, %s, 0 offen" % (vr(GW, 4), t, sr(SG, 4)))
    a("buffer_load_dwordx4 %s, v%d, %s, s%d offen" % (vr(GX, 4), t, sr(SX, 4), sT1))
    a("buffer_load_dwordx4 %s, v%d, %s, s%d offen offset:896" % (vr(GX + 4, 4), t, sr(SX, 4), sT1))
    a("s_waitcnt vmcnt(0)")
    Z = 100
    for r in range(2):
        z = Z + r
        a("v_mov_b32 v%d, 0" % z)
        for i in range(4):
            a("v_lshlrev_b32 v%d, 16, v%d" % (t, GX + 4 * r + i))
            a("v_and_b32 v%d, 0xffff0000, v%d" % (t + 1, GX + 4 * r + i))
            a("v_lshlrev_b32 v%d, 16, v%d" % (t + 2, GW + i))
            a("v_and_b32 v%d, 0xffff0000, v%d" % (t + 3, GW + i))
            a("v_mul_f32 v%d, v%d, v%d" % (t, t, t + 2))
            a("v_mul_f32 v%d, v%d, v%d" % (t + 1, t + 1, t + 3))
            a("v_cvt_pk_bf16_f32 v%d, v%d, v%d" % (t + 2, t, t + 1))
            a("v_lshlrev_b32 v%d, 16, v%d" % (t, t + 2))
            a("v_and_b32 v%d, 0xffff0000, v%d" % (t + 1, t + 2))
            a("v_add_f32 v%d, v%d, v%d" % (z, z, t))
            a("v_add_f32 v%d, v%d, v%d" % (z, z, t + 1))
    a("s_mov_b64 exec, s[92:93]")
    a("s_nop 1")
    for r in range(2):
        a("v_cndmask_b32 v%d, 0, v%d, vcc" % (Z + r, Z + r))
    for off in (0x041F, 0x081F, 0x101F, 0x201F, 0x401F):
        for r in range(2):
            a("ds_swizzle_b32 v%d, v%d offset:0x%x" % (Z + 2 + r, Z + r, off))
        a("s_waitcnt lgkmcnt(0)")
        for r in range(2):
            a("v_add_f32 v%d, v%d, v%d" % (Z + r, Z + r, Z + 2 + r))
    for r in range(2):
        a("v_mov_b32 v%d, v%d" % (Z + 2 + r, Z + r))
    a("s_nop 1")
    for r in range(2):
        a("v_permlane32_swap_b32 v%d, v%d" % (Z + 2 + r, Z + r))
    for r in range(2):
        a("v_add_f32 v%d, v%d, v%d" % (Z + r, Z + r, Z + 2 + r))
    a("v_cmp_eq_u32 vcc, 1, v%d" % vLane)
    a("s_nop 1")
    z, p = t, t + 1
    a("v_cndmask_b32 v%d, v%d, v%d, vcc" % (z, Z, Z + 1))
    a("v_cvt_pk_bf16_f32 v%d, v%d, v%d" % (p, z, z))
    a("v_lshlrev_b32 v%d, 16, v%d" % (z, p))
    a("v_mul_f32 v%d, 0x%08x, v%d" % (z, f32bits(-LOG2E), z))
    a("v_exp_f32 v%d, v%d" % (z, z))
    a("s_nop 0")
    a("v_add_f32 v%d, 1.0, v%d" % (z, z))
    a("v_rcp_f32 v%d, v%d" % (z, z))
    a("s_nop 0")
    a("v_cvt_pk_bf16_f32 v%d, v%d, v%d" % (p, z, z))
    a("v_lshlrev_b32 v%d, 16, v%d" % (t + 2, p))
    a("v_sub_f32 v%d, 1.0, v%d" % (z, t + 2))
    a("v_cvt_pk_bf16_f32 v%d, v%d, v%d" % (p, z, z))
    a("v_lshlrev_b32 v%d, 16, v%d" % (t + 3, p))
    a("v_lshlrev_b32 v%d, 3, v%d" % (t + 4, vLane))
    a("s_lshl_b32 s%d, s%d, 3" % (sT0, sT0))
    a("v_cmp_gt_u32 vcc, 2, v%d" % vLane)
    a("s_and_saveexec_b64 s[92:93], vcc")
    a("buffer_store_dwordx2 %s, v%d, %s, s%d offen" % (vr(t + 2, 2), t + 4, sr(SGT, 4), sT0))
    a("s_mov_b64 exec, s[92:93]")
    W = 104
    for k in range(6):
        mA, lA, mB, lB = MLr + 4 * k, MLr + 4 * k + 1, MLr + 4 * k + 2, MLr + 4 * k + 3
        a("v_max_f32 v%d, v%d, v%d" % (t, mA, mB))
        a("v_sub_f32 v%d, v%d, v%d" % (mA, mA, t))
        a("v_sub_f32 v%d, v%d, v%d" % (mB, mB, t))
        a("v_exp_f32 v%d, v%d" % (mA, mA))
        a("v_exp_f32 v%d, v%d" % (mB, mB))
        a("s_nop 0")
        a("v_mul_f32 v%d, v%d, v%d" % (mA, mA, lA))
        a("v_mul_f32 v%d, v%d, v%d" % (mB, mB, lB))
        a("v_add_f32 v%d, v%d, v%d" % (t, mA, mB))
        a("v_rcp_f32 v%d, v%d" % (t, t))
        a("s_nop 0")
        a("v_mul_f32 v%d, v%d, v%d" % (W + 2 * k, mA, t))
        a("v_mul_f32 v%d, v%d, v%d" % (W + 2 * k + 1, mB, t))
    U = 116
    for k in range(6):
        ra, rb = CA + 4 * k, CB + 4 * k
        for d in range(4):
            a("v_lshlrev_b32 v%d, 16, v%d" % (U + 4 * d, ra + d))
            a("v_and_b32 v%d, 0xffff0000, v%d" % (U + 4 * d + 1, ra + d))
            a("v_lshlrev_b32 v%d, 16, v%d" % (U + 4 * d + 2, rb + d))
            a("v_and_b32 v%d, 0xffff0000, v%d" % (U + 4 * d + 3, rb + d))
        for d in range(4):
            a("v_mul_f32 v%d, v%d, v%d" % (U + 4 * d, U + 4 * d, W + 2 * k))
            a("v_mul_f32 v%d, v%d, v%d" % (U + 4 * d + 1, U + 4 * d + 1, W + 2 * k))
        for d in range(4):
            a("v_fma_f32 v%d, v%d, v%d, v%d" % (U + 4 * d, U + 4 * d + 2, W + 2 * k + 1, U + 4 * d))
            a("v_fma_f32 v%d, v%d, v%d, v%d" % (U + 4 * d + 1, U + 4 * d + 3, W + 2 * k + 1, U + 4 * d + 1))
        for d in range(4):
            a("v_cvt_pk_bf16_f32 v%d, v%d, v%d" % (ra + d, U + 4 * d, U + 4 * d + 1))
        r, c = k // 2, k % 2
        a("s_add_u32 s%d, s%d, %d" % (sT0, sR, r))
        a("s_lshl_b32 s%d, s%d, 13" % (sT0, sT0))
        a("s_add_u32 s%d, s%d, %d" % (sT0, sT0, c * 0x1000))
        a("buffer_store_dwordx4 %s, v%d, %s, s%d offen" % (vr(ra, 4), vA, sr(SC, 4), sT0))
    a("s_nop 1")


def gen_conv(a):
    RS = 5952
    WSZ = 8 * RS
    HOFF = WSZ
    YOFF = WSZ + 4640
    CST = 56576
    SU, SH, SY = 4, 12, 16
    sW, sD0, sT0, sT1 = 20, 21, 22, 23
    sDD = 32
    a("s_cmp_ge_u32 s2, 224")
    a("s_cbranch_scc1 L_conv_end")
    a("s_load_dwordx2 s[46:47], s[0:1], %d" % KA['ssm_k'])
    a("s_load_dwordx2 s[48:49], s[0:1], %d" % KA['ssm_D'])
    a("s_load_dwordx2 s[50:51], s[0:1], %d" % KA['ws'])
    a("v_lshrrev_b32 v1, 6, v0")
    a("s_nop 0")
    a("v_readfirstlane_b32 s%d, v1" % sW)
    a("s_lshl_b32 s%d, s2, 1" % sD0)
    a("s_waitcnt lgkmcnt(0)")
    make_srd(a, SH, 46, 47, 448 * 4096)
    a("s_add_u32 s52, s50, 0x%x" % WS_UT)
    a("s_addc_u32 s53, s51, 0")
    make_srd(a, SU, 52, 53, 448 * 4096)
    a("s_add_u32 s50, s50, 0x%x" % WS_A)
    a("s_addc_u32 s51, s51, 0")
    make_srd(a, SY, 50, 51, 448 * 4096)
    vTid = 0
    vt = 140
    H, UO, UP = 144, 152, 160
    a("v_lshlrev_b32 v%d, 4, v%d" % (vt, vTid))
    a("s_lshl_b32 s%d, s2, 2" % sT0)
    a("s_load_dword s56, s[48:49], s%d" % sT0)
    a("v_subrev_u32 v%d, 16, v%d" % (vt + 1, vt))
    a("v_max_i32 v%d, 0, v%d" % (vt + 1, vt + 1))
    for c in range(2):
        a("s_add_u32 s%d, s%d, %d" % (sT1, sD0, c))
        a("s_lshl_b32 s%d, s%d, 12" % (sT1, sT1))
        a("buffer_load_dwordx4 %s, v%d, %s, s%d offen" % (vr(H + 4 * c, 4), vt, sr(SH, 4), sT1))
        a("buffer_load_dwordx4 %s, v%d, %s, s%d offen" % (vr(UO + 4 * c, 4), vt, sr(SU, 4), sT1))
        a("buffer_load_dwordx4 %s, v%d, %s, s%d offen" % (vr(UP + 4 * c, 4), vt + 1, sr(SU, 4), sT1))
    for i in range(4):
        a("v_mov_b32 v%d, 0" % (168 + i))
    a("v_add_u32 v%d, %d, v%d" % (vt + 2, 14 * 4096, vt))
    for i in range(28):
        a("ds_write_b128 v%d, v[168:171] offset:%d" % (vt if i < 14 else vt + 2, (i % 14) * 4096))
    a("s_waitcnt vmcnt(0) lgkmcnt(0)")
    a("s_lshl_b32 s%d, s56, 16" % sDD)
    a("s_and_b32 s%d, s56, 0xffff0000" % (sDD + 1))
    a("s_barrier")
    a("v_cmp_eq_u32 vcc, 0, v%d" % vTid)
    a("s_nop 1")
    for i in range(8):
        a("v_cndmask_b32 v%d, v%d, 0, vcc" % (UP + i, UP + i))
    a("v_add_u32 v%d, %d, v%d" % (vt + 2, CST, vt))
    a("ds_write_b128 v%d, %s offset:%d" % (vt, vr(H, 4), HOFF + 512))
    a("ds_write_b128 v%d, %s offset:%d" % (vt + 2, vr(H + 4, 4), HOFF + 512))
    x0, x1, p, y0, y1 = 104, 105, 106, 107, 108
    a("v_lshlrev_b32 v%d, 3, v%d" % (x0, vTid))
    a("v_sub_u32 v%d, 2048, v%d" % (x0, x0))
    a("v_lshrrev_b32 v%d, 8, v%d" % (x1, x0))
    a("v_lshlrev_b32 v%d, 1, v%d" % (x0, x0))
    a("v_lshl_add_u32 v%d, v%d, 4, v%d" % (x0, x1, x0))
    a("v_add_u32 v%d, %d, v%d" % (x1, CST, x0))
    a("s_mov_b32 s57, 0xffff")

    def build(prev, own, dst, r):
        d = lambda j: (prev + j) if j < 4 else (own + j - 4)
        for k in range(4):
            j = 8 + r - 2 * k
            if j & 1:
                a("v_alignbit_b32 v%d, v%d, v%d, 16" % (dst + k, d((j - 1) // 2), d((j - 1) // 2)))
            else:
                a("v_bfi_b32 v%d, s57, v%d, v%d" % (dst + k, d(j // 2), d(j // 2 - 1)))
    k = 0
    for c in range(2):
        for r in range(8):
            dst = 112 + 4 * (k % 4)
            k += 1
            build(UP + 4 * c, UO + 4 * c, dst, r)
            a("ds_write_b128 v%d, %s offset:%d" % (x0 if c == 0 else x1, vr(dst, 4), r * RS))
    a("v_cmp_eq_u32 vcc, 255, v%d" % vTid)
    a("s_and_saveexec_b64 s[58:59], vcc")
    a("v_mov_b32 v%d, 0" % y0)
    a("v_mov_b32 v%d, %d" % (y1, CST))
    for c in range(2):
        for r in range(7):
            dst = 112 + 4 * (k % 4)
            k += 1
            build(UO + 4 * c, 168, dst, r)
            a("ds_write_b128 v%d, %s offset:%d" % (y0 if c == 0 else y1, vr(dst, 4), r * RS))
    a("s_mov_b64 exec, s[58:59]")
    a("s_waitcnt lgkmcnt(0)")
    a("s_barrier")
    vLane, vHi, vL31, vA, vB, vY = 128, 129, 130, 131, 132, 133
    a("v_and_b32 v%d, 63, v%d" % (vLane, vTid))
    a("v_lshrrev_b32 v%d, 5, v%d" % (vHi, vLane))
    a("v_and_b32 v%d, 31, v%d" % (vL31, vLane))
    a("s_lshr_b32 s%d, s%d, 1" % (sT0, sW))
    a("s_mul_i32 s%d, s%d, %d" % (sT0, sT0, CST))
    a("s_and_b32 s%d, s%d, 1" % (sT1, sW))
    a("v_add_u32 v%d, v%d, v%d" % (vA, vL31, vHi))
    a("v_lshlrev_b32 v%d, 4, v%d" % (vA, vA))
    a("v_add_u32 v%d, s%d, v%d" % (vA, sT0, vA))
    a("v_lshrrev_b32 v%d, 2, v%d" % (vB, vL31))
    a("v_mul_u32_u24 v%d, %d, v%d" % (vB, RS, vB))
    a("v_and_b32 v%d, 3, v%d" % (x0, vL31))
    a("s_lshl_b32 s%d, s%d, 2" % (34, sT1))
    a("v_add_u32 v%d, s34, v%d" % (x0, x0))
    a("v_mul_u32_u24 v%d, 528, v%d" % (x1, x0))
    a("v_sub_u32 v%d, v%d, v%d" % (vB, vB, x1))
    a("v_lshl_add_u32 v%d, v%d, 4, v%d" % (vB, vHi, vB))
    a("s_add_u32 s35, s%d, %d" % (sT0, 3584 + 112))
    a("v_add_u32 v%d, s35, v%d" % (vB, vB))
    a("v_lshlrev_b32 v%d, 8, v%d" % (vY, x0))
    a("v_lshl_add_u32 v%d, v%d, 5, v%d" % (vY, vHi, vY))
    a("v_lshrrev_b32 v%d, 2, v%d" % (x1, vL31))
    a("v_add_u32 v%d, v%d, v%d" % (vY, vY, x1))
    a("v_lshlrev_b32 v%d, 1, v%d" % (vY, vY))
    a("v_add_u32 v%d, s%d, v%d" % (vY, sT0, vY))
    ACC, RA, RB = 16, 32, 64
    DD = 6

    def rd(n):
        a("ds_read_b128 %s, v%d offset:%d" % (vr(RA + 4 * (n % 8), 4), vA, HOFF + 32 * n))
        a("ds_read_b128 %s, v%d offset:%d" % (vr(RB + 4 * (n % 8), 4), vB, 32 * n + 16 * (n >> 4)))
    acc = vr(ACC, 16)
    for i in range(16):
        a("v_mov_b32 v%d, 0" % (ACC + i))
    for n in range(DD):
        rd(n)
    a("s_lshl_b32 s34, s%d, 2" % sT1)
    a("s_add_u32 s34, s34, 4")
    a.label("L_conv_loop")
    for n in range(16):
        a("s_waitcnt lgkmcnt(%d)" % (2 * (DD - 1)))
        a("v_mfma_f32_32x32x16_bf16 %s, %s, %s, %s" % (acc, vr(RA + 4 * (n % 8), 4), vr(RB + 4 * (n % 8), 4), acc))
        rd(n + DD)
    a("v_add_u32 v%d, 512, v%d" % (vA, vA))
    a("v_add_u32 v%d, 528, v%d" % (vB, vB))
    a("s_sub_u32 s34, s34, 1")
    a("s_cmp_lg_u32 s34, 0")
    a("s_cbranch_scc1 L_conv_loop")
    a("s_waitcnt lgkmcnt(0)")
    a("v_mfma_f32_32x32x16_bf16 %s, %s, %s, %s" % (acc, vr(RA, 4), vr(RB, 4), acc))
    a.label("L_conv_join")
    a("s_nop 15")
    for g in range(4):
        for e in range(0, 4, 2):
            r = ACC + 4 * g + e
            a("v_cvt_pk_bf16_f32 v%d, v%d, v%d" % (p, r, r + 1))
            a("ds_write_b16 v%d, v%d offset:%d" % (vY, p, YOFF + 16 * (8 * g + e)))
            a("ds_write_b16_d16_hi v%d, v%d offset:%d" % (vY, p, YOFF + 16 * (8 * g + e + 1)))
    a("s_waitcnt lgkmcnt(0)")
    a("s_barrier")
    a("ds_read_b128 v[64:67], v%d offset:%d" % (vt, YOFF))
    a("ds_read_b128 v[72:75], v%d offset:%d" % (vt + 2, YOFF))
    a("s_waitcnt lgkmcnt(0)")

    def rnd():
        a("v_cvt_pk_bf16_f32 v%d, v%d, v%d" % (p, x0, x1))
        a("v_lshlrev_b32 v%d, 16, v%d" % (x0, p))
        a("v_and_b32 v%d, 0xffff0000, v%d" % (x1, p))
    for c in range(2):
        Y, Uu = 64 + 8 * c, UO + 4 * c
        for i in range(4):
            a("v_lshlrev_b32 v%d, 16, v%d" % (x0, Uu + i))
            a("v_and_b32 v%d, 0xffff0000, v%d" % (x1, Uu + i))
            a("v_mul_f32 v%d, s%d, v%d" % (x0, sDD + c, x0))
            a("v_mul_f32 v%d, s%d, v%d" % (x1, sDD + c, x1))
            rnd()
            a("v_lshlrev_b32 v%d, 16, v%d" % (y0, Y + i))
            a("v_and_b32 v%d, 0xffff0000, v%d" % (y1, Y + i))
            a("v_add_f32 v%d, v%d, v%d" % (x0, x0, y0))
            a("v_add_f32 v%d, v%d, v%d" % (x1, x1, y1))
            a("v_cvt_pk_bf16_f32 v%d, v%d, v%d" % (Y + i, x0, x1))
        a("s_add_u32 s%d, s%d, %d" % (sT0, sD0, c))
        a("s_lshl_b32 s%d, s%d, 12" % (sT0, sT0))
        a("buffer_store_dwordx4 %s, v%d, %s, s%d offen" % (vr(Y, 4), vt, sr(SY, 4), sT0))
    signal_done(a, sW, 88, 100, "L_conv_sig", 16, 480)
    tl_end(a, 202)
    a.label("L_conv_end")
    a("s_endpgm")


SPLIT_ROW = 1280


def gen_final(a):
    SX, SGT, SC, SY, SO, SWO = 4, 8, 12, 16, 20, 36
    sW, sQ0, sM0, sT0, sT1, sKA, sKB, sMB, sCnt = 24, 25, 26, 27, 28, 29, 30, 31, 52
    a("s_cmp_ge_u32 s2, 224")
    a("s_cbranch_scc1 L_fin_end")
    a("s_load_dwordx2 s[40:41], s[0:1], %d" % KA['A_q'])
    a("s_load_dwordx2 s[44:45], s[0:1], %d" % KA['ws'])
    a("s_load_dwordx2 s[46:47], s[0:1], %d" % KA['out'])
    a("s_load_dwordx2 s[50:51], s[0:1], %d" % KA['w_o'])
    a("v_lshrrev_b32 v1, 6, v0")
    a("s_nop 0")
    a("v_readfirstlane_b32 s%d, v1" % sW)
    a("s_and_b32 s%d, s2, 7" % sT0)
    a("s_lshr_b32 s%d, s2, 3" % sT1)
    a("s_and_b32 s%d, s%d, 3" % (sQ0, sT1))
    a("s_lshl_b32 s%d, s%d, 3" % (sQ0, sQ0))
    a("s_add_u32 s%d, s%d, s%d" % (sQ0, sQ0, sT0))
    a("s_lshl_b32 s%d, s%d, 6" % (sQ0, sQ0))
    a("s_lshr_b32 s%d, s%d, 2" % (sM0, sT1))
    a("s_lshl_b32 s%d, s%d, 6" % (sM0, sM0))
    a("s_waitcnt lgkmcnt(0)")
    make_srd(a, SX, 40, 41, 2048 * 896)
    a("s_add_u32 s48, s44, 0x%x" % WS_PART)
    a("s_addc_u32 s49, s45, 0")
    make_srd(a, SC, 48, 49, 16 * MB)
    a("s_add_u32 s48, s44, 0x%x" % WS_A)
    a("s_addc_u32 s49, s45, 0")
    make_srd(a, SY, 48, 49, 448 * 4096)
    a("s_add_u32 s48, s44, 0x%x" % WS_GT)
    a("s_addc_u32 s49, s45, 0")
    make_srd(a, SGT, 48, 49, 2048 * 8)
    make_srd(a, SO, 46, 47, 2048 * 896)
    make_srd(a, SWO, 50, 51, 4096 * 896)
    NS = 4
    FC, FW = [0, 32], [16, 48]
    vAg, vBg, vCr, vWr = 64, 68, 72, 76
    vLane, vHi, vL31 = 80, 81, 82
    t = 84
    a("v_and_b32 v%d, 63, v0" % vLane)
    a("v_lshrrev_b32 v%d, 5, v%d" % (vHi, vLane))
    a("v_and_b32 v%d, 31, v%d" % (vL31, vLane))
    a("v_lshrrev_b32 v%d, 4, v%d" % (t, vLane))
    a("v_and_b32 v%d, 15, v%d" % (t + 1, vLane))
    a("s_lshl_b32 s%d, s%d, 4" % (sT0, sW))
    a("s_add_u32 s%d, s%d, s%d" % (sT0, sT0, sQ0))
    for n in range(4):
        a("v_add_u32 v%d, %d, v%d" % (t + 2, 4 * n, t))
        a("v_xor_b32 v%d, v%d, v%d" % (t + 3, t + 2, t + 1))
        a("v_add_u32 v%d, s%d, v%d" % (t + 2, sT0, t + 2))
        a("v_lshlrev_b32 v%d, 13, v%d" % (t + 2, t + 2))
        a("v_lshl_add_u32 v%d, v%d, 4, v%d" % (vAg + n, t + 3, t + 2))
    a("v_lshrrev_b32 v%d, 3, v%d" % (t, vLane))
    a("s_lshl_b32 s%d, s%d, 5" % (sT0, sW))
    a("v_add_u32 v%d, s%d, v%d" % (t, sT0, t))
    a("v_mul_u32_u24 v%d, 896, v%d" % (t, t))
    a("v_bfe_u32 v%d, v%d, 4, 1" % (t + 1, vLane))
    a("v_lshlrev_b32 v%d, 2, v%d" % (t + 1, t + 1))
    a("v_and_b32 v%d, 7, v%d" % (t + 2, vLane))
    a("v_xor_b32 v%d, v%d, v%d" % (t + 1, t + 1, t + 2))
    a("v_lshl_add_u32 v%d, v%d, 4, v%d" % (t, t + 1, t))
    a("s_lshl_b32 s%d, s%d, 1" % (sT0, sM0))
    a("v_add_u32 v%d, s%d, v%d" % (t, sT0, t))
    for n in range(4):
        a("v_add_u32 v%d, %d, v%d" % (vBg + n, n * 8 * 896, t))
    a("s_lshl_b32 s%d, s%d, 1" % (sT0, sW))
    a("v_add_u32 v%d, s%d, v%d" % (t, sT0, vHi))
    a("v_and_b32 v%d, 15, v%d" % (t + 1, vL31))
    a("v_xor_b32 v%d, v%d, v%d" % (t, t, t + 1))
    a("v_lshlrev_b32 v%d, 8, v%d" % (t + 2, vL31))
    a("v_lshl_add_u32 v%d, v%d, 4, v%d" % (vCr, t, t + 2))
    a("v_xor_b32 v%d, 8, v%d" % (t, t))
    a("v_lshl_add_u32 v%d, v%d, 4, v%d" % (vCr + 1, t, t + 2))
    a("v_add_u32 v%d, 0x10000, v%d" % (vCr + 2, vCr))
    a("v_add_u32 v%d, 0x10000, v%d" % (vCr + 3, vCr + 1))
    a("v_bfe_u32 v%d, v%d, 2, 2" % (t, vLane))
    a("v_lshl_add_u32 v%d, v%d, 3, v%d" % (t, vHi, t))
    a("s_lshl_b32 s%d, s%d, 4" % (sT0, sW))
    a("v_add_u32 v%d, s%d, v%d" % (t, sT0, t))
    a("v_lshlrev_b32 v%d, 7, v%d" % (t, t))
    a("v_bfe_u32 v%d, v%d, 3, 1" % (t + 1, vLane))
    a("v_lshl_add_u32 v%d, v%d, 6, v%d" % (t, t + 1, t))
    a("v_bfe_u32 v%d, v%d, 4, 1" % (t + 1, vLane))
    a("v_lshl_add_u32 v%d, v%d, 5, v%d" % (t, t + 1, t))
    a("v_and_b32 v%d, 3, v%d" % (t + 1, vLane))
    a("v_lshl_add_u32 v%d, v%d, 3, v%d" % (t, t + 1, t))
    a("v_add_u32 v%d, 0x4000, v%d" % (vWr, t))
    a("v_xor_b32 v%d, 64, v%d" % (vWr + 1, vWr))
    a("v_add_u32 v%d, 0x10000, v%d" % (vWr + 2, vWr))
    a("v_add_u32 v%d, 0x10000, v%d" % (vWr + 3, vWr + 1))
    a("s_lshl_b32 s%d, s%d, 12" % (sMB, sW))
    a("s_mov_b32 s%d, 0" % sKA)
    a("s_mov_b32 s%d, 0" % sKB)

    vm = []

    def issueA(tile):
        st = tile % NS
        l = []
        for n in range(4):
            l.append("s_add_u32 m0, s%d, %d" % (sMB, st * 32768 + n * 1024))
            l.append("buffer_load_dwordx4 v%d, %s, s%d offen sc1 lds" % (vAg + n, sr(SC, 4), sKA))
            vm.append(tile)
        l.append("s_add_u32 s%d, s%d, 256" % (sKA, sKA))
        return l

    def issueB(tile):
        st = tile % NS
        l = []
        for n in range(4):
            l.append("s_add_u32 m0, s%d, %d" % (sMB, st * 32768 + 16384 + n * 1024))
            l.append("buffer_load_dwordx4 v%d, %s, s%d offen lds" % (vBg + n, sr(SWO, 4), sKB))
            vm.append(tile)
        l.append("s_add_u32 s%d, s%d, %d" % (sKB, sKB, 128 * 896))
        return l

    def issue(tile):
        return issueA(tile) + issueB(tile)

    def need(tile):
        last = max(i for i, t_ in enumerate(vm) if t_ == tile)
        return min(63, len(vm) - 1 - last)

    def reads(tile):
        st = tile % NS
        fs = tile & 1
        hi2 = 2 * (st >> 1)
        l = []
        for k2 in range(2):
            for qh in range(2):
                l.append("ds_read_b128 %s, v%d offset:%d" % (vr(FC[fs] + 8 * k2 + 4 * qh, 4), vCr + hi2 + k2, (st & 1) * 32768 + qh * 8192))
            for mh in range(2):
                for j in range(2):
                    l.append("ds_read_b64_tr_b16 %s, v%d offset:%d" % (vr(FW[fs] + 8 * k2 + 4 * mh + 2 * j, 2), vWr + hi2 + mh, (st & 1) * 32768 + k2 * 8192 + j * 512))
        return l

    def mf(tile, first):
        fs = tile & 1
        l = []
        for k2 in range(2):
            for mh in range(2):
                for qh in range(2):
                    acc = ar(16 * (2 * mh + qh), 16)
                    l.append("v_mfma_f32_32x32x16_bf16 %s, %s, %s, %s" % (acc, vr(FW[fs] + 8 * k2 + 4 * mh, 4), vr(FC[fs] + 8 * k2 + 4 * qh, 4), "0" if (first and k2 == 0) else acc))
        return l
    def stamp(i):
        if os.environ.get("EXP_STAMP3"):
            a("s_memtime s[%d:%d]" % (64 + 2 * i, 65 + 2 * i))
    for tl in range(3):
        for x in issueB(tl):
            a(x)
    a("s_lshr_b32 s%d, s%d, 1" % (sT0, sW))
    a("s_lshl_b32 s%d, s%d, 5" % (sT0, sT0))
    a("s_add_u32 s%d, s%d, s%d" % (sT0, sT0, sM0))
    a("s_and_b32 s%d, s%d, 1" % (sT1, sW))
    a("s_lshl_b32 s%d, s%d, 5" % (sT1, sT1))
    a("s_add_u32 s%d, s%d, s%d" % (sT1, sT1, sQ0))
    a("v_add_u32 v%d, s%d, v%d" % (t, sT1, vL31))
    a("v_lshlrev_b32 v%d, 3, v%d" % (t + 5, t))
    XR, YR, GG = 96, 104, 120
    a("buffer_load_dwordx2 %s, v%d, %s, 0 offen" % (vr(GG, 2), t + 5, sr(SGT, 4)))
    a("v_mul_u32_u24 v%d, 896, v%d" % (t + 1, t))
    a("v_lshl_add_u32 v%d, v%d, 3, v%d" % (t + 1, vHi, t + 1))
    a("s_lshl_b32 s54, s%d, 1" % sT0)
    for g in range(4):
        a("buffer_load_dwordx2 %s, v%d, %s, s54 offen offset:%d" % (vr(XR + 2 * g, 2), t + 1, sr(SX, 4), 16 * g))
    a("v_lshlrev_b32 v%d, 1, v%d" % (t + 2, t))
    a("v_lshl_add_u32 v%d, v%d, 14, v%d" % (t + 2, vHi, t + 2))
    a("s_lshl_b32 s55, s%d, 12" % sT0)
    wait_count(a, sW, 88, t + 6, "L_fin_poll", 40, 1)
    tl_mid(a)

    def stamp(i):
        if os.environ.get("EXP_STAMP3"):
            a("s_memtime s[%d:%d]" % (64 + 2 * i, 65 + 2 * i))
    vm.clear()
    for tl in range(3):
        for x in issueA(tl):
            a(x)
    for g in range(4):
        for e in range(4):
            a("s_add_u32 s53, s55, %d" % ((8 * g + e) * 4096))
            a("buffer_load_ushort v%d, v%d, %s, s53 offen sc1" % (YR + 4 * g + e, t + 2, sr(SY, 4)))
            vm.append(-1)
    NT = 32
    a("s_waitcnt vmcnt(%d)" % need(0))
    a("s_barrier")
    for x in reads(0):
        a(x)
    def tile(tl):
        fill = []
        a("s_waitcnt lgkmcnt(0)")
        if tl + 1 < NT:
            a("s_waitcnt vmcnt(%d)" % need(tl + 1))
            a("s_barrier")
            fill += reads(tl + 1)
            if tl + 3 < NT:
                fill += issue(tl + 3)
        for x in interleave(mf(tl, tl == 0), fill, per=4):
            a(x)
    for tl in range(4):
        tile(tl)
    a("s_mov_b32 s%d, 6" % sCnt)
    a.label("L_fin_loop")
    for tl in range(4, 8):
        tile(tl)
    a("s_sub_u32 s%d, s%d, 1" % (sCnt, sCnt))
    a("s_cmp_lg_u32 s%d, 0" % sCnt)
    a("s_cbranch_scc1 L_fin_loop")
    for tl in range(8, 28):
        for _ in range(8):
            vm.append(tl + 3)
    for tl in range(28, 32):
        tile(tl)
    stamp(5)
    a("s_barrier")
    a("s_nop 7")
    a("s_lshl_b32 s%d, s%d, 14" % (sT0, sW))
    a("v_lshlrev_b32 v%d, 4, v%d" % (t + 3, vLane))
    a("v_add_u32 v%d, s%d, v%d" % (t + 4, sT0, t + 3))
    for q4 in range(16):
        a("ds_write_b128 v%d, %s offset:%d" % (t + 4, ar(4 * q4, 4), q4 * 1024))
    a("s_waitcnt lgkmcnt(0)")
    a("s_barrier")
    a("s_lshl_b32 s%d, s%d, 12" % (sT0, sW))
    a("v_add_u32 v%d, s%d, v%d" % (t + 4, sT0, t + 3))
    for w2 in range(4):
        for r4 in range(4):
            a("ds_read_b128 %s, v%d offset:%d" % (vr(16 * w2 + 4 * r4, 4), t + 4, w2 * 16384 + r4 * 1024))
    a("s_waitcnt lgkmcnt(0)")
    for r in range(16):
        a("v_add_f32 v%d, v%d, v%d" % (r, r, 16 + r))
        a("v_add_f32 v%d, v%d, v%d" % (32 + r, 32 + r, 48 + r))
        a("v_add_f32 v%d, v%d, v%d" % (r, r, 32 + r))
    gg, omg = GG, GG + 1
    X0, X1, PP, Y0, Y1 = 122, 130, 138, 146, 154
    ch = [(g, e) for g in range(4) for e in (0, 2)]

    def st(fmt):
        for k, (g, e) in enumerate(ch):
            a(fmt(k, g, e))
    st(lambda k, g, e: "v_lshlrev_b32 v%d, 16, v%d" % (X0 + k, XR + 2 * g + e // 2))
    st(lambda k, g, e: "v_and_b32 v%d, 0xffff0000, v%d" % (X1 + k, XR + 2 * g + e // 2))
    st(lambda k, g, e: "v_lshlrev_b32 v%d, 16, v%d" % (Y0 + k, YR + 4 * g + e))
    st(lambda k, g, e: "v_lshlrev_b32 v%d, 16, v%d" % (Y1 + k, YR + 4 * g + e + 1))
    st(lambda k, g, e: "v_mul_f32 v%d, v%d, v%d" % (X0 + k, X0 + k, Y0 + k))
    st(lambda k, g, e: "v_mul_f32 v%d, v%d, v%d" % (X1 + k, X1 + k, Y1 + k))
    st(lambda k, g, e: "v_cvt_pk_bf16_f32 v%d, v%d, v%d" % (PP + k, X0 + k, X1 + k))
    st(lambda k, g, e: "v_lshlrev_b32 v%d, 16, v%d" % (X0 + k, PP + k))
    st(lambda k, g, e: "v_and_b32 v%d, 0xffff0000, v%d" % (X1 + k, PP + k))
    st(lambda k, g, e: "v_mul_f32 v%d, v%d, v%d" % (X0 + k, X0 + k, gg))
    st(lambda k, g, e: "v_mul_f32 v%d, v%d, v%d" % (X1 + k, X1 + k, gg))
    st(lambda k, g, e: "v_cvt_pk_bf16_f32 v%d, v%d, v%d" % (PP + k, X0 + k, X1 + k))
    st(lambda k, g, e: "v_lshlrev_b32 v%d, 16, v%d" % (Y0 + k, PP + k))
    st(lambda k, g, e: "v_and_b32 v%d, 0xffff0000, v%d" % (Y1 + k, PP + k))
    st(lambda k, g, e: "v_cvt_pk_bf16_f32 v%d, v%d, v%d" % (PP + k, 4 * g + e, 4 * g + e + 1))
    st(lambda k, g, e: "v_lshlrev_b32 v%d, 16, v%d" % (X0 + k, PP + k))
    st(lambda k, g, e: "v_and_b32 v%d, 0xffff0000, v%d" % (X1 + k, PP + k))
    st(lambda k, g, e: "v_mul_f32 v%d, v%d, v%d" % (X0 + k, X0 + k, omg))
    st(lambda k, g, e: "v_mul_f32 v%d, v%d, v%d" % (X1 + k, X1 + k, omg))
    st(lambda k, g, e: "v_cvt_pk_bf16_f32 v%d, v%d, v%d" % (PP + k, X0 + k, X1 + k))
    st(lambda k, g, e: "v_lshlrev_b32 v%d, 16, v%d" % (X0 + k, PP + k))
    st(lambda k, g, e: "v_and_b32 v%d, 0xffff0000, v%d" % (X1 + k, PP + k))
    st(lambda k, g, e: "v_add_f32 v%d, v%d, v%d" % (X0 + k, X0 + k, Y0 + k))
    st(lambda k, g, e: "v_add_f32 v%d, v%d, v%d" % (X1 + k, X1 + k, Y1 + k))
    st(lambda k, g, e: "v_cvt_pk_bf16_f32 v%d, v%d, v%d" % (PP + k, X0 + k, X1 + k))
    for g in range(4):
        a("buffer_store_dwordx2 %s, v%d, %s, s54 offen offset:%d" % (vr(PP + 2 * g, 2), t + 1, sr(SO, 4), 16 * g))
    if os.environ.get("EXP_STAMP3"):
        a("s_waitcnt vmcnt(0)")
        a("s_memtime s[76:77]")
        a("s_memrealtime s[78:79]")
        a("s_waitcnt lgkmcnt(0)")
        a("s_add_u32 s84, s44, 0x%x" % (200 * MB))
        a("s_addc_u32 s85, s45, 0")
        make_srd(a, 88, 84, 85, MB)
        for i in range(20):
            a("v_mov_b32 v%d, s%d" % (8 + i, 64 + i))
        a("s_lshl_b32 s86, s2, 8")
        a("v_mov_b32 v40, 0")
        a("s_nop 4")
        for i in range(5):
            a("buffer_store_dwordx4 v[%d:%d], v40, s[88:91], s86 offen offset:%d" % (8 + 4 * i, 11 + 4 * i, 16 * i))
    tl_end(a, 202)
    a.label("L_fin_end")
    a("s_endpgm")


def f32bits(x):
    import struct
    return struct.unpack("<I", struct.pack("<f", x))[0]


def main():
    a = Asm()
    launches = []
    descs = []
    launches.append("; @launch kernel=proj_kernel grid=(256,1,1) block=(256,1,1) lds=163840")
    body = Asm()
    descs.append(gen_proj(body))
    launches.append("; @launch kernel=attn_kernel grid=(704,1,1) block=(256,1,1) lds=163840")
    descs.append(gen_attn(body))
    hdr = "\n".join(launches) + "\n" + '.amdgcn_target "amdgcn-amd-amdhsa--gfx950"\n'
    L = body.lines
    i = 1
    nmoved = nnop = 0
    while i < len(L):
        x = L[i].strip()
        if x.startswith("buffer_load") and " lds" in x and L[i - 1].strip().startswith("s_add_u32 m0"):
            prev = L[i - 2].strip() if i >= 2 else ""
            if prev.startswith(("v_mfma", "ds_read", "ds_write", "v_", "s_waitcnt")) and not prev.startswith(("v_cmp", "v_readfirstlane", "v_readlane")):
                L[i - 2], L[i - 1] = L[i - 1], L[i - 2]
                nmoved += 1
            else:
                L.insert(i, "    s_nop 0")
                nnop += 1
                i += 1
        i += 1
    print("m0 hazard: moved", nmoved, "nops", nnop)
    txt = body.text()
    fl = os.environ.get("ST_FLAGS", "sc1")
    if fl:
        import re
        txt = re.sub(r"(buffer_store_dwordx4 [^\n]*)", lambda m: m.group(1) + " " + fl, txt)
    with open(OUT, "w") as f:
        f.write(hdr + txt + "".join(descs))
    print("wrote", OUT, len(body.lines), "lines")


if __name__ == "__main__":
    main()
```
